```python
import torch

def _softmax(x, axis=-1):
    return torch.softmax(x, dim=axis)
def _gelu(x):
    return torch.nn.functional.gelu(x, approximate="tanh")
def _silu(x):
    return torch.nn.functional.silu(x)
def _sigmoid(x):
    return torch.sigmoid(x)
def _layernorm(x, axis=-1, eps=1e-5):
    m = x.mean(dim=axis, keepdim=True)
    v = x.var(dim=axis, keepdim=True, unbiased=False)
    return (x - m) / torch.sqrt(v + eps)
def _scatter_add(tgt, idx, src, axis=0):
    return tgt.clone().index_add_(axis, idx, src)
def _segment_sum(src, seg, n):
    out = torch.zeros((n,) + src.shape[1:], dtype=src.dtype)
    return out.index_add_(0, seg, src)
def _pad(x, pw):
    flat = tuple(v for pair in reversed(pw) for v in pair)
    return torch.nn.functional.pad(x, flat)

kernel_name = 'standalone__gqa_softmax__near_ridge'

def setup_inputs():

    _w = (lambda a: (lambda t: t.to(torch.bfloat16) if t.is_floating_point() else t)(torch.as_tensor(a)))
    B, Hq, Hkv, Sq, Sk, D = 8, 32, 4, 256, 256, 128
    return {
        "q": _w((lambda *s: torch.randn(*s, dtype=torch.bfloat16) * 0.8)(B, Hq, Sq, D)),
        "k": _w((lambda *s: torch.randn(*s, dtype=torch.bfloat16) * 0.8)(B, Hkv, Sk, D)),
        "v": _w((lambda *s: torch.randn(*s, dtype=torch.bfloat16) * 0.05)(B, Hkv, Sk, D)),
    }

def reference(q, k, v):
    B, Hq, Sq, D = q.shape
    Hkv = k.shape[1]
    rep = Hq // Hkv
    k = (lambda x, n, axis: torch.repeat_interleave(x, n, dim=axis))(k, rep, axis=1)
    v = (lambda x, n, axis: torch.repeat_interleave(x, n, dim=axis))(v, rep, axis=1)
    scale = D ** -0.5
    scores = torch.einsum("bhqd,bhkd->bhqk", q, k) * scale
    p = _softmax(scores, axis=-1)
    return torch.einsum("bhqk,bhkd->bhqd", p, v)
```

```python
import sys, math, struct

def f32bits(x): return struct.unpack("<I", struct.pack("<f", x))[0]

class E:
    def __init__(self): self.l = []
    def __call__(self, s): self.l.append("    " + s)
    def label(self, s): self.l.append(s + ":")
    def c(self, s): self.l.append("    ; " + s)
    def text(self): return "\n".join(self.l) + "\n"

HEADER = """; GQA attention forward, B=8 Hq=32 Hkv=4 Sq=Sk=256 D=128, bf16 in/out.
; @launch grid=(256,1,1) block=(512,1,1) lds=163840
.amdgcn_target "amdgcn-amd-amdhsa--gfx950"
.text
.globl standalone__gqa_softmax__near_ridge_kernel
.p2align 8
.type standalone__gqa_softmax__near_ridge_kernel,@function
standalone__gqa_softmax__near_ridge_kernel:
"""
FOOTER = """
.section .rodata,"a"
.p2align 6
.amdhsa_kernel standalone__gqa_softmax__near_ridge_kernel
  .amdhsa_next_free_vgpr 256
  .amdhsa_next_free_sgpr 102
  .amdhsa_accum_offset 256
  .amdhsa_group_segment_fixed_size 0
  .amdhsa_kernarg_size 48
  .amdhsa_user_sgpr_count 2
  .amdhsa_user_sgpr_kernarg_segment_ptr 1
  .amdhsa_system_sgpr_workgroup_id_x 1
.end_amdhsa_kernel
"""

def gen(store="direct", stamps=False, stflag="", ldflagq="", ldflagkv="", prio=True, nkbar=4, pk=False):
    e = E()
    sW = 3
    SQ, SK, SV, SO = 16, 20, 24, 28
    sQoff, sQlds, sTmp, sTmp2, sC, sGrp, sOlds = 32, 33, 34, 35, 36, 37, 38
    sStamp = 40
    nst = [0]
    def stamp(real=False):
        if not stamps: return
        r = sStamp + 2 * nst[0]; nst[0] += 1
        e(f"{'s_memrealtime' if real else 's_memtime'} s[{r}:{r+1}]")
    vLane = 0
    vKA = 8
    vVA = 16
    vDK, vDV = 20, 21
    vDQ = 22
    vM0, vM1, vL0, vL1, vT0, vT1, vMC, vInv = 26, 27, 28, 29, 30, 31, 32, 33
    vOW, vOR, vOG = 34, 36, 38
    vQA = 40
    vKR = 64
    vQ = 96
    vP = 64
    vS = 128
    vO = 128
    vVR = 192
    vE = 224

    e("s_cmp_ge_u32 s2, 256")
    e("s_cbranch_scc1 L_end")
    stamp(True); stamp()
    e("s_load_dwordx4 s[4:7], s[0:1], 0")
    e("s_load_dwordx4 s[8:11], s[0:1], 16")
    if stamps: e("s_load_dwordx2 s[12:13], s[0:1], 40")
    e("v_lshrrev_b32 v1, 6, v0")
    e("v_and_b32 v0, 63, v0")
    e(f"v_readfirstlane_b32 s{sW}, v1")
    e("s_and_b32 s14, s2, 7")
    e("s_lshr_b32 s15, s2, 3")
    e(f"s_lshr_b32 s{sTmp}, s15, 3")
    e("s_lshl_b32 s14, s14, 2")
    e(f"s_add_u32 s14, s14, s{sTmp}")
    e("s_and_b32 s15, s15, 7")
    e(f"s_lshl_b32 s{sTmp}, s14, 3")
    e(f"s_add_u32 s15, s15, s{sTmp}")
    e("s_lshl_b32 s14, s14, 16")
    e("s_lshl_b32 s15, s15, 16")
    e("v_lshrrev_b32 v2, 4, v0")
    e("v_and_b32 v3, 15, v0")
    e("v_xor_b32 v4, v2, v3")
    e("v_lshlrev_b32 v4, 4, v4")
    e(f"v_lshl_add_u32 v{vDQ}, v2, 8, v4")
    for m in range(1, 4):
        e(f"v_xor_b32 v{vDQ+m}, {m*64}, v{vDQ}")
    e(f"s_and_b32 s{sTmp}, s{sW}, 3")
    e(f"s_lshl_b32 s{sTmp}, s{sTmp}, 6")
    e(f"s_lshl_b32 s{sTmp2}, s{sW}, 10")
    e(f"v_xor_b32 v{vDK}, s{sTmp}, v{vDQ}")
    e(f"v_add_u32 v{vDK}, s{sTmp2}, v{vDK}")
    e("v_lshlrev_b32 v4, 2, v2")
    e("v_xor_b32 v4, v4, v3")
    e("v_lshlrev_b32 v4, 4, v4")
    e(f"v_lshl_add_u32 v{vDV}, v2, 8, v4")
    e(f"s_lshl_b32 s{sQoff}, s{sW}, 13")
    e(f"s_cmp_ge_u32 s{sW}, 4")
    e(f"s_cselect_b32 s{sGrp}, 1, 0")
    e(f"s_cselect_b32 s{sTmp}, 1, 2")
    e(f"s_lshl_b32 s{sTmp}, s{sTmp}, 16")
    e(f"s_add_u32 s{sQlds}, s{sTmp}, s{sQoff}")
    e(f"s_sub_u32 s{sTmp}, s{sQoff}, 0x8000")
    e(f"s_cmp_ge_u32 s{sW}, 4")
    e(f"s_cselect_b32 s{sOlds}, s{sTmp}, s{sQlds}")
    e("s_waitcnt lgkmcnt(0)")
    for (srd, p, off) in ((SQ, 4, 15), (SK, 6, 14), (SV, 8, 14), (SO, 10, 15)):
        e(f"s_add_u32 s{srd}, s{p}, s{off}")
        e(f"s_addc_u32 s{srd+1}, s{p+1}, 0")
        e(f"s_mov_b32 s{srd+2}, 0x10000")
        e(f"s_mov_b32 s{srd+3}, 0x20000")

    def dma_tile(srd, vaddrs, sLds, sOff, flag):
        e(f"s_mov_b32 m0, s{sLds}")
        e(f"s_add_u32 s{sTmp2}, s{sOff}, 4096")
        for n in range(4):
            e(f"buffer_load_dwordx4 v{vaddrs[n]}, s[{srd}:{srd+3}], s{sOff} offen offset:{n*1024} lds {flag}".rstrip())
        e(f"s_add_u32 m0, s{sLds}, 4096")
        e("s_nop 0")
        for n in range(4):
            e(f"buffer_load_dwordx4 v{vaddrs[n]}, s[{srd}:{srd+3}], s{sTmp2} offen offset:{n*1024} lds {flag}".rstrip())
    def dma_q(): dma_tile(SQ, [vDQ, vDQ+1, vDQ+2, vDQ+3], sQlds, sQoff, ldflagq)
    def dma_k():
        e(f"s_lshl_b32 s{sTmp}, s{sW}, 10")
        for t in range(8):
            e(f"s_add_u32 m0, s{sTmp}, {t*8192}")
            e(f"s_mov_b32 s{sTmp2}, {t*8192}")
            e(f"buffer_load_dwordx4 v{vDK}, s[{SK}:{SK+3}], s{sTmp2} offen lds {ldflagkv}".rstrip())
    def dma_v():
        e(f"s_add_u32 s{sTmp}, s{sQoff}, 0x10000")
        dma_tile(SV, [vDV]*4, sTmp, sQoff, ldflagkv)
    def addr_setup():
        e("v_and_b32 v2, 31, v0")
        e("v_lshrrev_b32 v3, 5, v0")
        e("v_and_b32 v4, 15, v0")
        e("v_xor_b32 v4, v4, v3")
        e("v_lshlrev_b32 v4, 4, v4")
        e(f"v_lshl_add_u32 v{vKA}, v2, 8, v4")
        for s in range(1, 8):
            e(f"v_xor_b32 v{vKA+s}, {s*32}, v{vKA}")
        for s in range(8):
            e(f"v_add_u32 v{vQA+s}, s{sQlds}, v{vKA+s}")
        e("v_bfe_u32 v4, v0, 2, 2")
        e("v_lshl_add_u32 v5, v3, 2, v4")
        e("v_lshlrev_b32 v5, 8, v5")
        e("v_lshl_add_u32 v5, v4, 6, v5")
        e("v_bfe_u32 v6, v0, 4, 1")
        e("v_lshl_add_u32 v5, v6, 5, v5")
        e("v_and_b32 v6, 1, v0")
        e("v_lshl_add_u32 v5, v6, 4, v5")
        e("v_bfe_u32 v6, v0, 1, 1")
        e("v_lshl_add_u32 v5, v6, 3, v5")
        e(f"v_add_u32 v{vVA}, 0x10000, v5")
        for t in range(1, 4):
            e(f"v_xor_b32 v{vVA+t}, {t*64}, v{vVA}")
        if store == "direct":
            e("v_lshlrev_b32 v5, 8, v2")
            e("v_lshl_add_u32 v5, v3, 4, v5")
            e(f"v_add_u32 v{vOG}, s{sQoff}, v5")
        else:
            e("v_and_b32 v4, 7, v0")
            e("v_xor_b32 v4, v4, v3")
            e("v_lshlrev_b32 v4, 4, v4")
            e("v_lshl_add_u32 v4, v2, 7, v4")
            e(f"v_add_u32 v{vOW}, s{sOlds}, v4")
            e("v_lshrrev_b32 v4, 3, v0")
            e("v_and_b32 v5, 7, v0")
            e("v_xor_b32 v6, v4, v5")
            e("v_lshlrev_b32 v6, 4, v6")
            e("v_lshl_add_u32 v6, v4, 7, v6")
            e(f"v_add_u32 v{vOR}, s{sOlds}, v6")
            e("v_lshlrev_b32 v5, 4, v5")
            e("v_lshl_add_u32 v5, v4, 8, v5")
            e(f"v_add_u32 v{vOG}, s{sQoff}, v5")
        e(f"s_mov_b32 s{sC}, {hex(f32bits(math.log2(math.e) / math.sqrt(128.0)))}")
    def read_q():
        for s in range(8):
            e(f"ds_read_b128 v[{vQ+4*s}:{vQ+4*s+3}], v{vQA+s}")

    tiles_per_bar = 8 // nkbar
    e(f"s_cmp_eq_u32 s{sGrp}, 1")
    e("s_cbranch_scc1 L_proB")
    dma_q(); dma_k(); dma_v()
    stamp()
    addr_setup()
    e(f"s_waitcnt vmcnt({16 - tiles_per_bar})")
    e("s_barrier")
    stamp()
    read_q()
    e("s_branch L_qk")
    e.label("L_proB")
    dma_k(); dma_q()
    if stamps: nst[0] -= 2
    stamp()
    addr_setup()
    for b in range(nkbar):
        e(f"s_waitcnt vmcnt({16 - tiles_per_bar*(b+1)})")
        e("s_barrier")
    e("s_waitcnt vmcnt(0)")
    stamp()
    read_q()
    e("s_waitcnt lgkmcnt(0)")
    dma_v()
    e.label("L_qk")
    if prio: e("s_setprio 1")
    DEPTH = 6
    nfr = 64
    def kread(i):
        t, s = divmod(i, 8)
        if s == 0 and t > 0 and t % tiles_per_bar == 0:
            b = t // tiles_per_bar
            e(f"s_cmp_eq_u32 s{sGrp}, 1")
            e(f"s_cbranch_scc1 L_nb{b}")
            e(f"s_waitcnt vmcnt({16 - tiles_per_bar*(b+1)})")
            e("s_barrier")
            e.label(f"L_nb{b}")
        r = vKR + 4 * (i % 8)
        e(f"ds_read_b128 v[{r}:{r+3}], v{vKA+s} offset:{t*8192}")
    for i in range(DEPTH): kread(i)
    maxops = []
    def tile_max(t):
        ops = []
        b = vS + 16 * t
        if t == 0:
            ops.append(f"v_max3_f32 v{vM0}, v{b}, v{b+1}, v{b+2}")
            ops.append(f"v_max3_f32 v{vM1}, v{b+3}, v{b+4}, v{b+5}")
            rest = list(range(6, 16))
        else:
            rest = list(range(0, 16))
        for j in range(0, len(rest), 2):
            m = vM0 if (j // 2) % 2 == 0 else vM1
            ops.append(f"v_max3_f32 v{m}, v{m}, v{b+rest[j]}, v{b+rest[j+1]}")
        return ops
    pend = []
    for i in range(nfr):
        t, s = divmod(i, 8)
        if s == 4 and t >= 1: pend += tile_max(t - 1)
        out = min(i + DEPTH - 1, nfr - 1) - i
        e(f"s_waitcnt lgkmcnt({out})")
        r = vKR + 4 * (i % 8)
        d = vS + 16 * t
        cin = "0" if s == 0 else f"v[{d}:{d+15}]"
        e(f"v_mfma_f32_32x32x16_bf16 v[{d}:{d+15}], v[{r}:{r+3}], v[{vQ+4*s}:{vQ+4*s+3}], {cin}")
        if i + DEPTH < nfr: kread(i + DEPTH)
        n = 1 if i < nfr - 4 else 2
        for _ in range(n):
            if pend: e(pend.pop(0))
    stamp()
    e(f"s_cmp_eq_u32 s{sGrp}, 0")
    e("s_cbranch_scc1 L_nbxB")
    e("s_waitcnt vmcnt(0)")
    e("s_barrier")
    e.label("L_nbxB")
    if prio: e("s_setprio 0")
    assert not pend
    e("s_nop 9")
    for op in tile_max(7): e(op)
    e(f"v_max_f32 v{vM0}, v{vM0}, v{vM1}")
    e(f"v_mov_b32 v{vM1}, v{vM0}")
    e("s_nop 1")
    e(f"v_permlane32_swap_b32 v{vM0}, v{vM1}")
    e(f"v_max_f32 v{vM0}, v{vM0}, v{vM1}")
    e(f"v_mul_f32 v{vMC}, s{sC}, v{vM0}")
    npair = 64
    def fma(i):
        a = vS + 2 * i
        if pk:
            return [f"v_pk_fma_f32 v[{a}:{a+1}], v[{a}:{a+1}], s[{sCC}:{sCC+1}], v[{vMC}:{vMC+1}] neg_lo:[0,0,1] neg_hi:[0,0,1]"]
        return [f"v_fma_f32 v{a}, v{a}, s{sC}, -v{vMC}", f"v_fma_f32 v{a+1}, v{a+1}, s{sC}, -v{vMC}"]
    sCC = 38 + 0
    if pk:
        sCC = 70
        e(f"s_mov_b32 s{sCC}, s{sC}")
        e(f"s_mov_b32 s{sCC+1}, s{sC}")
        e(f"v_mov_b32 v{vMC+1}, v{vMC}")
    for op in fma(0): e(op)
    for op in fma(1): e(op)
    e(f"v_exp_f32 v{vS}, v{vS}")
    e(f"v_exp_f32 v{vS+1}, v{vS+1}")
    for i in range(npair):
        a = vS + 2 * i
        if i + 2 < npair:
            for op in fma(i + 2): e(op)
        if i + 1 < npair: e(f"v_exp_f32 v{a+2}, v{a+2}")
        if pk:
            if i + 1 < npair: e(f"v_exp_f32 v{a+3}, v{a+3}")
            if i == 0: e(f"v_pk_add_f32 v[{vL0}:{vL0+1}], v[{a}:{a+1}], 0")
            else: e(f"v_pk_add_f32 v[{vL0}:{vL0+1}], v[{vL0}:{vL0+1}], v[{a}:{a+1}]")
        else:
            if i == 0: e(f"v_mov_b32 v{vL0}, v{a}")
            else: e(f"v_add_f32 v{vL0}, v{vL0}, v{a}")
            if i + 1 < npair: e(f"v_exp_f32 v{a+3}, v{a+3}")
            if i == 0: e(f"v_mov_b32 v{vL1}, v{a+1}")
            else: e(f"v_add_f32 v{vL1}, v{vL1}, v{a+1}")
        e(f"v_cvt_pk_bf16_f32 v{vP+i}, v{a}, v{a+1}")
    e(f"v_add_f32 v{vL0}, v{vL0}, v{vL1}")
    e(f"v_mov_b32 v{vL1}, v{vL0}")
    e("s_nop 1")
    e(f"v_permlane32_swap_b32 v{vL0}, v{vL1}")
    e(f"v_add_f32 v{vL0}, v{vL0}, v{vL1}")
    e(f"v_rcp_f32 v{vInv}, v{vL0}")
    stamp()
    e(f"s_cmp_eq_u32 s{sGrp}, 1")
    e("s_cbranch_scc1 L_nbxA")
    e("s_waitcnt vmcnt(0)")
    e("s_barrier")
    e.label("L_nbxA")
    if prio: e("s_setprio 1")
    stamp()
    VD = 5
    lds_ops = []
    def vread(i):
        t, ks = divmod(i, 16)
        r = vVR + 4 * (i % 8)
        e(f"ds_read_b64_tr_b16 v[{r}:{r+1}], v{vVA+t} offset:{ks*4096}")
        e(f"ds_read_b64_tr_b16 v[{r+2}:{r+3}], v{vVA+t} offset:{ks*4096+2048}")
        lds_ops.append(("v", i)); lds_ops.append(("v", i))
    def wait_for(tag):
        last = max(j for j, x in enumerate(lds_ops) if x == tag)
        n = len(lds_ops) - 1 - last
        assert n <= 15, n
        e(f"s_waitcnt lgkmcnt({n})")
    def epi(t):
        ops = []
        b = vO + 16 * t
        pkd = vE + 8 * (t % 2)
        for n in range(2):
            for j in range(8):
                ops.append(("valu", f"v_mul_f32 v{b+8*n+j}, v{vInv}, v{b+8*n+j}"))
            for j in range(4):
                ops.append(("valu", f"v_cvt_pk_bf16_f32 v{pkd+4*n+j}, v{b+8*n+2*j}, v{b+8*n+2*j+1}"))
            if store == "direct":
                ops.append(("vm", f"buffer_store_dwordx4 v[{pkd+4*n}:{pkd+4*n+3}], v{vOG}, s[{SO}:{SO+3}], 0 offen offset:{64*t+32*n} {stflag}".rstrip()))
            else:
                x = (4 * (t % 2) + 2 * n) * 16
                ops.append(("valu", f"v_xor_b32 v{vOW+1}, {x}, v{vOW}"))
                ops.append(("ldsw", f"ds_write_b128 v{vOW+1}, v[{pkd+4*n}:{pkd+4*n+3}] offset:{(t//2)*4096}", ("ow", t, n)))
        if store != "direct" and t % 2 == 1:
            hf = t // 2
            tb = vE + 16
            ops.append(("waitl", ("ow", t, 1)))
            for m in range(4):
                ops.append(("ldsw", f"ds_read_b128 v[{tb+4*m}:{tb+4*m+3}], v{vOR} offset:{hf*4096 + m*1024}", ("or", t, m)))
            for m in range(4):
                ops.append(("waitl", ("or", t, m)))
                ops.append(("vm", f"buffer_store_dwordx4 v[{tb+4*m}:{tb+4*m+3}], v{vOG}, s[{SO}:{SO+3}], s{sStO+m} offen offset:{hf*128} {stflag}".rstrip()))
        return ops
    sStO = 72
    if store != "direct":
        for m in range(4): e(f"s_mov_b32 s{sStO+m}, {m*2048}")
    def emit_op(op):
        if op[0] in ("valu", "vm"): e(op[1])
        elif op[0] == "ldsw": e(op[1]); lds_ops.append(op[2])
        elif op[0] == "waitl": wait_for(op[1])
    for i in range(VD): vread(i)
    pend = []
    for i in range(64):
        t, ks = divmod(i, 16)
        if ks == 4 and t >= 1: pend += epi(t - 1)
        wait_for(("v", i))
        r = vVR + 4 * (i % 8)
        d = vO + 16 * t
        cin = "0" if ks == 0 else f"v[{d}:{d+15}]"
        e(f"v_mfma_f32_32x32x16_bf16 v[{d}:{d+15}], v[{r}:{r+3}], v[{vP+4*ks}:{vP+4*ks+3}], {cin}")
        if i + VD < 64: vread(i + VD)
        for _ in range(4):
            if pend: emit_op(pend.pop(0))
    while pend: emit_op(pend.pop(0))
    stamp()
    e("s_nop 11")
    for op in epi(3): emit_op(op)
    stamp()
    if stamps:
        e("s_waitcnt vmcnt(0)")
        stamp(); stamp(True)
        e("s_waitcnt lgkmcnt(0)")
        n = nst[0]
        e(f"s_lshl_b32 s{sTmp}, s2, 3")
        e(f"s_add_u32 s{sTmp}, s{sTmp}, s{sW}")
        e(f"s_mul_i32 s{sTmp}, s{sTmp}, {n*8}")
        e(f"s_add_u32 s12, s12, s{sTmp}")
        e("s_addc_u32 s13, s13, 0")
        e("v_mov_b32 v1, 0")
        for j in range(n):
            e(f"v_mov_b32 v2, s{sStamp+2*j}")
            e(f"v_mov_b32 v3, s{sStamp+2*j+1}")
            e(f"global_store_dwordx2 v1, v[2:3], s[12:13] offset:{8*j}")
            e("s_nop 1")
        sys.stderr.write(f"nstamps={n}\n")
    e.label("L_end")
    e("s_endpgm")
    return HEADER + e.text() + FOOTER

if __name__ == "__main__":
    kw = {}
    out = sys.argv[1]
    for a in sys.argv[2:]:
        k, v = a.split("=", 1)
        if v in ("True", "False"): v = v == "True"
        elif v.isdigit(): v = int(v)
        kw[k] = v
    open(out, "w").write(gen(**kw))
```

```python
import sys, math, struct

def f32bits(x): return struct.unpack("<I", struct.pack("<f", x))[0]

class E:
    def __init__(self): self.l = []
    def __call__(self, s): self.l.append("    " + s)
    def label(self, s): self.l.append(s + ":")
    def c(self, s): self.l.append("    ; " + s)
    def text(self): return "\n".join(self.l) + "\n"

HEADER = """; GQA attention forward, B=8 Hq=32 Hkv=4 Sq=Sk=256 D=128, bf16 in/out.
; @launch grid=(256,1,1) block=(512,1,1) lds=163840
.amdgcn_target "amdgcn-amd-amdhsa--gfx950"
.text
.globl standalone__gqa_softmax__near_ridge_kernel
.p2align 8
.type standalone__gqa_softmax__near_ridge_kernel,@function
standalone__gqa_softmax__near_ridge_kernel:
"""
FOOTER = """
.section .rodata,"a"
.p2align 6
.amdhsa_kernel standalone__gqa_softmax__near_ridge_kernel
  .amdhsa_next_free_vgpr 256
  .amdhsa_next_free_sgpr 102
  .amdhsa_accum_offset 256
  .amdhsa_group_segment_fixed_size 0
  .amdhsa_kernarg_size 48
  .amdhsa_user_sgpr_count 2
  .amdhsa_user_sgpr_kernarg_segment_ptr 1
  .amdhsa_system_sgpr_workgroup_id_x 1
.end_amdhsa_kernel
"""

def gen(store="direct", stamps=False, stflag="", ldflagq="", ldflagkv="", prio=True, nkbar=4, pk=False, dbg=False, dbgwave=0):
    e = E()
    sW = 3
    SQ, SK, SV, SO = 16, 20, 24, 28
    sQoff, sQlds, sTmp, sTmp2, sC, sGrp, sOlds = 32, 33, 34, 35, 36, 37, 38
    sStamp = 40
    nst = [0]
    def stamp(real=False):
        if not stamps: return
        r = sStamp + 2 * nst[0]; nst[0] += 1
        e(f"{'s_memrealtime' if real else 's_memtime'} s[{r}:{r+1}]")
    vLane = 0
    vKA = 8
    vVA = 16
    vDK, vDV = 20, 21
    vDQ = 22
    vM0, vM1, vL0, vL1, vT0, vT1, vMC, vInv = 26, 27, 28, 29, 30, 31, 32, 33
    vOW, vOR, vOG = 34, 36, 38
    vQA = 40
    vKR = 64
    vQ = 96
    vP = 64
    vS = 128
    vO = 128
    vVR = 192
    vE = 224

    e("s_cmp_ge_u32 s2, 256")
    e("s_cbranch_scc1 L_end")
    stamp(True); stamp()
    e("s_load_dwordx4 s[4:7], s[0:1], 0")
    e("s_load_dwordx4 s[8:11], s[0:1], 16")
    if stamps: e(f"s_load_dwordx2 s[12:13], s[0:1], {32 if dbg else 40}")
    e("v_lshrrev_b32 v1, 6, v0")
    e("v_and_b32 v0, 63, v0")
    e(f"v_readfirstlane_b32 s{sW}, v1")
    e("s_and_b32 s14, s2, 7")
    e("s_lshr_b32 s15, s2, 3")
    e(f"s_lshr_b32 s{sTmp}, s15, 3")
    e("s_lshl_b32 s14, s14, 2")
    e(f"s_add_u32 s14, s14, s{sTmp}")
    e("s_and_b32 s15, s15, 7")
    e(f"s_lshl_b32 s{sTmp}, s14, 3")
    e(f"s_add_u32 s15, s15, s{sTmp}")
    e("s_lshl_b32 s14, s14, 16")
    e("s_lshl_b32 s15, s15, 16")
    e("v_lshrrev_b32 v2, 4, v0")
    e("v_and_b32 v3, 15, v0")
    e("v_xor_b32 v4, v2, v3")
    e("v_lshlrev_b32 v4, 4, v4")
    e(f"v_lshl_add_u32 v{vDQ}, v2, 8, v4")
    for m in range(1, 4):
        e(f"v_xor_b32 v{vDQ+m}, {m*64}, v{vDQ}")
    e(f"s_and_b32 s{sTmp}, s{sW}, 3")
    e(f"s_lshl_b32 s{sTmp}, s{sTmp}, 6")
    e(f"s_lshl_b32 s{sTmp2}, s{sW}, 10")
    e(f"v_xor_b32 v{vDK}, s{sTmp}, v{vDQ}")
    e(f"v_add_u32 v{vDK}, s{sTmp2}, v{vDK}")
    e("v_lshlrev_b32 v4, 2, v2")
    e("v_xor_b32 v4, v4, v3")
    e("v_lshlrev_b32 v4, 4, v4")
    e(f"v_lshl_add_u32 v{vDV}, v2, 8, v4")
    e(f"s_lshl_b32 s{sQoff}, s{sW}, 13")
    e(f"s_cmp_ge_u32 s{sW}, 4")
    e(f"s_cselect_b32 s{sGrp}, 1, 0")
    e(f"s_cselect_b32 s{sTmp}, 1, 2")
    e(f"s_lshl_b32 s{sTmp}, s{sTmp}, 16")
    e(f"s_add_u32 s{sQlds}, s{sTmp}, s{sQoff}")
    e(f"s_sub_u32 s{sTmp}, s{sQoff}, 0x8000")
    e(f"s_cmp_ge_u32 s{sW}, 4")
    e(f"s_cselect_b32 s{sOlds}, s{sTmp}, s{sQlds}")
    e("s_waitcnt lgkmcnt(0)")
    stamp()
    for (srd, p, off) in ((SQ, 4, 15), (SK, 6, 14), (SV, 8, 14), (SO, 10, 15)):
        e(f"s_add_u32 s{srd}, s{p}, s{off}")
        e(f"s_addc_u32 s{srd+1}, s{p+1}, 0")
        e(f"s_mov_b32 s{srd+2}, 0x10000")
        e(f"s_mov_b32 s{srd+3}, 0x20000")

    def dma_tile(srd, vaddrs, sLds, sOff, flag):
        e(f"s_mov_b32 m0, s{sLds}")
        e(f"s_add_u32 s{sTmp2}, s{sOff}, 4096")
        for n in range(4):
            e(f"buffer_load_dwordx4 v{vaddrs[n]}, s[{srd}:{srd+3}], s{sOff} offen offset:{n*1024} lds {flag}".rstrip())
        e(f"s_add_u32 m0, s{sLds}, 4096")
        e("s_nop 0")
        for n in range(4):
            e(f"buffer_load_dwordx4 v{vaddrs[n]}, s[{srd}:{srd+3}], s{sTmp2} offen offset:{n*1024} lds {flag}".rstrip())
    def dma_q(): dma_tile(SQ, [vDQ, vDQ+1, vDQ+2, vDQ+3], sQlds, sQoff, ldflagq)
    def dma_k():
        e(f"s_lshl_b32 s{sTmp}, s{sW}, 10")
        for t in range(8):
            e(f"s_add_u32 m0, s{sTmp}, {t*8192}")
            e(f"s_mov_b32 s{sTmp2}, {t*8192}")
            e(f"buffer_load_dwordx4 v{vDK}, s[{SK}:{SK+3}], s{sTmp2} offen lds {ldflagkv}".rstrip())
    def dma_v():
        e(f"s_add_u32 s{sTmp}, s{sQoff}, 0x10000")
        dma_tile(SV, [vDV]*4, sTmp, sQoff, ldflagkv)
    def addr_setup():
        e("v_and_b32 v2, 31, v0")
        e("v_lshrrev_b32 v3, 5, v0")
        e("v_and_b32 v4, 15, v0")
        e("v_xor_b32 v4, v4, v3")
        e("v_lshlrev_b32 v4, 4, v4")
        e(f"v_lshl_add_u32 v{vKA}, v2, 8, v4")
        for s in range(1, 8):
            e(f"v_xor_b32 v{vKA+s}, {s*32}, v{vKA}")
        for s in range(8):
            e(f"v_add_u32 v{vQA+s}, s{sQlds}, v{vKA+s}")
        e("v_bfe_u32 v4, v0, 2, 2")
        e("v_lshl_add_u32 v5, v3, 2, v4")
        e("v_lshlrev_b32 v5, 8, v5")
        e("v_lshl_add_u32 v5, v4, 6, v5")
        e("v_bfe_u32 v6, v0, 4, 1")
        e("v_lshl_add_u32 v5, v6, 5, v5")
        e("v_and_b32 v6, 1, v0")
        e("v_lshl_add_u32 v5, v6, 4, v5")
        e("v_bfe_u32 v6, v0, 1, 1")
        e("v_lshl_add_u32 v5, v6, 3, v5")
        e(f"v_add_u32 v{vVA}, 0x10000, v5")
        for t in range(1, 4):
            e(f"v_xor_b32 v{vVA+t}, {t*64}, v{vVA}")
        if store == "direct":
            e("v_lshlrev_b32 v5, 8, v2")
            e("v_lshl_add_u32 v5, v3, 4, v5")
            e(f"v_add_u32 v{vOG}, s{sQoff}, v5")
        else:
            e("v_and_b32 v4, 7, v0")
            e("v_xor_b32 v4, v4, v3")
            e("v_lshlrev_b32 v4, 4, v4")
            e("v_lshl_add_u32 v4, v2, 7, v4")
            e(f"v_add_u32 v{vOW}, s{sOlds}, v4")
            e("v_lshrrev_b32 v4, 3, v0")
            e("v_and_b32 v5, 7, v0")
            e("v_xor_b32 v6, v4, v5")
            e("v_lshlrev_b32 v6, 4, v6")
            e("v_lshl_add_u32 v6, v4, 7, v6")
            e(f"v_add_u32 v{vOR}, s{sOlds}, v6")
            e("v_lshlrev_b32 v5, 4, v5")
            e("v_lshl_add_u32 v5, v4, 8, v5")
            e(f"v_add_u32 v{vOG}, s{sQoff}, v5")
        e(f"s_mov_b32 s{sC}, {hex(f32bits(math.log2(math.e) / math.sqrt(128.0)))}")
    def read_q():
        for s in range(8):
            e(f"ds_read_b128 v[{vQ+4*s}:{vQ+4*s+3}], v{vQA+s}")

    tiles_per_bar = 8 // nkbar
    e(f"s_cmp_eq_u32 s{sGrp}, 1")
    e("s_cbranch_scc1 L_proB")
    dma_q(); stamp(); dma_k(); stamp(); dma_v()
    stamp()
    addr_setup()
    e(f"s_waitcnt vmcnt({16 - tiles_per_bar})")
    e("s_barrier")
    stamp()
    read_q()
    e("s_branch L_qk")
    e.label("L_proB")
    if stamps: nst[0] -= 4
    dma_k(); stamp(); dma_q(); stamp()
    stamp()
    addr_setup()
    for b in range(nkbar):
        e(f"s_waitcnt vmcnt({16 - tiles_per_bar*(b+1)})")
        e("s_barrier")
    e("s_waitcnt vmcnt(0)")
    stamp()
    read_q()
    e("s_waitcnt lgkmcnt(0)")
    dma_v()
    e.label("L_qk")
    if prio: e("s_setprio 1")
    DEPTH = 6
    nfr = 64
    def kread(i):
        t, s = divmod(i, 8)
        if s == 0 and t > 0 and t % tiles_per_bar == 0:
            b = t // tiles_per_bar
            e(f"s_cmp_eq_u32 s{sGrp}, 1")
            e(f"s_cbranch_scc1 L_nb{b}")
            e(f"s_waitcnt vmcnt({16 - tiles_per_bar*(b+1)})")
            e("s_barrier")
            e.label(f"L_nb{b}")
        r = vKR + 4 * (i % 8)
        e(f"ds_read_b128 v[{r}:{r+3}], v{vKA+s} offset:{t*8192}")
    for i in range(DEPTH): kread(i)
    maxops = []
    def tile_max(t):
        ops = []
        b = vS + 16 * t
        if t == 0:
            ops.append(f"v_max3_f32 v{vM0}, v{b}, v{b+1}, v{b+2}")
            ops.append(f"v_max3_f32 v{vM1}, v{b+3}, v{b+4}, v{b+5}")
            rest = list(range(6, 16))
        else:
            rest = list(range(0, 16))
        for j in range(0, len(rest), 2):
            m = vM0 if (j // 2) % 2 == 0 else vM1
            ops.append(f"v_max3_f32 v{m}, v{m}, v{b+rest[j]}, v{b+rest[j+1]}")
        return ops
    pend = []
    for i in range(nfr):
        t, s = divmod(i, 8)
        if s == 4 and t >= 1: pend += tile_max(t - 1)
        out = min(i + DEPTH - 1, nfr - 1) - i
        e(f"s_waitcnt lgkmcnt({out})")
        r = vKR + 4 * (i % 8)
        d = vS + 16 * t
        cin = "0" if s == 0 else f"v[{d}:{d+15}]"
        e(f"v_mfma_f32_32x32x16_bf16 v[{d}:{d+15}], v[{r}:{r+3}], v[{vQ+4*s}:{vQ+4*s+3}], {cin}")
        if i + DEPTH < nfr: kread(i + DEPTH)
        n = 1 if i < nfr - 4 else 2
        for _ in range(n):
            if pend: e(pend.pop(0))
    stamp()
    e(f"s_cmp_eq_u32 s{sGrp}, 0")
    e("s_cbranch_scc1 L_nbxB")
    e("s_waitcnt vmcnt(0)")
    e("s_barrier")
    e.label("L_nbxB")
    if prio: e("s_setprio 0")
    assert not pend
    e("s_nop 9")
    for op in tile_max(7): e(op)
    e(f"v_max_f32 v{vM0}, v{vM0}, v{vM1}")
    e(f"v_mov_b32 v{vM1}, v{vM0}")
    e("s_nop 1")
    e(f"v_permlane32_swap_b32 v{vM0}, v{vM1}")
    e(f"v_max_f32 v{vM0}, v{vM0}, v{vM1}")
    e(f"v_mul_f32 v{vMC}, s{sC}, v{vM0}")
    npair = 64
    def fma(i):
        a = vS + 2 * i
        if pk:
            return [f"v_pk_fma_f32 v[{a}:{a+1}], v[{a}:{a+1}], s[{sCC}:{sCC+1}], v[{vMC}:{vMC+1}] neg_lo:[0,0,1] neg_hi:[0,0,1]"]
        return [f"v_fma_f32 v{a}, v{a}, s{sC}, -v{vMC}", f"v_fma_f32 v{a+1}, v{a+1}, s{sC}, -v{vMC}"]
    sCC = 38 + 0
    if pk:
        sCC = 90
        e(f"s_mov_b32 s{sCC}, s{sC}")
        e(f"s_mov_b32 s{sCC+1}, s{sC}")
        e(f"v_mov_b32 v{vMC+1}, v{vMC}")
    for op in fma(0): e(op)
    for op in fma(1): e(op)
    e(f"v_exp_f32 v{vS}, v{vS}")
    e(f"v_exp_f32 v{vS+1}, v{vS+1}")
    for i in range(npair):
        a = vS + 2 * i
        if i + 2 < npair:
            for op in fma(i + 2): e(op)
        if i + 1 < npair: e(f"v_exp_f32 v{a+2}, v{a+2}")
        if pk:
            if i + 1 < npair: e(f"v_exp_f32 v{a+3}, v{a+3}")
            if i == 0: e(f"v_pk_add_f32 v[{vL0}:{vL0+1}], v[{a}:{a+1}], 0")
            else: e(f"v_pk_add_f32 v[{vL0}:{vL0+1}], v[{vL0}:{vL0+1}], v[{a}:{a+1}]")
        else:
            if i == 0: e(f"v_mov_b32 v{vL0}, v{a}")
            else: e(f"v_add_f32 v{vL0}, v{vL0}, v{a}")
            if i + 1 < npair: e(f"v_exp_f32 v{a+3}, v{a+3}")
            if i == 0: e(f"v_mov_b32 v{vL1}, v{a+1}")
            else: e(f"v_add_f32 v{vL1}, v{vL1}, v{a+1}")
        e(f"v_cvt_pk_bf16_f32 v{vP+i}, v{a}, v{a+1}")
    e(f"v_add_f32 v{vL0}, v{vL0}, v{vL1}")
    e(f"v_mov_b32 v{vL1}, v{vL0}")
    e("s_nop 1")
    e(f"v_permlane32_swap_b32 v{vL0}, v{vL1}")
    e(f"v_add_f32 v{vL0}, v{vL0}, v{vL1}")
    e(f"v_rcp_f32 v{vInv}, v{vL0}")
    stamp()
    e(f"s_cmp_eq_u32 s{sGrp}, 1")
    e("s_cbranch_scc1 L_nbxA")
    e("s_waitcnt vmcnt(0)")
    e("s_barrier")
    e.label("L_nbxA")
    if prio: e("s_setprio 1")
    stamp()
    VD = 5
    lds_ops = []
    def vread(i):
        t, ks = divmod(i, 16)
        r = vVR + 4 * (i % 8)
        e(f"ds_read_b64_tr_b16 v[{r}:{r+1}], v{vVA+t} offset:{ks*4096}")
        e(f"ds_read_b64_tr_b16 v[{r+2}:{r+3}], v{vVA+t} offset:{ks*4096+2048}")
        lds_ops.append(("v", i)); lds_ops.append(("v", i))
    def wait_for(tag):
        last = max(j for j, x in enumerate(lds_ops) if x == tag)
        n = len(lds_ops) - 1 - last
        assert n <= 15, n
        e(f"s_waitcnt lgkmcnt({n})")
    def epi(t):
        ops = []
        b = vO + 16 * t
        pkd = vE + 8 * (t % 2)
        for n in range(2):
            for j in range(8):
                ops.append(("valu", f"v_mul_f32 v{b+8*n+j}, v{vInv}, v{b+8*n+j}"))
            for j in range(4):
                ops.append(("valu", f"v_cvt_pk_bf16_f32 v{pkd+4*n+j}, v{b+8*n+2*j}, v{b+8*n+2*j+1}"))
            if store == "direct":
                ops.append(("vm", f"buffer_store_dwordx4 v[{pkd+4*n}:{pkd+4*n+3}], v{vOG}, s[{SO}:{SO+3}], 0 offen offset:{64*t+32*n} {stflag}".rstrip()))
            else:
                x = (4 * (t % 2) + 2 * n) * 16
                ops.append(("valu", f"v_xor_b32 v{vOW+1}, {x}, v{vOW}"))
                ops.append(("ldsw", f"ds_write_b128 v{vOW+1}, v[{pkd+4*n}:{pkd+4*n+3}] offset:{(t//2)*4096}", ("ow", t, n)))
        if store != "direct" and t % 2 == 1:
            hf = t // 2
            tb = vE + 16
            ops.append(("waitl", ("ow", t, 1)))
            for m in range(4):
                ops.append(("ldsw", f"ds_read_b128 v[{tb+4*m}:{tb+4*m+3}], v{vOR} offset:{hf*4096 + m*1024}", ("or", t, m)))
            for m in range(4):
                ops.append(("waitl", ("or", t, m)))
                ops.append(("vm", f"buffer_store_dwordx4 v[{tb+4*m}:{tb+4*m+3}], v{vOG}, s[{SO}:{SO+3}], s{sStO+m} offen offset:{hf*128} {stflag}".rstrip()))
        return ops
    sStO = 92
    if store != "direct":
        for m in range(4): e(f"s_mov_b32 s{sStO+m}, {m*2048}")
    def emit_op(op):
        if op[0] in ("valu", "vm"): e(op[1])
        elif op[0] == "ldsw": e(op[1]); lds_ops.append(op[2])
        elif op[0] == "waitl": wait_for(op[1])
    for i in range(VD): vread(i)
    pend = []
    for i in range(64):
        t, ks = divmod(i, 16)
        if ks == 4 and t >= 1: pend += epi(t - 1)
        wait_for(("v", i))
        r = vVR + 4 * (i % 8)
        d = vO + 16 * t
        cin = "0" if ks == 0 else f"v[{d}:{d+15}]"
        e(f"v_mfma_f32_32x32x16_bf16 v[{d}:{d+15}], v[{r}:{r+3}], v[{vP+4*ks}:{vP+4*ks+3}], {cin}")
        if i + VD < 64: vread(i + VD)
        for _ in range(4):
            if pend: emit_op(pend.pop(0))
    while pend: emit_op(pend.pop(0))
    stamp()
    e("s_nop 11")
    for op in epi(3): emit_op(op)
    stamp()
    if stamps:
        e("s_waitcnt vmcnt(0)")
        stamp(); stamp(True)
        e("s_waitcnt lgkmcnt(0)")
        n = nst[0]
        if dbg:
            e("v_mov_b32 v1, 0")
            e(f"s_not_b32 s{sTmp}, s{sStamp}")
            e("s_mov_b64 exec, 1")
            e(f"v_mov_b32 v2, s{sTmp}")
            e(f"v_mov_b32 v3, s{sStamp+2*(n-1)}")
            e("global_atomic_umax v1, v2, s[12:13] offset:0")
            e("global_atomic_umax v1, v3, s[12:13] offset:4")
            e("s_cmp_lg_u32 s2, 100")
            e("s_cbranch_scc1 L_end")
            e(f"s_cmp_lg_u32 s{sW}, {dbgwave}")
            e("s_cbranch_scc1 L_end")
            e(f"s_sub_u32 s{sTmp}, s{sStamp+2*(n-1)}, s{sStamp}")
            e(f"v_mov_b32 v2, s{sTmp}")
            e(f"global_store_dword v1, v2, s[12:13] offset:8")
            for j in range(2, n-1):
                e(f"s_sub_u32 s{sTmp}, s{sStamp+2*j}, s{sStamp+2}")
                e(f"v_mov_b32 v2, s{sTmp}")
                e(f"global_store_dword v1, v2, s[12:13] offset:{4*(j+1)}")
            e("s_endpgm")
        e(f"s_lshl_b32 s{sTmp}, s2, 3")
        e(f"s_add_u32 s{sTmp}, s{sTmp}, s{sW}")
        e(f"s_mul_i32 s{sTmp}, s{sTmp}, {n*8}")
        e(f"s_add_u32 s12, s12, s{sTmp}")
        e("s_addc_u32 s13, s13, 0")
        e("v_mov_b32 v1, 0")
        for j in range(n):
            e(f"v_mov_b32 v2, s{sStamp+2*j}")
            e(f"v_mov_b32 v3, s{sStamp+2*j+1}")
            e(f"global_store_dwordx2 v1, v[2:3], s[12:13] offset:{8*j}")
            e("s_nop 1")
        sys.stderr.write(f"nstamps={n}\n")
    e.label("L_end")
    e("s_endpgm")
    return HEADER + e.text() + FOOTER

if __name__ == "__main__":
    kw = {}
    out = sys.argv[1]
    for a in sys.argv[2:]:
        k, v = a.split("=", 1)
        if v in ("True", "False"): v = v == "True"
        elif v.isdigit(): v = int(v)
        kw[k] = v
    open(out, "w").write(gen(**kw))
```

```python
import sys, math, struct

def f32bits(x): return struct.unpack("<I", struct.pack("<f", x))[0]

class E:
    def __init__(self): self.l = []
    def __call__(self, s): self.l.append("    " + s)
    def label(self, s): self.l.append(s + ":")
    def c(self, s): self.l.append("    ; " + s)
    def text(self): return "\n".join(self.l) + "\n"

HEADER = """; GQA attention forward, B=8 Hq=32 Hkv=4 Sq=Sk=256 D=128, bf16 in/out.
; @launch grid=(256,1,1) block=(512,1,1) lds=163840
.amdgcn_target "amdgcn-amd-amdhsa--gfx950"
.text
.globl standalone__gqa_softmax__near_ridge_kernel
.p2align 8
.type standalone__gqa_softmax__near_ridge_kernel,@function
standalone__gqa_softmax__near_ridge_kernel:
"""
FOOTER = """
.section .rodata,"a"
.p2align 6
.amdhsa_kernel standalone__gqa_softmax__near_ridge_kernel
  .amdhsa_next_free_vgpr 256
  .amdhsa_next_free_sgpr 102
  .amdhsa_accum_offset 256
  .amdhsa_group_segment_fixed_size 0
  .amdhsa_kernarg_size 48
  .amdhsa_user_sgpr_count 2
  .amdhsa_user_sgpr_kernarg_segment_ptr 1
  .amdhsa_system_sgpr_workgroup_id_x 1
.end_amdhsa_kernel
"""

def gen(store="direct", stamps=False, stflag="", ldflagq="", ldflagkv="", prio=True, nkbar=4, pk=False, dbg=False, dbgwave=0):
    e = E()
    sW = 3
    SQ, SK, SV, SO = 16, 20, 24, 28
    sQoff, sQlds, sTmp, sTmp2, sC, sGrp, sOlds = 32, 33, 34, 35, 36, 37, 38
    sStamp = 40
    nst = [0]
    def stamp(real=False):
        if not stamps: return
        r = sStamp + 2 * nst[0]; nst[0] += 1
        e(f"{'s_memrealtime' if real else 's_memtime'} s[{r}:{r+1}]")
    vLane = 0
    vKA = 8
    vVA = 16
    vDK, vDV = 20, 21
    vDQ = 22
    vM0, vM1, vL0, vL1, vT0, vT1, vMC, vInv = 26, 27, 28, 29, 30, 31, 32, 33
    vOW, vOR, vOG = 34, 36, 38
    vQA = 40
    vKR = 64
    vQ = 96
    vP = 64
    vS = 128
    vO = 128
    vVR = 192
    vE = 224

    e("s_cmp_ge_u32 s2, 256")
    e("s_cbranch_scc1 L_end")
    stamp(True); stamp()
    e("s_load_dwordx4 s[4:7], s[0:1], 0")
    e("s_load_dwordx4 s[8:11], s[0:1], 16")
    if stamps: e(f"s_load_dwordx2 s[12:13], s[0:1], {32 if dbg else 40}")
    e("v_lshrrev_b32 v1, 6, v0")
    e("v_and_b32 v0, 63, v0")
    e(f"v_readfirstlane_b32 s{sW}, v1")
    e("s_and_b32 s14, s2, 7")
    e("s_lshr_b32 s15, s2, 3")
    e(f"s_lshr_b32 s{sTmp}, s15, 3")
    e("s_lshl_b32 s14, s14, 2")
    e(f"s_add_u32 s14, s14, s{sTmp}")
    e("s_and_b32 s15, s15, 7")
    e(f"s_lshl_b32 s{sTmp}, s14, 3")
    e(f"s_add_u32 s15, s15, s{sTmp}")
    e("s_lshl_b32 s14, s14, 16")
    e("s_lshl_b32 s15, s15, 16")
    e("v_lshrrev_b32 v2, 4, v0")
    e("v_and_b32 v3, 15, v0")
    e("v_xor_b32 v4, v2, v3")
    e("v_lshlrev_b32 v4, 4, v4")
    e(f"v_lshl_add_u32 v{vDQ}, v2, 8, v4")
    for m in range(1, 4):
        e(f"v_xor_b32 v{vDQ+m}, {m*64}, v{vDQ}")
    e(f"s_and_b32 s{sTmp}, s{sW}, 3")
    e(f"s_lshl_b32 s{sTmp}, s{sTmp}, 6")
    e(f"s_lshl_b32 s{sTmp2}, s{sW}, 10")
    e(f"v_xor_b32 v{vDK}, s{sTmp}, v{vDQ}")
    e(f"v_add_u32 v{vDK}, s{sTmp2}, v{vDK}")
    e("v_lshlrev_b32 v4, 2, v2")
    e("v_xor_b32 v4, v4, v3")
    e("v_lshlrev_b32 v4, 4, v4")
    e(f"v_lshl_add_u32 v{vDV}, v2, 8, v4")
    e(f"s_lshl_b32 s{sQoff}, s{sW}, 13")
    e(f"s_cmp_ge_u32 s{sW}, 4")
    e(f"s_cselect_b32 s{sGrp}, 1, 0")
    e(f"s_cselect_b32 s{sTmp}, 1, 2")
    e(f"s_lshl_b32 s{sTmp}, s{sTmp}, 16")
    e(f"s_add_u32 s{sQlds}, s{sTmp}, s{sQoff}")
    e(f"s_sub_u32 s{sTmp}, s{sQoff}, 0x8000")
    e(f"s_cmp_ge_u32 s{sW}, 4")
    e(f"s_cselect_b32 s{sOlds}, s{sTmp}, s{sQlds}")
    e("s_waitcnt lgkmcnt(0)")
    stamp()
    for (srd, p, off) in ((SQ, 4, 15), (SK, 6, 14), (SV, 8, 14), (SO, 10, 15)):
        e(f"s_add_u32 s{srd}, s{p}, s{off}")
        e(f"s_addc_u32 s{srd+1}, s{p+1}, 0")
        e(f"s_mov_b32 s{srd+2}, 0x10000")
        e(f"s_mov_b32 s{srd+3}, 0x20000")

    def dma_tile(srd, vaddrs, sLds, sOff, flag):
        e(f"s_mov_b32 m0, s{sLds}")
        e(f"s_add_u32 s{sTmp2}, s{sOff}, 4096")
        for n in range(4):
            e(f"buffer_load_dwordx4 v{vaddrs[n]}, s[{srd}:{srd+3}], s{sOff} offen offset:{n*1024} lds {flag}".rstrip())
        e(f"s_add_u32 m0, s{sLds}, 4096")
        e("s_nop 0")
        for n in range(4):
            e(f"buffer_load_dwordx4 v{vaddrs[n]}, s[{srd}:{srd+3}], s{sTmp2} offen offset:{n*1024} lds {flag}".rstrip())
    def dma_q(): dma_tile(SQ, [vDQ, vDQ+1, vDQ+2, vDQ+3], sQlds, sQoff, ldflagq)
    def dma_k():
        e(f"s_lshl_b32 s{sTmp}, s{sW}, 10")
        for t in range(8):
            e(f"s_add_u32 m0, s{sTmp}, {t*8192}")
            e(f"s_mov_b32 s{sTmp2}, {t*8192}")
            e(f"buffer_load_dwordx4 v{vDK}, s[{SK}:{SK+3}], s{sTmp2} offen lds {ldflagkv}".rstrip())
    def dma_v():
        e(f"s_add_u32 s{sTmp}, s{sQoff}, 0x10000")
        dma_tile(SV, [vDV]*4, sTmp, sQoff, ldflagkv)
    def addr_setup():
        e("v_and_b32 v2, 31, v0")
        e("v_lshrrev_b32 v3, 5, v0")
        e("v_and_b32 v4, 15, v0")
        e("v_xor_b32 v4, v4, v3")
        e("v_lshlrev_b32 v4, 4, v4")
        e(f"v_lshl_add_u32 v{vKA}, v2, 8, v4")
        for s in range(1, 8):
            e(f"v_xor_b32 v{vKA+s}, {s*32}, v{vKA}")
        for s in range(8):
            e(f"v_add_u32 v{vQA+s}, s{sQlds}, v{vKA+s}")
        e("v_bfe_u32 v4, v0, 2, 2")
        e("v_lshl_add_u32 v5, v3, 2, v4")
        e("v_lshlrev_b32 v5, 8, v5")
        e("v_lshl_add_u32 v5, v4, 6, v5")
        e("v_bfe_u32 v6, v0, 4, 1")
        e("v_lshl_add_u32 v5, v6, 5, v5")
        e("v_and_b32 v6, 1, v0")
        e("v_lshl_add_u32 v5, v6, 4, v5")
        e("v_bfe_u32 v6, v0, 1, 1")
        e("v_lshl_add_u32 v5, v6, 3, v5")
        e(f"v_add_u32 v{vVA}, 0x10000, v5")
        for t in range(1, 4):
            e(f"v_xor_b32 v{vVA+t}, {t*64}, v{vVA}")
        if store == "direct":
            e("v_lshlrev_b32 v5, 8, v2")
            e("v_lshl_add_u32 v5, v3, 4, v5")
            e(f"v_add_u32 v{vOG}, s{sQoff}, v5")
        else:
            e("v_and_b32 v4, 7, v0")
            e("v_xor_b32 v4, v4, v3")
            e("v_lshlrev_b32 v4, 4, v4")
            e("v_lshl_add_u32 v4, v2, 7, v4")
            e(f"v_add_u32 v{vOW}, s{sOlds}, v4")
            e("v_lshrrev_b32 v4, 3, v0")
            e("v_and_b32 v5, 7, v0")
            e("v_xor_b32 v6, v4, v5")
            e("v_lshlrev_b32 v6, 4, v6")
            e("v_lshl_add_u32 v6, v4, 7, v6")
            e(f"v_add_u32 v{vOR}, s{sOlds}, v6")
            e("v_lshlrev_b32 v5, 4, v5")
            e("v_lshl_add_u32 v5, v4, 8, v5")
            e(f"v_add_u32 v{vOG}, s{sQoff}, v5")
        e(f"s_mov_b32 s{sC}, {hex(f32bits(math.log2(math.e) / math.sqrt(128.0)))}")
    def read_q():
        for s in range(8):
            e(f"ds_read_b128 v[{vQ+4*s}:{vQ+4*s+3}], v{vQA+s}")

    tiles_per_bar = 8 // nkbar
    e(f"s_cmp_eq_u32 s{sGrp}, 1")
    e("s_cbranch_scc1 L_proB")
    dma_q(); stamp(); dma_k(); stamp(); dma_v()
    stamp()
    addr_setup()
    e(f"s_waitcnt vmcnt({16 - tiles_per_bar})")
    e("s_barrier")
    stamp()
    read_q()
    e("s_branch L_qk")
    e.label("L_proB")
    if stamps: nst[0] -= 4
    dma_k(); stamp(); dma_q(); stamp()
    stamp()
    addr_setup()
    for b in range(nkbar):
        e(f"s_waitcnt vmcnt({16 - tiles_per_bar*(b+1)})")
        e("s_barrier")
    e("s_waitcnt vmcnt(0)")
    stamp()
    read_q()
    e("s_waitcnt lgkmcnt(0)")
    dma_v()
    e.label("L_qk")
    if prio: e("s_setprio 1")
    DEPTH = 6
    nfr = 64
    def kread(i):
        t, s = divmod(i, 8)
        if s == 0 and t > 0 and t % tiles_per_bar == 0:
            b = t // tiles_per_bar
            e(f"s_cmp_eq_u32 s{sGrp}, 1")
            e(f"s_cbranch_scc1 L_nb{b}")
            e(f"s_waitcnt vmcnt({16 - tiles_per_bar*(b+1)})")
            e("s_barrier")
            e.label(f"L_nb{b}")
        r = vKR + 4 * (i % 8)
        e(f"ds_read_b128 v[{r}:{r+3}], v{vKA+s} offset:{t*8192}")
    for i in range(DEPTH): kread(i)
    maxops = []
    def tile_max(t):
        ops = []
        b = vS + 16 * t
        if t == 0:
            ops.append(f"v_max3_f32 v{vM0}, v{b}, v{b+1}, v{b+2}")
            ops.append(f"v_max3_f32 v{vM1}, v{b+3}, v{b+4}, v{b+5}")
            rest = list(range(6, 16))
        else:
            rest = list(range(0, 16))
        for j in range(0, len(rest), 2):
            m = vM0 if (j // 2) % 2 == 0 else vM1
            ops.append(f"v_max3_f32 v{m}, v{m}, v{b+rest[j]}, v{b+rest[j+1]}")
        return ops
    pend = []
    for i in range(nfr):
        t, s = divmod(i, 8)
        if s == 4 and t >= 1: pend += tile_max(t - 1)
        out = min(i + DEPTH - 1, nfr - 1) - i
        e(f"s_waitcnt lgkmcnt({out})")
        r = vKR + 4 * (i % 8)
        d = vS + 16 * t
        cin = "0" if s == 0 else f"v[{d}:{d+15}]"
        e(f"v_mfma_f32_32x32x16_bf16 v[{d}:{d+15}], v[{r}:{r+3}], v[{vQ+4*s}:{vQ+4*s+3}], {cin}")
        if i + DEPTH < nfr: kread(i + DEPTH)
        n = 1 if i < nfr - 4 else 2
        for _ in range(n):
            if pend: e(pend.pop(0))
    stamp()
    e(f"s_cmp_eq_u32 s{sGrp}, 0")
    e("s_cbranch_scc1 L_nbxB")
    e("s_waitcnt vmcnt(0)")
    e("s_barrier")
    e.label("L_nbxB")
    if prio: e("s_setprio 0")
    assert not pend
    e("s_nop 9")
    for op in tile_max(7): e(op)
    e(f"v_max_f32 v{vM0}, v{vM0}, v{vM1}")
    e(f"v_mov_b32 v{vM1}, v{vM0}")
    e("s_nop 1")
    e(f"v_permlane32_swap_b32 v{vM0}, v{vM1}")
    e(f"v_max_f32 v{vM0}, v{vM0}, v{vM1}")
    e(f"v_mul_f32 v{vMC}, s{sC}, v{vM0}")
    npair = 64
    def fma(i):
        a = vS + 2 * i
        if pk:
            return [f"v_pk_fma_f32 v[{a}:{a+1}], v[{a}:{a+1}], s[{sCC}:{sCC+1}], v[{vMC}:{vMC+1}] neg_lo:[0,0,1] neg_hi:[0,0,1]"]
        return [f"v_fma_f32 v{a}, v{a}, s{sC}, -v{vMC}", f"v_fma_f32 v{a+1}, v{a+1}, s{sC}, -v{vMC}"]
    sCC = 38 + 0
    if pk:
        sCC = 90
        e(f"s_mov_b32 s{sCC}, s{sC}")
        e(f"s_mov_b32 s{sCC+1}, s{sC}")
        e(f"v_mov_b32 v{vMC+1}, v{vMC}")
    for op in fma(0): e(op)
    for op in fma(1): e(op)
    e(f"v_exp_f32 v{vS}, v{vS}")
    e(f"v_exp_f32 v{vS+1}, v{vS+1}")
    for i in range(npair):
        a = vS + 2 * i
        if i + 2 < npair:
            for op in fma(i + 2): e(op)
        if i + 1 < npair: e(f"v_exp_f32 v{a+2}, v{a+2}")
        if pk:
            if i + 1 < npair: e(f"v_exp_f32 v{a+3}, v{a+3}")
            if i == 0: e(f"v_pk_add_f32 v[{vL0}:{vL0+1}], v[{a}:{a+1}], 0")
            else: e(f"v_pk_add_f32 v[{vL0}:{vL0+1}], v[{vL0}:{vL0+1}], v[{a}:{a+1}]")
        else:
            if i == 0: e(f"v_mov_b32 v{vL0}, v{a}")
            else: e(f"v_add_f32 v{vL0}, v{vL0}, v{a}")
            if i + 1 < npair: e(f"v_exp_f32 v{a+3}, v{a+3}")
            if i == 0: e(f"v_mov_b32 v{vL1}, v{a+1}")
            else: e(f"v_add_f32 v{vL1}, v{vL1}, v{a+1}")
        e(f"v_cvt_pk_bf16_f32 v{vP+i}, v{a}, v{a+1}")
    e(f"v_add_f32 v{vL0}, v{vL0}, v{vL1}")
    e(f"v_mov_b32 v{vL1}, v{vL0}")
    e("s_nop 1")
    e(f"v_permlane32_swap_b32 v{vL0}, v{vL1}")
    e(f"v_add_f32 v{vL0}, v{vL0}, v{vL1}")
    e(f"v_rcp_f32 v{vInv}, v{vL0}")
    stamp()
    e(f"s_cmp_eq_u32 s{sGrp}, 1")
    e("s_cbranch_scc1 L_nbxA")
    e("s_waitcnt vmcnt(0)")
    e("s_barrier")
    e.label("L_nbxA")
    if prio: e("s_setprio 1")
    stamp()
    VD = 5
    lds_ops = []
    def vread(i):
        t, ks = divmod(i, 16)
        r = vVR + 4 * (i % 8)
        e(f"ds_read_b64_tr_b16 v[{r}:{r+1}], v{vVA+t} offset:{ks*4096}")
        e(f"ds_read_b64_tr_b16 v[{r+2}:{r+3}], v{vVA+t} offset:{ks*4096+2048}")
        lds_ops.append(("v", i)); lds_ops.append(("v", i))
    def wait_for(tag):
        last = max(j for j, x in enumerate(lds_ops) if x == tag)
        n = len(lds_ops) - 1 - last
        assert n <= 15, n
        e(f"s_waitcnt lgkmcnt({n})")
    def epi(t):
        ops = []
        b = vO + 16 * t
        pkd = vE + 8 * (t % 2)
        for n in range(2):
            for j in range(8):
                ops.append(("valu", f"v_mul_f32 v{b+8*n+j}, v{vInv}, v{b+8*n+j}"))
            for j in range(4):
                ops.append(("valu", f"v_cvt_pk_bf16_f32 v{pkd+4*n+j}, v{b+8*n+2*j}, v{b+8*n+2*j+1}"))
            if store == "direct":
                ops.append(("vm", f"buffer_store_dwordx4 v[{pkd+4*n}:{pkd+4*n+3}], v{vOG}, s[{SO}:{SO+3}], 0 offen offset:{64*t+32*n} {stflag}".rstrip()))
            else:
                x = (4 * (t % 2) + 2 * n) * 16
                ops.append(("valu", f"v_xor_b32 v{vOW+1}, {x}, v{vOW}"))
                ops.append(("ldsw", f"ds_write_b128 v{vOW+1}, v[{pkd+4*n}:{pkd+4*n+3}] offset:{(t//2)*4096}", ("ow", t, n)))
        if store != "direct" and t % 2 == 1:
            hf = t // 2
            tb = vE + 16
            ops.append(("waitl", ("ow", t, 1)))
            for m in range(4):
                ops.append(("ldsw", f"ds_read_b128 v[{tb+4*m}:{tb+4*m+3}], v{vOR} offset:{hf*4096 + m*1024}", ("or", t, m)))
            for m in range(4):
                ops.append(("waitl", ("or", t, m)))
                ops.append(("vm", f"buffer_store_dwordx4 v[{tb+4*m}:{tb+4*m+3}], v{vOG}, s[{SO}:{SO+3}], s{sStO+m} offen offset:{hf*128} {stflag}".rstrip()))
        return ops
    sStO = 92
    if store != "direct":
        for m in range(4): e(f"s_mov_b32 s{sStO+m}, {m*2048}")
    def emit_op(op):
        if op[0] in ("valu", "vm"): e(op[1])
        elif op[0] == "ldsw": e(op[1]); lds_ops.append(op[2])
        elif op[0] == "waitl": wait_for(op[1])
    for i in range(VD): vread(i)
    pend = []
    for i in range(64):
        t, ks = divmod(i, 16)
        if ks == 4 and t >= 1: pend += epi(t - 1)
        wait_for(("v", i))
        r = vVR + 4 * (i % 8)
        d = vO + 16 * t
        cin = "0" if ks == 0 else f"v[{d}:{d+15}]"
        e(f"v_mfma_f32_32x32x16_bf16 v[{d}:{d+15}], v[{r}:{r+3}], v[{vP+4*ks}:{vP+4*ks+3}], {cin}")
        if i + VD < 64: vread(i + VD)
        for _ in range(4):
            if pend: emit_op(pend.pop(0))
    while pend: emit_op(pend.pop(0))
    stamp()
    e("s_nop 11")
    for op in epi(3): emit_op(op)
    stamp()
    if stamps:
        e("s_waitcnt vmcnt(0)")
        stamp(); stamp(True)
        e("s_waitcnt lgkmcnt(0)")
        n = nst[0]
        if dbg:
            e("v_mov_b32 v1, 0")
            e("s_mov_b64 exec, 1")
            for slot, wg in enumerate((0, 255, 129)):
                e(f"s_cmp_lg_u32 s2, {wg}")
                e(f"s_cbranch_scc1 L_d{slot}")
                e(f"s_cmp_lg_u32 s{sW}, 0")
                e(f"s_cbranch_scc1 L_d{slot}b")
                e(f"v_mov_b32 v2, s{sStamp}")
                e(f"global_store_dword v1, v2, s[12:13] offset:{8*slot}")
                e.label(f"L_d{slot}b")
                e(f"s_cmp_lg_u32 s{sW}, 7")
                e(f"s_cbranch_scc1 L_d{slot}")
                e(f"v_mov_b32 v2, s{sStamp+2*(n-1)}")
                e(f"global_store_dword v1, v2, s[12:13] offset:{8*slot+4}")
                e.label(f"L_d{slot}")
            e("s_cmp_lg_u32 s2, 100")
            e("s_cbranch_scc1 L_end")
            e(f"s_cmp_lg_u32 s{sW}, {dbgwave}")
            e("s_cbranch_scc1 L_end")
            e(f"s_sub_u32 s{sTmp}, s{sStamp+2*(n-1)}, s{sStamp}")
            e(f"v_mov_b32 v2, s{sTmp}")
            e(f"global_store_dword v1, v2, s[12:13] offset:24")
            for jj, j in enumerate((2, 3, 4, 6, 7, 8, 10, 11, 12)):
                e(f"s_sub_u32 s{sTmp}, s{sStamp+2*j}, s{sStamp+2}")
                e(f"v_mov_b32 v2, s{sTmp}")
                e(f"global_store_dword v1, v2, s[12:13] offset:{28+4*jj}")
            e("s_endpgm")
        e(f"s_lshl_b32 s{sTmp}, s2, 3")
        e(f"s_add_u32 s{sTmp}, s{sTmp}, s{sW}")
        e(f"s_mul_i32 s{sTmp}, s{sTmp}, {n*8}")
        e(f"s_add_u32 s12, s12, s{sTmp}")
        e("s_addc_u32 s13, s13, 0")
        e("v_mov_b32 v1, 0")
        for j in range(n):
            e(f"v_mov_b32 v2, s{sStamp+2*j}")
            e(f"v_mov_b32 v3, s{sStamp+2*j+1}")
            e(f"global_store_dwordx2 v1, v[2:3], s[12:13] offset:{8*j}")
            e("s_nop 1")
        sys.stderr.write(f"nstamps={n}\n")
    e.label("L_end")
    e("s_endpgm")
    return HEADER + e.text() + FOOTER

if __name__ == "__main__":
    kw = {}
    out = sys.argv[1]
    for a in sys.argv[2:]:
        k, v = a.split("=", 1)
        if v in ("True", "False"): v = v == "True"
        elif v.isdigit(): v = int(v)
        kw[k] = v
    open(out, "w").write(gen(**kw))
```

```python
import sys, math, struct

def f32bits(x): return struct.unpack("<I", struct.pack("<f", x))[0]

class E:
    def __init__(self): self.l = []
    def __call__(self, s): self.l.append("    " + s)
    def label(self, s): self.l.append(s + ":")
    def c(self, s): self.l.append("    ; " + s)
    def text(self): return "\n".join(self.l) + "\n"

HEADER = """; GQA attention forward, B=8 Hq=32 Hkv=4 Sq=Sk=256 D=128, bf16 in/out.
; @launch grid=(256,1,1) block=(512,1,1) lds=163840
.amdgcn_target "amdgcn-amd-amdhsa--gfx950"
.text
.globl standalone__gqa_softmax__near_ridge_kernel
.p2align 8
.type standalone__gqa_softmax__near_ridge_kernel,@function
standalone__gqa_softmax__near_ridge_kernel:
"""
FOOTER = """
.section .rodata,"a"
.p2align 6
.amdhsa_kernel standalone__gqa_softmax__near_ridge_kernel
  .amdhsa_next_free_vgpr 256
  .amdhsa_next_free_sgpr 102
  .amdhsa_accum_offset 256
  .amdhsa_group_segment_fixed_size 0
  .amdhsa_kernarg_size 48
  .amdhsa_user_sgpr_count 2
  .amdhsa_user_sgpr_kernarg_segment_ptr 1
  .amdhsa_system_sgpr_workgroup_id_x 1
.end_amdhsa_kernel
"""

def gen(store="direct", stamps=False, stflag="", ldflagq="", ldflagkv="", prio=True, nkbar=4, pk=False, dbg=False, dbgwave=0, spin=0):
    e = E()
    sW = 3
    SQ, SK, SV, SO = 16, 20, 24, 28
    sQoff, sQlds, sTmp, sTmp2, sC, sGrp, sOlds = 32, 33, 34, 35, 36, 37, 38
    sStamp = 40
    nst = [0]
    def stamp(real=False):
        if not stamps: return
        r = sStamp + 2 * nst[0]; nst[0] += 1
        e(f"{'s_memrealtime' if real else 's_memtime'} s[{r}:{r+1}]")
    vLane = 0
    vKA = 8
    vVA = 16
    vDK, vDV = 20, 21
    vDQ = 22
    vM0, vM1, vL0, vL1, vT0, vT1, vMC, vInv = 26, 27, 28, 29, 30, 31, 32, 33
    vOW, vOR, vOG = 34, 36, 38
    vQA = 40
    vKR = 64
    vQ = 96
    vP = 64
    vS = 128
    vO = 128
    vVR = 192
    vE = 224

    e("s_cmp_ge_u32 s2, 256")
    e("s_cbranch_scc1 L_end")
    stamp(True); stamp()
    if spin: e("s_memrealtime s[96:97]")
    e("s_load_dwordx4 s[4:7], s[0:1], 0")
    e("s_load_dwordx4 s[8:11], s[0:1], 16")
    if stamps: e(f"s_load_dwordx2 s[12:13], s[0:1], {32 if dbg else 40}")
    e("v_lshrrev_b32 v1, 6, v0")
    e("v_and_b32 v0, 63, v0")
    e(f"v_readfirstlane_b32 s{sW}, v1")
    e("s_and_b32 s14, s2, 7")
    e("s_lshr_b32 s15, s2, 3")
    e(f"s_lshr_b32 s{sTmp}, s15, 3")
    e("s_lshl_b32 s14, s14, 2")
    e(f"s_add_u32 s14, s14, s{sTmp}")
    e("s_and_b32 s15, s15, 7")
    e(f"s_lshl_b32 s{sTmp}, s14, 3")
    e(f"s_add_u32 s15, s15, s{sTmp}")
    e("s_lshl_b32 s14, s14, 16")
    e("s_lshl_b32 s15, s15, 16")
    e("v_lshrrev_b32 v2, 4, v0")
    e("v_and_b32 v3, 15, v0")
    e("v_xor_b32 v4, v2, v3")
    e("v_lshlrev_b32 v4, 4, v4")
    e(f"v_lshl_add_u32 v{vDQ}, v2, 8, v4")
    for m in range(1, 4):
        e(f"v_xor_b32 v{vDQ+m}, {m*64}, v{vDQ}")
    e(f"s_and_b32 s{sTmp}, s{sW}, 3")
    e(f"s_lshl_b32 s{sTmp}, s{sTmp}, 6")
    e(f"s_lshl_b32 s{sTmp2}, s{sW}, 10")
    e(f"v_xor_b32 v{vDK}, s{sTmp}, v{vDQ}")
    e(f"v_add_u32 v{vDK}, s{sTmp2}, v{vDK}")
    e("v_lshlrev_b32 v4, 2, v2")
    e("v_xor_b32 v4, v4, v3")
    e("v_lshlrev_b32 v4, 4, v4")
    e(f"v_lshl_add_u32 v{vDV}, v2, 8, v4")
    e(f"s_lshl_b32 s{sQoff}, s{sW}, 13")
    e(f"s_cmp_ge_u32 s{sW}, 4")
    e(f"s_cselect_b32 s{sGrp}, 1, 0")
    e(f"s_cselect_b32 s{sTmp}, 1, 2")
    e(f"s_lshl_b32 s{sTmp}, s{sTmp}, 16")
    e(f"s_add_u32 s{sQlds}, s{sTmp}, s{sQoff}")
    e(f"s_sub_u32 s{sTmp}, s{sQoff}, 0x8000")
    e(f"s_cmp_ge_u32 s{sW}, 4")
    e(f"s_cselect_b32 s{sOlds}, s{sTmp}, s{sQlds}")
    e("s_waitcnt lgkmcnt(0)")
    stamp()
    for (srd, p, off) in ((SQ, 4, 15), (SK, 6, 14), (SV, 8, 14), (SO, 10, 15)):
        e(f"s_add_u32 s{srd}, s{p}, s{off}")
        e(f"s_addc_u32 s{srd+1}, s{p+1}, 0")
        e(f"s_mov_b32 s{srd+2}, 0x10000")
        e(f"s_mov_b32 s{srd+3}, 0x20000")

    def dma_tile(srd, vaddrs, sLds, sOff, flag):
        e(f"s_mov_b32 m0, s{sLds}")
        e(f"s_add_u32 s{sTmp2}, s{sOff}, 4096")
        for n in range(4):
            e(f"buffer_load_dwordx4 v{vaddrs[n]}, s[{srd}:{srd+3}], s{sOff} offen offset:{n*1024} lds {flag}".rstrip())
        e(f"s_add_u32 m0, s{sLds}, 4096")
        e("s_nop 0")
        for n in range(4):
            e(f"buffer_load_dwordx4 v{vaddrs[n]}, s[{srd}:{srd+3}], s{sTmp2} offen offset:{n*1024} lds {flag}".rstrip())
    def dma_q(): dma_tile(SQ, [vDQ, vDQ+1, vDQ+2, vDQ+3], sQlds, sQoff, ldflagq)
    def dma_k():
        e(f"s_lshl_b32 s{sTmp}, s{sW}, 10")
        for t in range(8):
            e(f"s_add_u32 m0, s{sTmp}, {t*8192}")
            e(f"s_mov_b32 s{sTmp2}, {t*8192}")
            e(f"buffer_load_dwordx4 v{vDK}, s[{SK}:{SK+3}], s{sTmp2} offen lds {ldflagkv}".rstrip())
    def dma_v():
        e(f"s_add_u32 s{sTmp}, s{sQoff}, 0x10000")
        dma_tile(SV, [vDV]*4, sTmp, sQoff, ldflagkv)
    def addr_setup():
        e("v_and_b32 v2, 31, v0")
        e("v_lshrrev_b32 v3, 5, v0")
        e("v_and_b32 v4, 15, v0")
        e("v_xor_b32 v4, v4, v3")
        e("v_lshlrev_b32 v4, 4, v4")
        e(f"v_lshl_add_u32 v{vKA}, v2, 8, v4")
        for s in range(1, 8):
            e(f"v_xor_b32 v{vKA+s}, {s*32}, v{vKA}")
        for s in range(8):
            e(f"v_add_u32 v{vQA+s}, s{sQlds}, v{vKA+s}")
        e("v_bfe_u32 v4, v0, 2, 2")
        e("v_lshl_add_u32 v5, v3, 2, v4")
        e("v_lshlrev_b32 v5, 8, v5")
        e("v_lshl_add_u32 v5, v4, 6, v5")
        e("v_bfe_u32 v6, v0, 4, 1")
        e("v_lshl_add_u32 v5, v6, 5, v5")
        e("v_and_b32 v6, 1, v0")
        e("v_lshl_add_u32 v5, v6, 4, v5")
        e("v_bfe_u32 v6, v0, 1, 1")
        e("v_lshl_add_u32 v5, v6, 3, v5")
        e(f"v_add_u32 v{vVA}, 0x10000, v5")
        for t in range(1, 4):
            e(f"v_xor_b32 v{vVA+t}, {t*64}, v{vVA}")
        if store == "direct":
            e("v_lshlrev_b32 v5, 8, v2")
            e("v_lshl_add_u32 v5, v3, 4, v5")
            e(f"v_add_u32 v{vOG}, s{sQoff}, v5")
        else:
            e("v_and_b32 v4, 7, v0")
            e("v_xor_b32 v4, v4, v3")
            e("v_lshlrev_b32 v4, 4, v4")
            e("v_lshl_add_u32 v4, v2, 7, v4")
            e(f"v_add_u32 v{vOW}, s{sOlds}, v4")
            e("v_lshrrev_b32 v4, 3, v0")
            e("v_and_b32 v5, 7, v0")
            e("v_xor_b32 v6, v4, v5")
            e("v_lshlrev_b32 v6, 4, v6")
            e("v_lshl_add_u32 v6, v4, 7, v6")
            e(f"v_add_u32 v{vOR}, s{sOlds}, v6")
            e("v_lshlrev_b32 v5, 4, v5")
            e("v_lshl_add_u32 v5, v4, 8, v5")
            e(f"v_add_u32 v{vOG}, s{sQoff}, v5")
        e(f"s_mov_b32 s{sC}, {hex(f32bits(math.log2(math.e) / math.sqrt(128.0)))}")
    def read_q():
        for s in range(8):
            e(f"ds_read_b128 v[{vQ+4*s}:{vQ+4*s+3}], v{vQA+s}")

    tiles_per_bar = 8 // nkbar
    e(f"s_cmp_eq_u32 s{sGrp}, 1")
    e("s_cbranch_scc1 L_proB")
    dma_q(); stamp(); dma_k(); stamp(); dma_v()
    stamp()
    addr_setup()
    e(f"s_waitcnt vmcnt({16 - tiles_per_bar})")
    e("s_barrier")
    stamp()
    read_q()
    e("s_branch L_qk")
    e.label("L_proB")
    if stamps: nst[0] -= 4
    dma_k(); stamp(); dma_q(); stamp()
    stamp()
    addr_setup()
    for b in range(nkbar):
        e(f"s_waitcnt vmcnt({16 - tiles_per_bar*(b+1)})")
        e("s_barrier")
    e("s_waitcnt vmcnt(0)")
    stamp()
    read_q()
    e("s_waitcnt lgkmcnt(0)")
    dma_v()
    e.label("L_qk")
    if prio: e("s_setprio 1")
    DEPTH = 6
    nfr = 64
    def kread(i):
        t, s = divmod(i, 8)
        if s == 0 and t > 0 and t % tiles_per_bar == 0:
            b = t // tiles_per_bar
            e(f"s_cmp_eq_u32 s{sGrp}, 1")
            e(f"s_cbranch_scc1 L_nb{b}")
            e(f"s_waitcnt vmcnt({16 - tiles_per_bar*(b+1)})")
            e("s_barrier")
            e.label(f"L_nb{b}")
        r = vKR + 4 * (i % 8)
        e(f"ds_read_b128 v[{r}:{r+3}], v{vKA+s} offset:{t*8192}")
    for i in range(DEPTH): kread(i)
    maxops = []
    def tile_max(t):
        ops = []
        b = vS + 16 * t
        if t == 0:
            ops.append(f"v_max3_f32 v{vM0}, v{b}, v{b+1}, v{b+2}")
            ops.append(f"v_max3_f32 v{vM1}, v{b+3}, v{b+4}, v{b+5}")
            rest = list(range(6, 16))
        else:
            rest = list(range(0, 16))
        for j in range(0, len(rest), 2):
            m = vM0 if (j // 2) % 2 == 0 else vM1
            ops.append(f"v_max3_f32 v{m}, v{m}, v{b+rest[j]}, v{b+rest[j+1]}")
        return ops
    pend = []
    for i in range(nfr):
        t, s = divmod(i, 8)
        if s == 4 and t >= 1: pend += tile_max(t - 1)
        out = min(i + DEPTH - 1, nfr - 1) - i
        e(f"s_waitcnt lgkmcnt({out})")
        r = vKR + 4 * (i % 8)
        d = vS + 16 * t
        cin = "0" if s == 0 else f"v[{d}:{d+15}]"
        e(f"v_mfma_f32_32x32x16_bf16 v[{d}:{d+15}], v[{r}:{r+3}], v[{vQ+4*s}:{vQ+4*s+3}], {cin}")
        if i + DEPTH < nfr: kread(i + DEPTH)
        n = 1 if i < nfr - 4 else 2
        for _ in range(n):
            if pend: e(pend.pop(0))
    stamp()
    e(f"s_cmp_eq_u32 s{sGrp}, 0")
    e("s_cbranch_scc1 L_nbxB")
    e("s_waitcnt vmcnt(0)")
    e("s_barrier")
    e.label("L_nbxB")
    if prio: e("s_setprio 0")
    assert not pend
    e("s_nop 9")
    for op in tile_max(7): e(op)
    e(f"v_max_f32 v{vM0}, v{vM0}, v{vM1}")
    e(f"v_mov_b32 v{vM1}, v{vM0}")
    e("s_nop 1")
    e(f"v_permlane32_swap_b32 v{vM0}, v{vM1}")
    e(f"v_max_f32 v{vM0}, v{vM0}, v{vM1}")
    e(f"v_mul_f32 v{vMC}, s{sC}, v{vM0}")
    npair = 64
    def fma(i):
        a = vS + 2 * i
        if pk:
            return [f"v_pk_fma_f32 v[{a}:{a+1}], v[{a}:{a+1}], s[{sCC}:{sCC+1}], v[{vMC}:{vMC+1}] neg_lo:[0,0,1] neg_hi:[0,0,1]"]
        return [f"v_fma_f32 v{a}, v{a}, s{sC}, -v{vMC}", f"v_fma_f32 v{a+1}, v{a+1}, s{sC}, -v{vMC}"]
    sCC = 38 + 0
    if pk:
        sCC = 90
        e(f"s_mov_b32 s{sCC}, s{sC}")
        e(f"s_mov_b32 s{sCC+1}, s{sC}")
        e(f"v_mov_b32 v{vMC+1}, v{vMC}")
    for op in fma(0): e(op)
    for op in fma(1): e(op)
    e(f"v_exp_f32 v{vS}, v{vS}")
    e(f"v_exp_f32 v{vS+1}, v{vS+1}")
    for i in range(npair):
        a = vS + 2 * i
        if i + 2 < npair:
            for op in fma(i + 2): e(op)
        if i + 1 < npair: e(f"v_exp_f32 v{a+2}, v{a+2}")
        if pk:
            if i + 1 < npair: e(f"v_exp_f32 v{a+3}, v{a+3}")
            if i == 0: e(f"v_pk_add_f32 v[{vL0}:{vL0+1}], v[{a}:{a+1}], 0")
            else: e(f"v_pk_add_f32 v[{vL0}:{vL0+1}], v[{vL0}:{vL0+1}], v[{a}:{a+1}]")
        else:
            if i == 0: e(f"v_mov_b32 v{vL0}, v{a}")
            else: e(f"v_add_f32 v{vL0}, v{vL0}, v{a}")
            if i + 1 < npair: e(f"v_exp_f32 v{a+3}, v{a+3}")
            if i == 0: e(f"v_mov_b32 v{vL1}, v{a+1}")
            else: e(f"v_add_f32 v{vL1}, v{vL1}, v{a+1}")
        e(f"v_cvt_pk_bf16_f32 v{vP+i}, v{a}, v{a+1}")
    e(f"v_add_f32 v{vL0}, v{vL0}, v{vL1}")
    e(f"v_mov_b32 v{vL1}, v{vL0}")
    e("s_nop 1")
    e(f"v_permlane32_swap_b32 v{vL0}, v{vL1}")
    e(f"v_add_f32 v{vL0}, v{vL0}, v{vL1}")
    e(f"v_rcp_f32 v{vInv}, v{vL0}")
    stamp()
    e(f"s_cmp_eq_u32 s{sGrp}, 1")
    e("s_cbranch_scc1 L_nbxA")
    e("s_waitcnt vmcnt(0)")
    e("s_barrier")
    e.label("L_nbxA")
    if prio: e("s_setprio 1")
    stamp()
    VD = 5
    lds_ops = []
    def vread(i):
        t, ks = divmod(i, 16)
        r = vVR + 4 * (i % 8)
        e(f"ds_read_b64_tr_b16 v[{r}:{r+1}], v{vVA+t} offset:{ks*4096}")
        e(f"ds_read_b64_tr_b16 v[{r+2}:{r+3}], v{vVA+t} offset:{ks*4096+2048}")
        lds_ops.append(("v", i)); lds_ops.append(("v", i))
    def wait_for(tag):
        last = max(j for j, x in enumerate(lds_ops) if x == tag)
        n = len(lds_ops) - 1 - last
        assert n <= 15, n
        e(f"s_waitcnt lgkmcnt({n})")
    def epi(t):
        ops = []
        b = vO + 16 * t
        pkd = vE + 8 * (t % 2)
        for n in range(2):
            for j in range(8):
                ops.append(("valu", f"v_mul_f32 v{b+8*n+j}, v{vInv}, v{b+8*n+j}"))
            for j in range(4):
                ops.append(("valu", f"v_cvt_pk_bf16_f32 v{pkd+4*n+j}, v{b+8*n+2*j}, v{b+8*n+2*j+1}"))
            if store == "direct":
                ops.append(("vm", f"buffer_store_dwordx4 v[{pkd+4*n}:{pkd+4*n+3}], v{vOG}, s[{SO}:{SO+3}], 0 offen offset:{64*t+32*n} {stflag}".rstrip()))
            else:
                x = (4 * (t % 2) + 2 * n) * 16
                ops.append(("valu", f"v_xor_b32 v{vOW+1}, {x}, v{vOW}"))
                ops.append(("ldsw", f"ds_write_b128 v{vOW+1}, v[{pkd+4*n}:{pkd+4*n+3}] offset:{(t//2)*4096}", ("ow", t, n)))
        if store != "direct" and t % 2 == 1:
            hf = t // 2
            tb = vE + 16
            ops.append(("waitl", ("ow", t, 1)))
            for m in range(4):
                ops.append(("ldsw", f"ds_read_b128 v[{tb+4*m}:{tb+4*m+3}], v{vOR} offset:{hf*4096 + m*1024}", ("or", t, m)))
            for m in range(4):
                ops.append(("waitl", ("or", t, m)))
                ops.append(("vm", f"buffer_store_dwordx4 v[{tb+4*m}:{tb+4*m+3}], v{vOG}, s[{SO}:{SO+3}], s{sStO+m} offen offset:{hf*128} {stflag}".rstrip()))
        return ops
    sStO = 92
    if store != "direct":
        for m in range(4): e(f"s_mov_b32 s{sStO+m}, {m*2048}")
    def emit_op(op):
        if op[0] in ("valu", "vm"): e(op[1])
        elif op[0] == "ldsw": e(op[1]); lds_ops.append(op[2])
        elif op[0] == "waitl": wait_for(op[1])
    for i in range(VD): vread(i)
    pend = []
    for i in range(64):
        t, ks = divmod(i, 16)
        if ks == 4 and t >= 1: pend += epi(t - 1)
        wait_for(("v", i))
        r = vVR + 4 * (i % 8)
        d = vO + 16 * t
        cin = "0" if ks == 0 else f"v[{d}:{d+15}]"
        e(f"v_mfma_f32_32x32x16_bf16 v[{d}:{d+15}], v[{r}:{r+3}], v[{vP+4*ks}:{vP+4*ks+3}], {cin}")
        if i + VD < 64: vread(i + VD)
        for _ in range(4):
            if pend: emit_op(pend.pop(0))
    while pend: emit_op(pend.pop(0))
    stamp()
    e("s_nop 11")
    for op in epi(3): emit_op(op)
    stamp()
    if stamps:
        e("s_waitcnt vmcnt(0)")
        stamp(); stamp(True)
        e("s_waitcnt lgkmcnt(0)")
        n = nst[0]
        if dbg:
            e("v_mov_b32 v1, 0")
            e("s_mov_b64 exec, 1")
            for slot, wg in enumerate((0, 255, 129)):
                e(f"s_cmp_lg_u32 s2, {wg}")
                e(f"s_cbranch_scc1 L_d{slot}")
                e(f"s_cmp_lg_u32 s{sW}, 0")
                e(f"s_cbranch_scc1 L_d{slot}b")
                e(f"v_mov_b32 v2, s{sStamp}")
                e(f"global_store_dword v1, v2, s[12:13] offset:{8*slot}")
                e.label(f"L_d{slot}b")
                e(f"s_cmp_lg_u32 s{sW}, 7")
                e(f"s_cbranch_scc1 L_d{slot}")
                e(f"v_mov_b32 v2, s{sStamp+2*(n-1)}")
                e(f"global_store_dword v1, v2, s[12:13] offset:{8*slot+4}")
                e.label(f"L_d{slot}")
            e("s_cmp_lg_u32 s2, 100")
            e("s_cbranch_scc1 L_end")
            e(f"s_cmp_lg_u32 s{sW}, {dbgwave}")
            e("s_cbranch_scc1 L_end")
            e(f"s_sub_u32 s{sTmp}, s{sStamp+2*(n-1)}, s{sStamp}")
            e(f"v_mov_b32 v2, s{sTmp}")
            e(f"global_store_dword v1, v2, s[12:13] offset:24")
            for jj, j in enumerate((2, 3, 4, 6, 7, 8, 10, 11, 12)):
                e(f"s_sub_u32 s{sTmp}, s{sStamp+2*j}, s{sStamp+2}")
                e(f"v_mov_b32 v2, s{sTmp}")
                e(f"global_store_dword v1, v2, s[12:13] offset:{28+4*jj}")
            e("s_endpgm")
        e(f"s_lshl_b32 s{sTmp}, s2, 3")
        e(f"s_add_u32 s{sTmp}, s{sTmp}, s{sW}")
        e(f"s_mul_i32 s{sTmp}, s{sTmp}, {n*8}")
        e(f"s_add_u32 s12, s12, s{sTmp}")
        e("s_addc_u32 s13, s13, 0")
        e("v_mov_b32 v1, 0")
        for j in range(n):
            e(f"v_mov_b32 v2, s{sStamp+2*j}")
            e(f"v_mov_b32 v3, s{sStamp+2*j+1}")
            e(f"global_store_dwordx2 v1, v[2:3], s[12:13] offset:{8*j}")
            e("s_nop 1")
        sys.stderr.write(f"nstamps={n}\n")
    if spin:
        e("s_waitcnt vmcnt(0) lgkmcnt(0)")
        e.label("L_spin")
        e("s_sleep 4")
        e("s_memrealtime s[98:99]")
        e("s_waitcnt lgkmcnt(0)")
        e("s_sub_u32 s98, s98, s96")
        e(f"s_cmp_lt_u32 s98, {spin}")
        e("s_cbranch_scc1 L_spin")
    e.label("L_end")
    e("s_endpgm")
    return HEADER + e.text() + FOOTER

if __name__ == "__main__":
    kw = {}
    out = sys.argv[1]
    for a in sys.argv[2:]:
        k, v = a.split("=", 1)
        if v in ("True", "False"): v = v == "True"
        elif v.isdigit(): v = int(v)
        kw[k] = v
    open(out, "w").write(gen(**kw))
```

```python
import sys, math, struct

def f32bits(x): return struct.unpack("<I", struct.pack("<f", x))[0]

class E:
    def __init__(self): self.l = []
    def __call__(self, s): self.l.append("    " + s)
    def label(self, s): self.l.append(s + ":")
    def c(self, s): self.l.append("    ; " + s)
    def text(self): return "\n".join(self.l) + "\n"

HEADER = """; GQA attention forward, B=8 Hq=32 Hkv=4 Sq=Sk=256 D=128, bf16 in/out.
; @launch grid=(256,1,1) block=(512,1,1) lds=163840
.amdgcn_target "amdgcn-amd-amdhsa--gfx950"
.text
.globl standalone__gqa_softmax__near_ridge_kernel
.p2align 8
.type standalone__gqa_softmax__near_ridge_kernel,@function
standalone__gqa_softmax__near_ridge_kernel:
"""
FOOTER = """
.section .rodata,"a"
.p2align 6
.amdhsa_kernel standalone__gqa_softmax__near_ridge_kernel
  .amdhsa_next_free_vgpr 256
  .amdhsa_next_free_sgpr 102
  .amdhsa_accum_offset 256
  .amdhsa_group_segment_fixed_size 0
  .amdhsa_kernarg_size 48
  .amdhsa_user_sgpr_count 2
  .amdhsa_user_sgpr_kernarg_segment_ptr 1
  .amdhsa_system_sgpr_workgroup_id_x 1
.end_amdhsa_kernel
"""

def gen(store="direct", stamps=False, stflag="", ldflagq="", ldflagkv="", prio=True, nkbar=4, pk=False, dbg=False, dbgwave=0, spin=0):
    e = E()
    sW = 3
    SQ, SK, SV, SO = 16, 20, 24, 28
    sQoff, sQlds, sTmp, sTmp2, sC, sGrp, sOlds = 32, 33, 34, 35, 36, 37, 38
    sStamp = 40
    nst = [0]
    def stamp(real=False):
        if not stamps: return
        r = sStamp + 2 * nst[0]; nst[0] += 1
        e(f"{'s_memrealtime' if real else 's_memtime'} s[{r}:{r+1}]")
    vLane = 0
    vKA = 8
    vVA = 16
    vDK, vDV = 20, 21
    vDQ = 22
    vM0, vM1, vL0, vL1, vT0, vT1, vMC, vInv = 26, 27, 28, 29, 30, 31, 32, 33
    vOW, vOR, vOG = 34, 36, 38
    vQA = 40
    vKR = 64
    vQ = 96
    vP = 64
    vS = 128
    vO = 128
    vVR = 192
    vE = 224

    e("s_cmp_ge_u32 s2, 256")
    e("s_cbranch_scc1 L_end")
    stamp(True); stamp()
    if spin: e("s_memrealtime s[96:97]")
    e("s_load_dwordx4 s[4:7], s[0:1], 0")
    e("s_load_dwordx4 s[8:11], s[0:1], 16")
    if stamps: e(f"s_load_dwordx2 s[12:13], s[0:1], {32 if dbg else 40}")
    e("v_lshrrev_b32 v1, 6, v0")
    e("v_and_b32 v0, 63, v0")
    e(f"v_readfirstlane_b32 s{sW}, v1")
    e("s_and_b32 s14, s2, 7")
    e("s_lshr_b32 s15, s2, 3")
    e(f"s_lshr_b32 s{sTmp}, s15, 3")
    e("s_lshl_b32 s14, s14, 2")
    e(f"s_add_u32 s14, s14, s{sTmp}")
    e("s_and_b32 s15, s15, 7")
    e(f"s_lshl_b32 s{sTmp}, s14, 3")
    e(f"s_add_u32 s15, s15, s{sTmp}")
    e("s_lshl_b32 s14, s14, 16")
    e("s_lshl_b32 s15, s15, 16")
    e("v_lshrrev_b32 v2, 4, v0")
    e("v_and_b32 v3, 15, v0")
    e("v_xor_b32 v4, v2, v3")
    e("v_lshlrev_b32 v4, 4, v4")
    e(f"v_lshl_add_u32 v{vDQ}, v2, 8, v4")
    for m in range(1, 4):
        e(f"v_xor_b32 v{vDQ+m}, {m*64}, v{vDQ}")
    e(f"s_and_b32 s{sTmp}, s{sW}, 3")
    e(f"s_lshl_b32 s{sTmp}, s{sTmp}, 6")
    e(f"s_lshl_b32 s{sTmp2}, s{sW}, 10")
    e(f"v_xor_b32 v{vDK}, s{sTmp}, v{vDQ}")
    e(f"v_add_u32 v{vDK}, s{sTmp2}, v{vDK}")
    e("v_lshlrev_b32 v4, 2, v2")
    e("v_xor_b32 v4, v4, v3")
    e("v_lshlrev_b32 v4, 4, v4")
    e(f"v_lshl_add_u32 v{vDV}, v2, 8, v4")
    e(f"s_lshl_b32 s{sQoff}, s{sW}, 13")
    e(f"s_cmp_ge_u32 s{sW}, 4")
    e(f"s_cselect_b32 s{sGrp}, 1, 0")
    e(f"s_cselect_b32 s{sTmp}, 1, 2")
    e(f"s_lshl_b32 s{sTmp}, s{sTmp}, 16")
    e(f"s_add_u32 s{sQlds}, s{sTmp}, s{sQoff}")
    e(f"s_sub_u32 s{sTmp}, s{sQoff}, 0x8000")
    e(f"s_cmp_ge_u32 s{sW}, 4")
    e(f"s_cselect_b32 s{sOlds}, s{sTmp}, s{sQlds}")
    e("s_waitcnt lgkmcnt(0)")
    stamp()
    for (srd, p, off) in ((SQ, 4, 15), (SK, 6, 14), (SV, 8, 14), (SO, 10, 15)):
        e(f"s_add_u32 s{srd}, s{p}, s{off}")
        e(f"s_addc_u32 s{srd+1}, s{p+1}, 0")
        e(f"s_mov_b32 s{srd+2}, 0x10000")
        e(f"s_mov_b32 s{srd+3}, 0x20000")

    def dma_tile(srd, vaddrs, sLds, sOff, flag):
        e(f"s_mov_b32 m0, s{sLds}")
        e(f"s_add_u32 s{sTmp2}, s{sOff}, 4096")
        for n in range(4):
            e(f"buffer_load_dwordx4 v{vaddrs[n]}, s[{srd}:{srd+3}], s{sOff} offen offset:{n*1024} {flag} lds".rstrip())
        e(f"s_add_u32 m0, s{sLds}, 4096")
        e("s_nop 0")
        for n in range(4):
            e(f"buffer_load_dwordx4 v{vaddrs[n]}, s[{srd}:{srd+3}], s{sTmp2} offen offset:{n*1024} {flag} lds".rstrip())
    def dma_q(): dma_tile(SQ, [vDQ, vDQ+1, vDQ+2, vDQ+3], sQlds, sQoff, ldflagq)
    def dma_k():
        e(f"s_lshl_b32 s{sTmp}, s{sW}, 10")
        for t in range(8):
            e(f"s_add_u32 m0, s{sTmp}, {t*8192}")
            e(f"s_mov_b32 s{sTmp2}, {t*8192}")
            e(f"buffer_load_dwordx4 v{vDK}, s[{SK}:{SK+3}], s{sTmp2} offen {ldflagkv} lds".rstrip())
    def dma_v():
        e(f"s_add_u32 s{sTmp}, s{sQoff}, 0x10000")
        dma_tile(SV, [vDV]*4, sTmp, sQoff, ldflagkv)
    def addr_setup():
        e("v_and_b32 v2, 31, v0")
        e("v_lshrrev_b32 v3, 5, v0")
        e("v_and_b32 v4, 15, v0")
        e("v_xor_b32 v4, v4, v3")
        e("v_lshlrev_b32 v4, 4, v4")
        e(f"v_lshl_add_u32 v{vKA}, v2, 8, v4")
        for s in range(1, 8):
            e(f"v_xor_b32 v{vKA+s}, {s*32}, v{vKA}")
        for s in range(8):
            e(f"v_add_u32 v{vQA+s}, s{sQlds}, v{vKA+s}")
        e("v_bfe_u32 v4, v0, 2, 2")
        e("v_lshl_add_u32 v5, v3, 2, v4")
        e("v_lshlrev_b32 v5, 8, v5")
        e("v_lshl_add_u32 v5, v4, 6, v5")
        e("v_bfe_u32 v6, v0, 4, 1")
        e("v_lshl_add_u32 v5, v6, 5, v5")
        e("v_and_b32 v6, 1, v0")
        e("v_lshl_add_u32 v5, v6, 4, v5")
        e("v_bfe_u32 v6, v0, 1, 1")
        e("v_lshl_add_u32 v5, v6, 3, v5")
        e(f"v_add_u32 v{vVA}, 0x10000, v5")
        for t in range(1, 4):
            e(f"v_xor_b32 v{vVA+t}, {t*64}, v{vVA}")
        if store == "direct":
            e("v_lshlrev_b32 v5, 8, v2")
            e("v_lshl_add_u32 v5, v3, 4, v5")
            e(f"v_add_u32 v{vOG}, s{sQoff}, v5")
        else:
            e("v_and_b32 v4, 7, v0")
            e("v_xor_b32 v4, v4, v3")
            e("v_lshlrev_b32 v4, 4, v4")
            e("v_lshl_add_u32 v4, v2, 7, v4")
            e(f"v_add_u32 v{vOW}, s{sOlds}, v4")
            e("v_lshrrev_b32 v4, 3, v0")
            e("v_and_b32 v5, 7, v0")
            e("v_xor_b32 v6, v4, v5")
            e("v_lshlrev_b32 v6, 4, v6")
            e("v_lshl_add_u32 v6, v4, 7, v6")
            e(f"v_add_u32 v{vOR}, s{sOlds}, v6")
            e("v_lshlrev_b32 v5, 4, v5")
            e("v_lshl_add_u32 v5, v4, 8, v5")
            e(f"v_add_u32 v{vOG}, s{sQoff}, v5")
        e(f"s_mov_b32 s{sC}, {hex(f32bits(math.log2(math.e) / math.sqrt(128.0)))}")
    def read_q():
        for s in range(8):
            e(f"ds_read_b128 v[{vQ+4*s}:{vQ+4*s+3}], v{vQA+s}")

    tiles_per_bar = 8 // nkbar
    e(f"s_cmp_eq_u32 s{sGrp}, 1")
    e("s_cbranch_scc1 L_proB")
    dma_q(); stamp(); dma_k(); stamp(); dma_v()
    stamp()
    addr_setup()
    e(f"s_waitcnt vmcnt({16 - tiles_per_bar})")
    e("s_barrier")
    stamp()
    read_q()
    e("s_branch L_qk")
    e.label("L_proB")
    if stamps: nst[0] -= 4
    dma_k(); stamp(); dma_q(); stamp()
    stamp()
    addr_setup()
    for b in range(nkbar):
        e(f"s_waitcnt vmcnt({16 - tiles_per_bar*(b+1)})")
        e("s_barrier")
    e("s_waitcnt vmcnt(0)")
    stamp()
    read_q()
    e("s_waitcnt lgkmcnt(0)")
    dma_v()
    e.label("L_qk")
    if prio: e("s_setprio 1")
    DEPTH = 6
    nfr = 64
    def kread(i):
        t, s = divmod(i, 8)
        if s == 0 and t > 0 and t % tiles_per_bar == 0:
            b = t // tiles_per_bar
            e(f"s_cmp_eq_u32 s{sGrp}, 1")
            e(f"s_cbranch_scc1 L_nb{b}")
            e(f"s_waitcnt vmcnt({16 - tiles_per_bar*(b+1)})")
            e("s_barrier")
            e.label(f"L_nb{b}")
        r = vKR + 4 * (i % 8)
        e(f"ds_read_b128 v[{r}:{r+3}], v{vKA+s} offset:{t*8192}")
    for i in range(DEPTH): kread(i)
    maxops = []
    def tile_max(t):
        ops = []
        b = vS + 16 * t
        if t == 0:
            ops.append(f"v_max3_f32 v{vM0}, v{b}, v{b+1}, v{b+2}")
            ops.append(f"v_max3_f32 v{vM1}, v{b+3}, v{b+4}, v{b+5}")
            rest = list(range(6, 16))
        else:
            rest = list(range(0, 16))
        for j in range(0, len(rest), 2):
            m = vM0 if (j // 2) % 2 == 0 else vM1
            ops.append(f"v_max3_f32 v{m}, v{m}, v{b+rest[j]}, v{b+rest[j+1]}")
        return ops
    pend = []
    for i in range(nfr):
        t, s = divmod(i, 8)
        if s == 4 and t >= 1: pend += tile_max(t - 1)
        out = min(i + DEPTH - 1, nfr - 1) - i
        e(f"s_waitcnt lgkmcnt({out})")
        r = vKR + 4 * (i % 8)
        d = vS + 16 * t
        cin = "0" if s == 0 else f"v[{d}:{d+15}]"
        e(f"v_mfma_f32_32x32x16_bf16 v[{d}:{d+15}], v[{r}:{r+3}], v[{vQ+4*s}:{vQ+4*s+3}], {cin}")
        if i + DEPTH < nfr: kread(i + DEPTH)
        n = 1 if i < nfr - 4 else 2
        for _ in range(n):
            if pend: e(pend.pop(0))
    stamp()
    e(f"s_cmp_eq_u32 s{sGrp}, 0")
    e("s_cbranch_scc1 L_nbxB")
    e("s_waitcnt vmcnt(0)")
    e("s_barrier")
    e.label("L_nbxB")
    if prio: e("s_setprio 0")
    assert not pend
    e("s_nop 9")
    for op in tile_max(7): e(op)
    e(f"v_max_f32 v{vM0}, v{vM0}, v{vM1}")
    e(f"v_mov_b32 v{vM1}, v{vM0}")
    e("s_nop 1")
    e(f"v_permlane32_swap_b32 v{vM0}, v{vM1}")
    e(f"v_max_f32 v{vM0}, v{vM0}, v{vM1}")
    e(f"v_mul_f32 v{vMC}, s{sC}, v{vM0}")
    npair = 64
    def fma(i):
        a = vS + 2 * i
        if pk:
            return [f"v_pk_fma_f32 v[{a}:{a+1}], v[{a}:{a+1}], s[{sCC}:{sCC+1}], v[{vMC}:{vMC+1}] neg_lo:[0,0,1] neg_hi:[0,0,1]"]
        return [f"v_fma_f32 v{a}, v{a}, s{sC}, -v{vMC}", f"v_fma_f32 v{a+1}, v{a+1}, s{sC}, -v{vMC}"]
    sCC = 38 + 0
    if pk:
        sCC = 90
        e(f"s_mov_b32 s{sCC}, s{sC}")
        e(f"s_mov_b32 s{sCC+1}, s{sC}")
        e(f"v_mov_b32 v{vMC+1}, v{vMC}")
    for op in fma(0): e(op)
    for op in fma(1): e(op)
    e(f"v_exp_f32 v{vS}, v{vS}")
    e(f"v_exp_f32 v{vS+1}, v{vS+1}")
    for i in range(npair):
        a = vS + 2 * i
        if i + 2 < npair:
            for op in fma(i + 2): e(op)
        if i + 1 < npair: e(f"v_exp_f32 v{a+2}, v{a+2}")
        if pk:
            if i + 1 < npair: e(f"v_exp_f32 v{a+3}, v{a+3}")
            if i == 0: e(f"v_pk_add_f32 v[{vL0}:{vL0+1}], v[{a}:{a+1}], 0")
            else: e(f"v_pk_add_f32 v[{vL0}:{vL0+1}], v[{vL0}:{vL0+1}], v[{a}:{a+1}]")
        else:
            if i == 0: e(f"v_mov_b32 v{vL0}, v{a}")
            else: e(f"v_add_f32 v{vL0}, v{vL0}, v{a}")
            if i + 1 < npair: e(f"v_exp_f32 v{a+3}, v{a+3}")
            if i == 0: e(f"v_mov_b32 v{vL1}, v{a+1}")
            else: e(f"v_add_f32 v{vL1}, v{vL1}, v{a+1}")
        e(f"v_cvt_pk_bf16_f32 v{vP+i}, v{a}, v{a+1}")
    e(f"v_add_f32 v{vL0}, v{vL0}, v{vL1}")
    e(f"v_mov_b32 v{vL1}, v{vL0}")
    e("s_nop 1")
    e(f"v_permlane32_swap_b32 v{vL0}, v{vL1}")
    e(f"v_add_f32 v{vL0}, v{vL0}, v{vL1}")
    e(f"v_rcp_f32 v{vInv}, v{vL0}")
    stamp()
    e(f"s_cmp_eq_u32 s{sGrp}, 1")
    e("s_cbranch_scc1 L_nbxA")
    e("s_waitcnt vmcnt(0)")
    e("s_barrier")
    e.label("L_nbxA")
    if prio: e("s_setprio 1")
    stamp()
    VD = 5
    lds_ops = []
    def vread(i):
        t, ks = divmod(i, 16)
        r = vVR + 4 * (i % 8)
        e(f"ds_read_b64_tr_b16 v[{r}:{r+1}], v{vVA+t} offset:{ks*4096}")
        e(f"ds_read_b64_tr_b16 v[{r+2}:{r+3}], v{vVA+t} offset:{ks*4096+2048}")
        lds_ops.append(("v", i)); lds_ops.append(("v", i))
    def wait_for(tag):
        last = max(j for j, x in enumerate(lds_ops) if x == tag)
        n = len(lds_ops) - 1 - last
        assert n <= 15, n
        e(f"s_waitcnt lgkmcnt({n})")
    def epi(t):
        ops = []
        b = vO + 16 * t
        pkd = vE + 8 * (t % 2)
        for n in range(2):
            for j in range(8):
                ops.append(("valu", f"v_mul_f32 v{b+8*n+j}, v{vInv}, v{b+8*n+j}"))
            for j in range(4):
                ops.append(("valu", f"v_cvt_pk_bf16_f32 v{pkd+4*n+j}, v{b+8*n+2*j}, v{b+8*n+2*j+1}"))
            if store == "direct":
                ops.append(("vm", f"buffer_store_dwordx4 v[{pkd+4*n}:{pkd+4*n+3}], v{vOG}, s[{SO}:{SO+3}], 0 offen offset:{64*t+32*n} {stflag}".rstrip()))
            else:
                x = (4 * (t % 2) + 2 * n) * 16
                ops.append(("valu", f"v_xor_b32 v{vOW+1}, {x}, v{vOW}"))
                ops.append(("ldsw", f"ds_write_b128 v{vOW+1}, v[{pkd+4*n}:{pkd+4*n+3}] offset:{(t//2)*4096}", ("ow", t, n)))
        if store != "direct" and t % 2 == 1:
            hf = t // 2
            tb = vE + 16
            ops.append(("waitl", ("ow", t, 1)))
            for m in range(4):
                ops.append(("ldsw", f"ds_read_b128 v[{tb+4*m}:{tb+4*m+3}], v{vOR} offset:{hf*4096 + m*1024}", ("or", t, m)))
            for m in range(4):
                ops.append(("waitl", ("or", t, m)))
                ops.append(("vm", f"buffer_store_dwordx4 v[{tb+4*m}:{tb+4*m+3}], v{vOG}, s[{SO}:{SO+3}], s{sStO+m} offen offset:{hf*128} {stflag}".rstrip()))
        return ops
    sStO = 92
    if store != "direct":
        for m in range(4): e(f"s_mov_b32 s{sStO+m}, {m*2048}")
    def emit_op(op):
        if op[0] in ("valu", "vm"): e(op[1])
        elif op[0] == "ldsw": e(op[1]); lds_ops.append(op[2])
        elif op[0] == "waitl": wait_for(op[1])
    for i in range(VD): vread(i)
    pend = []
    for i in range(64):
        t, ks = divmod(i, 16)
        if ks == 4 and t >= 1: pend += epi(t - 1)
        wait_for(("v", i))
        r = vVR + 4 * (i % 8)
        d = vO + 16 * t
        cin = "0" if ks == 0 else f"v[{d}:{d+15}]"
        e(f"v_mfma_f32_32x32x16_bf16 v[{d}:{d+15}], v[{r}:{r+3}], v[{vP+4*ks}:{vP+4*ks+3}], {cin}")
        if i + VD < 64: vread(i + VD)
        for _ in range(4):
            if pend: emit_op(pend.pop(0))
    while pend: emit_op(pend.pop(0))
    stamp()
    e("s_nop 11")
    for op in epi(3): emit_op(op)
    stamp()
    if stamps:
        e("s_waitcnt vmcnt(0)")
        stamp(); stamp(True)
        e("s_waitcnt lgkmcnt(0)")
        n = nst[0]
        if dbg:
            e("v_mov_b32 v1, 0")
            e("s_mov_b64 exec, 1")
            for slot, wg in enumerate((0, 255, 129)):
                e(f"s_cmp_lg_u32 s2, {wg}")
                e(f"s_cbranch_scc1 L_d{slot}")
                e(f"s_cmp_lg_u32 s{sW}, 0")
                e(f"s_cbranch_scc1 L_d{slot}b")
                e(f"v_mov_b32 v2, s{sStamp}")
                e(f"global_store_dword v1, v2, s[12:13] offset:{8*slot}")
                e.label(f"L_d{slot}b")
                e(f"s_cmp_lg_u32 s{sW}, 7")
                e(f"s_cbranch_scc1 L_d{slot}")
                e(f"v_mov_b32 v2, s{sStamp+2*(n-1)}")
                e(f"global_store_dword v1, v2, s[12:13] offset:{8*slot+4}")
                e.label(f"L_d{slot}")
            e("s_cmp_lg_u32 s2, 100")
            e("s_cbranch_scc1 L_end")
            e(f"s_cmp_lg_u32 s{sW}, {dbgwave}")
            e("s_cbranch_scc1 L_end")
            e(f"s_sub_u32 s{sTmp}, s{sStamp+2*(n-1)}, s{sStamp}")
            e(f"v_mov_b32 v2, s{sTmp}")
            e(f"global_store_dword v1, v2, s[12:13] offset:24")
            for jj, j in enumerate((2, 3, 4, 6, 7, 8, 10, 11, 12)):
                e(f"s_sub_u32 s{sTmp}, s{sStamp+2*j}, s{sStamp+2}")
                e(f"v_mov_b32 v2, s{sTmp}")
                e(f"global_store_dword v1, v2, s[12:13] offset:{28+4*jj}")
            e("s_endpgm")
        e(f"s_lshl_b32 s{sTmp}, s2, 3")
        e(f"s_add_u32 s{sTmp}, s{sTmp}, s{sW}")
        e(f"s_mul_i32 s{sTmp}, s{sTmp}, {n*8}")
        e(f"s_add_u32 s12, s12, s{sTmp}")
        e("s_addc_u32 s13, s13, 0")
        e("v_mov_b32 v1, 0")
        for j in range(n):
            e(f"v_mov_b32 v2, s{sStamp+2*j}")
            e(f"v_mov_b32 v3, s{sStamp+2*j+1}")
            e(f"global_store_dwordx2 v1, v[2:3], s[12:13] offset:{8*j}")
            e("s_nop 1")
        e.c(f"nstamps={n}")
    if spin:
        e("s_waitcnt vmcnt(0) lgkmcnt(0)")
        e.label("L_spin")
        e("s_sleep 4")
        e("s_memrealtime s[98:99]")
        e("s_waitcnt lgkmcnt(0)")
        e("s_sub_u32 s98, s98, s96")
        e(f"s_cmp_lt_u32 s98, {spin}")
        e("s_cbranch_scc1 L_spin")
    e.label("L_end")
    e("s_endpgm")
    return HEADER + e.text() + FOOTER

if __name__ == "__main__":
    kw = {}
    out = sys.argv[1]
    for a in sys.argv[2:]:
        k, v = a.split("=", 1)
        if v in ("True", "False"): v = v == "True"
        elif v.isdigit(): v = int(v)
        kw[k] = v
    open(out, "w").write(gen(**kw))
```

```python
import sys, math, struct

def f32bits(x): return struct.unpack("<I", struct.pack("<f", x))[0]

class E:
    def __init__(self): self.l = []
    def __call__(self, s): self.l.append("    " + s)
    def label(self, s): self.l.append(s + ":")
    def c(self, s): self.l.append("    ; " + s)
    def text(self): return "\n".join(self.l) + "\n"

HEADER = """; GQA attention forward, B=8 Hq=32 Hkv=4 Sq=Sk=256 D=128, bf16 in/out.
; @launch grid=(256,1,1) block=(512,1,1) lds=163840
.amdgcn_target "amdgcn-amd-amdhsa--gfx950"
.text
.globl standalone__gqa_softmax__near_ridge_kernel
.p2align 8
.type standalone__gqa_softmax__near_ridge_kernel,@function
standalone__gqa_softmax__near_ridge_kernel:
"""
FOOTER = """
.section .rodata,"a"
.p2align 6
.amdhsa_kernel standalone__gqa_softmax__near_ridge_kernel
  .amdhsa_next_free_vgpr 256
  .amdhsa_next_free_sgpr 102
  .amdhsa_accum_offset 256
  .amdhsa_group_segment_fixed_size 0
  .amdhsa_kernarg_size 48
  .amdhsa_user_sgpr_count 2
  .amdhsa_user_sgpr_kernarg_segment_ptr 1
  .amdhsa_system_sgpr_workgroup_id_x 1
.end_amdhsa_kernel
"""

def gen(store="direct", stamps=False, stflag="", ldflagq="", ldflagkv="", prio=True, nkbar=4, pk=False, dbg=False, dbgwave=0, spin=0, enc=-1, encw=-1):
    e = E()
    sW = 3
    SQ, SK, SV, SO = 16, 20, 24, 28
    sQoff, sQlds, sTmp, sTmp2, sC, sGrp, sOlds = 32, 33, 34, 35, 36, 37, 38
    sStamp = 40
    nst = [0]
    npt = [0]
    def stamp(real=False):
        if npt[0] == enc: e("s_memrealtime s[100:101]")
        npt[0] += 1
        if not stamps: return
        r = sStamp + 2 * nst[0]; nst[0] += 1
        e(f"{'s_memrealtime' if real else 's_memtime'} s[{r}:{r+1}]")
    vLane = 0
    vKA = 8
    vVA = 16
    vDK, vDV = 20, 21
    vDQ = 22
    vM0, vM1, vL0, vL1, vT0, vT1, vMC, vInv = 26, 27, 28, 29, 30, 31, 32, 33
    vOW, vOR, vOG = 34, 36, 38
    vQA = 40
    vKR = 64
    vQ = 96
    vP = 64
    vS = 128
    vO = 128
    vVR = 192
    vE = 224

    e("s_cmp_ge_u32 s2, 256")
    e("s_cbranch_scc1 L_end")
    stamp(True); stamp()
    if spin: e("s_memrealtime s[96:97]")
    e("s_load_dwordx4 s[4:7], s[0:1], 0")
    e("s_load_dwordx4 s[8:11], s[0:1], 16")
    if stamps: e(f"s_load_dwordx2 s[12:13], s[0:1], {32 if dbg else 40}")
    e("v_lshrrev_b32 v1, 6, v0")
    e("v_and_b32 v0, 63, v0")
    e(f"v_readfirstlane_b32 s{sW}, v1")
    e("s_and_b32 s14, s2, 7")
    e("s_lshr_b32 s15, s2, 3")
    e(f"s_lshr_b32 s{sTmp}, s15, 3")
    e("s_lshl_b32 s14, s14, 2")
    e(f"s_add_u32 s14, s14, s{sTmp}")
    e("s_and_b32 s15, s15, 7")
    e(f"s_lshl_b32 s{sTmp}, s14, 3")
    e(f"s_add_u32 s15, s15, s{sTmp}")
    e("s_lshl_b32 s14, s14, 16")
    e("s_lshl_b32 s15, s15, 16")
    e("v_lshrrev_b32 v2, 4, v0")
    e("v_and_b32 v3, 15, v0")
    e("v_xor_b32 v4, v2, v3")
    e("v_lshlrev_b32 v4, 4, v4")
    e(f"v_lshl_add_u32 v{vDQ}, v2, 8, v4")
    for m in range(1, 4):
        e(f"v_xor_b32 v{vDQ+m}, {m*64}, v{vDQ}")
    e(f"s_and_b32 s{sTmp}, s{sW}, 3")
    e(f"s_lshl_b32 s{sTmp}, s{sTmp}, 6")
    e(f"s_lshl_b32 s{sTmp2}, s{sW}, 10")
    e(f"v_xor_b32 v{vDK}, s{sTmp}, v{vDQ}")
    e(f"v_add_u32 v{vDK}, s{sTmp2}, v{vDK}")
    e("v_lshlrev_b32 v4, 2, v2")
    e("v_xor_b32 v4, v4, v3")
    e("v_lshlrev_b32 v4, 4, v4")
    e(f"v_lshl_add_u32 v{vDV}, v2, 8, v4")
    e(f"s_lshl_b32 s{sQoff}, s{sW}, 13")
    e(f"s_cmp_ge_u32 s{sW}, 4")
    e(f"s_cselect_b32 s{sGrp}, 1, 0")
    e(f"s_cselect_b32 s{sTmp}, 1, 2")
    e(f"s_lshl_b32 s{sTmp}, s{sTmp}, 16")
    e(f"s_add_u32 s{sQlds}, s{sTmp}, s{sQoff}")
    e(f"s_sub_u32 s{sTmp}, s{sQoff}, 0x8000")
    e(f"s_cmp_ge_u32 s{sW}, 4")
    e(f"s_cselect_b32 s{sOlds}, s{sTmp}, s{sQlds}")
    e("s_waitcnt lgkmcnt(0)")
    stamp()
    for (srd, p, off) in ((SQ, 4, 15), (SK, 6, 14), (SV, 8, 14), (SO, 10, 15)):
        e(f"s_add_u32 s{srd}, s{p}, s{off}")
        e(f"s_addc_u32 s{srd+1}, s{p+1}, 0")
        e(f"s_mov_b32 s{srd+2}, 0x10000")
        e(f"s_mov_b32 s{srd+3}, 0x20000")

    def dma_tile(srd, vaddrs, sLds, sOff, flag):
        e(f"s_mov_b32 m0, s{sLds}")
        e(f"s_add_u32 s{sTmp2}, s{sOff}, 4096")
        for n in range(4):
            e(f"buffer_load_dwordx4 v{vaddrs[n]}, s[{srd}:{srd+3}], s{sOff} offen offset:{n*1024} {flag} lds".rstrip())
        e(f"s_add_u32 m0, s{sLds}, 4096")
        e("s_nop 0")
        for n in range(4):
            e(f"buffer_load_dwordx4 v{vaddrs[n]}, s[{srd}:{srd+3}], s{sTmp2} offen offset:{n*1024} {flag} lds".rstrip())
    def dma_q(): dma_tile(SQ, [vDQ, vDQ+1, vDQ+2, vDQ+3], sQlds, sQoff, ldflagq)
    def dma_k():
        e(f"s_lshl_b32 s{sTmp}, s{sW}, 10")
        for t in range(8):
            e(f"s_add_u32 m0, s{sTmp}, {t*8192}")
            e(f"s_mov_b32 s{sTmp2}, {t*8192}")
            e(f"buffer_load_dwordx4 v{vDK}, s[{SK}:{SK+3}], s{sTmp2} offen {ldflagkv} lds".rstrip())
    def dma_v():
        e(f"s_add_u32 s{sTmp}, s{sQoff}, 0x10000")
        dma_tile(SV, [vDV]*4, sTmp, sQoff, ldflagkv)
    def addr_setup():
        e("v_and_b32 v2, 31, v0")
        e("v_lshrrev_b32 v3, 5, v0")
        e("v_and_b32 v4, 15, v0")
        e("v_xor_b32 v4, v4, v3")
        e("v_lshlrev_b32 v4, 4, v4")
        e(f"v_lshl_add_u32 v{vKA}, v2, 8, v4")
        for s in range(1, 8):
            e(f"v_xor_b32 v{vKA+s}, {s*32}, v{vKA}")
        for s in range(8):
            e(f"v_add_u32 v{vQA+s}, s{sQlds}, v{vKA+s}")
        e("v_bfe_u32 v4, v0, 2, 2")
        e("v_lshl_add_u32 v5, v3, 2, v4")
        e("v_lshlrev_b32 v5, 8, v5")
        e("v_lshl_add_u32 v5, v4, 6, v5")
        e("v_bfe_u32 v6, v0, 4, 1")
        e("v_lshl_add_u32 v5, v6, 5, v5")
        e("v_and_b32 v6, 1, v0")
        e("v_lshl_add_u32 v5, v6, 4, v5")
        e("v_bfe_u32 v6, v0, 1, 1")
        e("v_lshl_add_u32 v5, v6, 3, v5")
        e(f"v_add_u32 v{vVA}, 0x10000, v5")
        for t in range(1, 4):
            e(f"v_xor_b32 v{vVA+t}, {t*64}, v{vVA}")
        if store == "direct":
            e("v_lshlrev_b32 v5, 8, v2")
            e("v_lshl_add_u32 v5, v3, 4, v5")
            e(f"v_add_u32 v{vOG}, s{sQoff}, v5")
        else:
            e("v_and_b32 v4, 7, v0")
            e("v_xor_b32 v4, v4, v3")
            e("v_lshlrev_b32 v4, 4, v4")
            e("v_lshl_add_u32 v4, v2, 7, v4")
            e(f"v_add_u32 v{vOW}, s{sOlds}, v4")
            e("v_lshrrev_b32 v4, 3, v0")
            e("v_and_b32 v5, 7, v0")
            e("v_xor_b32 v6, v4, v5")
            e("v_lshlrev_b32 v6, 4, v6")
            e("v_lshl_add_u32 v6, v4, 7, v6")
            e(f"v_add_u32 v{vOR}, s{sOlds}, v6")
            e("v_lshlrev_b32 v5, 4, v5")
            e("v_lshl_add_u32 v5, v4, 8, v5")
            e(f"v_add_u32 v{vOG}, s{sQoff}, v5")
        e(f"s_mov_b32 s{sC}, {hex(f32bits(math.log2(math.e) / math.sqrt(128.0)))}")
    def read_q():
        for s in range(8):
            e(f"ds_read_b128 v[{vQ+4*s}:{vQ+4*s+3}], v{vQA+s}")

    tiles_per_bar = 8 // nkbar
    e(f"s_cmp_eq_u32 s{sGrp}, 1")
    e("s_cbranch_scc1 L_proB")
    dma_q(); stamp(); dma_k(); stamp(); dma_v()
    stamp()
    addr_setup()
    e(f"s_waitcnt vmcnt({16 - tiles_per_bar})")
    e("s_barrier")
    stamp()
    read_q()
    e("s_branch L_qk")
    e.label("L_proB")
    if stamps: nst[0] -= 4
    npt[0] -= 4
    dma_k(); stamp(); dma_q(); stamp()
    stamp()
    addr_setup()
    for b in range(nkbar):
        e(f"s_waitcnt vmcnt({16 - tiles_per_bar*(b+1)})")
        e("s_barrier")
    e("s_waitcnt vmcnt(0)")
    stamp()
    read_q()
    e("s_waitcnt lgkmcnt(0)")
    dma_v()
    e.label("L_qk")
    if prio: e("s_setprio 1")
    DEPTH = 6
    nfr = 64
    def kread(i):
        t, s = divmod(i, 8)
        if s == 0 and t > 0 and t % tiles_per_bar == 0:
            b = t // tiles_per_bar
            e(f"s_cmp_eq_u32 s{sGrp}, 1")
            e(f"s_cbranch_scc1 L_nb{b}")
            e(f"s_waitcnt vmcnt({16 - tiles_per_bar*(b+1)})")
            e("s_barrier")
            e.label(f"L_nb{b}")
        r = vKR + 4 * (i % 8)
        e(f"ds_read_b128 v[{r}:{r+3}], v{vKA+s} offset:{t*8192}")
    for i in range(DEPTH): kread(i)
    maxops = []
    def tile_max(t):
        ops = []
        b = vS + 16 * t
        if t == 0:
            ops.append(f"v_max3_f32 v{vM0}, v{b}, v{b+1}, v{b+2}")
            ops.append(f"v_max3_f32 v{vM1}, v{b+3}, v{b+4}, v{b+5}")
            rest = list(range(6, 16))
        else:
            rest = list(range(0, 16))
        for j in range(0, len(rest), 2):
            m = vM0 if (j // 2) % 2 == 0 else vM1
            ops.append(f"v_max3_f32 v{m}, v{m}, v{b+rest[j]}, v{b+rest[j+1]}")
        return ops
    pend = []
    for i in range(nfr):
        t, s = divmod(i, 8)
        if s == 4 and t >= 1: pend += tile_max(t - 1)
        out = min(i + DEPTH - 1, nfr - 1) - i
        e(f"s_waitcnt lgkmcnt({out})")
        r = vKR + 4 * (i % 8)
        d = vS + 16 * t
        cin = "0" if s == 0 else f"v[{d}:{d+15}]"
        e(f"v_mfma_f32_32x32x16_bf16 v[{d}:{d+15}], v[{r}:{r+3}], v[{vQ+4*s}:{vQ+4*s+3}], {cin}")
        if i + DEPTH < nfr: kread(i + DEPTH)
        n = 1 if i < nfr - 4 else 2
        for _ in range(n):
            if pend: e(pend.pop(0))
    stamp()
    e(f"s_cmp_eq_u32 s{sGrp}, 0")
    e("s_cbranch_scc1 L_nbxB")
    e("s_waitcnt vmcnt(0)")
    e("s_barrier")
    e.label("L_nbxB")
    if prio: e("s_setprio 0")
    assert not pend
    e("s_nop 9")
    for op in tile_max(7): e(op)
    e(f"v_max_f32 v{vM0}, v{vM0}, v{vM1}")
    e(f"v_mov_b32 v{vM1}, v{vM0}")
    e("s_nop 1")
    e(f"v_permlane32_swap_b32 v{vM0}, v{vM1}")
    e(f"v_max_f32 v{vM0}, v{vM0}, v{vM1}")
    e(f"v_mul_f32 v{vMC}, s{sC}, v{vM0}")
    npair = 64
    def fma(i):
        a = vS + 2 * i
        if pk:
            return [f"v_pk_fma_f32 v[{a}:{a+1}], v[{a}:{a+1}], s[{sCC}:{sCC+1}], v[{vMC}:{vMC+1}] neg_lo:[0,0,1] neg_hi:[0,0,1]"]
        return [f"v_fma_f32 v{a}, v{a}, s{sC}, -v{vMC}", f"v_fma_f32 v{a+1}, v{a+1}, s{sC}, -v{vMC}"]
    sCC = 38 + 0
    if pk:
        sCC = 90
        e(f"s_mov_b32 s{sCC}, s{sC}")
        e(f"s_mov_b32 s{sCC+1}, s{sC}")
        e(f"v_mov_b32 v{vMC+1}, v{vMC}")
    for op in fma(0): e(op)
    for op in fma(1): e(op)
    e(f"v_exp_f32 v{vS}, v{vS}")
    e(f"v_exp_f32 v{vS+1}, v{vS+1}")
    for i in range(npair):
        a = vS + 2 * i
        if i + 2 < npair:
            for op in fma(i + 2): e(op)
        if i + 1 < npair: e(f"v_exp_f32 v{a+2}, v{a+2}")
        if pk:
            if i + 1 < npair: e(f"v_exp_f32 v{a+3}, v{a+3}")
            if i == 0: e(f"v_pk_add_f32 v[{vL0}:{vL0+1}], v[{a}:{a+1}], 0")
            else: e(f"v_pk_add_f32 v[{vL0}:{vL0+1}], v[{vL0}:{vL0+1}], v[{a}:{a+1}]")
        else:
            if i == 0: e(f"v_mov_b32 v{vL0}, v{a}")
            else: e(f"v_add_f32 v{vL0}, v{vL0}, v{a}")
            if i + 1 < npair: e(f"v_exp_f32 v{a+3}, v{a+3}")
            if i == 0: e(f"v_mov_b32 v{vL1}, v{a+1}")
            else: e(f"v_add_f32 v{vL1}, v{vL1}, v{a+1}")
        e(f"v_cvt_pk_bf16_f32 v{vP+i}, v{a}, v{a+1}")
    e(f"v_add_f32 v{vL0}, v{vL0}, v{vL1}")
    e(f"v_mov_b32 v{vL1}, v{vL0}")
    e("s_nop 1")
    e(f"v_permlane32_swap_b32 v{vL0}, v{vL1}")
    e(f"v_add_f32 v{vL0}, v{vL0}, v{vL1}")
    e(f"v_rcp_f32 v{vInv}, v{vL0}")
    stamp()
    e(f"s_cmp_eq_u32 s{sGrp}, 1")
    e("s_cbranch_scc1 L_nbxA")
    e("s_waitcnt vmcnt(0)")
    e("s_barrier")
    e.label("L_nbxA")
    if prio: e("s_setprio 1")
    stamp()
    VD = 5
    lds_ops = []
    def vread(i):
        t, ks = divmod(i, 16)
        r = vVR + 4 * (i % 8)
        e(f"ds_read_b64_tr_b16 v[{r}:{r+1}], v{vVA+t} offset:{ks*4096}")
        e(f"ds_read_b64_tr_b16 v[{r+2}:{r+3}], v{vVA+t} offset:{ks*4096+2048}")
        lds_ops.append(("v", i)); lds_ops.append(("v", i))
    def wait_for(tag):
        last = max(j for j, x in enumerate(lds_ops) if x == tag)
        n = len(lds_ops) - 1 - last
        assert n <= 15, n
        e(f"s_waitcnt lgkmcnt({n})")
    def epi(t):
        ops = []
        b = vO + 16 * t
        pkd = vE + 8 * (t % 2)
        for n in range(2):
            for j in range(8):
                ops.append(("valu", f"v_mul_f32 v{b+8*n+j}, v{vInv}, v{b+8*n+j}"))
            for j in range(4):
                ops.append(("valu", f"v_cvt_pk_bf16_f32 v{pkd+4*n+j}, v{b+8*n+2*j}, v{b+8*n+2*j+1}"))
            if store == "direct":
                ops.append(("vm", f"buffer_store_dwordx4 v[{pkd+4*n}:{pkd+4*n+3}], v{vOG}, s[{SO}:{SO+3}], 0 offen offset:{64*t+32*n} {stflag}".rstrip()))
            else:
                x = (4 * (t % 2) + 2 * n) * 16
                ops.append(("valu", f"v_xor_b32 v{vOW+1}, {x}, v{vOW}"))
                ops.append(("ldsw", f"ds_write_b128 v{vOW+1}, v[{pkd+4*n}:{pkd+4*n+3}] offset:{(t//2)*4096}", ("ow", t, n)))
        if store != "direct" and t % 2 == 1:
            hf = t // 2
            tb = vE + 16
            ops.append(("waitl", ("ow", t, 1)))
            for m in range(4):
                ops.append(("ldsw", f"ds_read_b128 v[{tb+4*m}:{tb+4*m+3}], v{vOR} offset:{hf*4096 + m*1024}", ("or", t, m)))
            for m in range(4):
                ops.append(("waitl", ("or", t, m)))
                ops.append(("vm", f"buffer_store_dwordx4 v[{tb+4*m}:{tb+4*m+3}], v{vOG}, s[{SO}:{SO+3}], s{sStO+m} offen offset:{hf*128} {stflag}".rstrip()))
        return ops
    sStO = 92
    if store != "direct":
        for m in range(4): e(f"s_mov_b32 s{sStO+m}, {m*2048}")
    def emit_op(op):
        if op[0] in ("valu", "vm"): e(op[1])
        elif op[0] == "ldsw": e(op[1]); lds_ops.append(op[2])
        elif op[0] == "waitl": wait_for(op[1])
    for i in range(VD): vread(i)
    pend = []
    for i in range(64):
        t, ks = divmod(i, 16)
        if ks == 4 and t >= 1: pend += epi(t - 1)
        wait_for(("v", i))
        r = vVR + 4 * (i % 8)
        d = vO + 16 * t
        cin = "0" if ks == 0 else f"v[{d}:{d+15}]"
        e(f"v_mfma_f32_32x32x16_bf16 v[{d}:{d+15}], v[{r}:{r+3}], v[{vP+4*ks}:{vP+4*ks+3}], {cin}")
        if i + VD < 64: vread(i + VD)
        for _ in range(4):
            if pend: emit_op(pend.pop(0))
    while pend: emit_op(pend.pop(0))
    stamp()
    e("s_nop 11")
    for op in epi(3): emit_op(op)
    stamp()
    if stamps:
        e("s_waitcnt vmcnt(0)")
        stamp(); stamp(True)
        e("s_waitcnt lgkmcnt(0)")
        n = nst[0]
        if dbg:
            e("v_mov_b32 v1, 0")
            e("s_mov_b64 exec, 1")
            for slot, wg in enumerate((0, 255, 129)):
                e(f"s_cmp_lg_u32 s2, {wg}")
                e(f"s_cbranch_scc1 L_d{slot}")
                e(f"s_cmp_lg_u32 s{sW}, 0")
                e(f"s_cbranch_scc1 L_d{slot}b")
                e(f"v_mov_b32 v2, s{sStamp}")
                e(f"global_store_dword v1, v2, s[12:13] offset:{8*slot}")
                e.label(f"L_d{slot}b")
                e(f"s_cmp_lg_u32 s{sW}, 7")
                e(f"s_cbranch_scc1 L_d{slot}")
                e(f"v_mov_b32 v2, s{sStamp+2*(n-1)}")
                e(f"global_store_dword v1, v2, s[12:13] offset:{8*slot+4}")
                e.label(f"L_d{slot}")
            e("s_cmp_lg_u32 s2, 100")
            e("s_cbranch_scc1 L_end")
            e(f"s_cmp_lg_u32 s{sW}, {dbgwave}")
            e("s_cbranch_scc1 L_end")
            e(f"s_sub_u32 s{sTmp}, s{sStamp+2*(n-1)}, s{sStamp}")
            e(f"v_mov_b32 v2, s{sTmp}")
            e(f"global_store_dword v1, v2, s[12:13] offset:24")
            for jj, j in enumerate((2, 3, 4, 6, 7, 8, 10, 11, 12)):
                e(f"s_sub_u32 s{sTmp}, s{sStamp+2*j}, s{sStamp+2}")
                e(f"v_mov_b32 v2, s{sTmp}")
                e(f"global_store_dword v1, v2, s[12:13] offset:{28+4*jj}")
            e("s_endpgm")
        e(f"s_lshl_b32 s{sTmp}, s2, 3")
        e(f"s_add_u32 s{sTmp}, s{sTmp}, s{sW}")
        e(f"s_mul_i32 s{sTmp}, s{sTmp}, {n*8}")
        e(f"s_add_u32 s12, s12, s{sTmp}")
        e("s_addc_u32 s13, s13, 0")
        e("v_mov_b32 v1, 0")
        for j in range(n):
            e(f"v_mov_b32 v2, s{sStamp+2*j}")
            e(f"v_mov_b32 v3, s{sStamp+2*j+1}")
            e(f"global_store_dwordx2 v1, v[2:3], s[12:13] offset:{8*j}")
            e("s_nop 1")
        e.c(f"nstamps={n}")
    if spin:
        e("s_waitcnt vmcnt(0)")
        if enc == 99: e("s_memrealtime s[100:101]")
        e("s_waitcnt lgkmcnt(0)")
        if enc >= 0:
            e("s_sub_u32 s100, s100, s96")
            e("s_lshl_b32 s100, s100, 2")
            if encw >= 0:
                e(f"s_cmp_eq_u32 s{sGrp}, {encw}")
                e("s_cselect_b32 s100, s100, 0")
            e(f"s_add_u32 s100, s100, {spin}")
        else:
            e(f"s_mov_b32 s100, {spin}")
        e.label("L_spin")
        e("s_sleep 4")
        e("s_memrealtime s[98:99]")
        e("s_waitcnt lgkmcnt(0)")
        e("s_sub_u32 s98, s98, s96")
        e(f"s_cmp_lt_u32 s98, s100")
        e("s_cbranch_scc1 L_spin")
    e.label("L_end")
    e("s_endpgm")
    return HEADER + e.text() + FOOTER

if __name__ == "__main__":
    kw = {}
    out = sys.argv[1]
    for a in sys.argv[2:]:
        k, v = a.split("=", 1)
        if v in ("True", "False"): v = v == "True"
        elif v.isdigit(): v = int(v)
        kw[k] = v
    open(out, "w").write(gen(**kw))
```

```python
import sys, math, struct

def f32bits(x): return struct.unpack("<I", struct.pack("<f", x))[0]

class E:
    def __init__(self): self.l = []
    def __call__(self, s): self.l.append("    " + s)
    def label(self, s): self.l.append(s + ":")
    def c(self, s): self.l.append("    ; " + s)
    def text(self): return "\n".join(self.l) + "\n"

HEADER = """; GQA attention forward, B=8 Hq=32 Hkv=4 Sq=Sk=256 D=128, bf16 in/out.
; @launch grid=(256,1,1) block=(512,1,1) lds=163840
.amdgcn_target "amdgcn-amd-amdhsa--gfx950"
.text
.globl standalone__gqa_softmax__near_ridge_kernel
.p2align 8
.type standalone__gqa_softmax__near_ridge_kernel,@function
standalone__gqa_softmax__near_ridge_kernel:
"""
FOOTER = """
.section .rodata,"a"
.p2align 6
.amdhsa_kernel standalone__gqa_softmax__near_ridge_kernel
  .amdhsa_next_free_vgpr 256
  .amdhsa_next_free_sgpr 102
  .amdhsa_accum_offset 256
  .amdhsa_group_segment_fixed_size 0
  .amdhsa_kernarg_size 48
  .amdhsa_user_sgpr_count 2
  .amdhsa_user_sgpr_kernarg_segment_ptr 1
  .amdhsa_system_sgpr_workgroup_id_x 1
.end_amdhsa_kernel
"""

def gen(store="direct", stamps=False, stflag="", ldflagq="", ldflagkv="", prio=True, nkbar=4, pk=False, dbg=False, dbgwave=0, spin=0, enc=-1, encw=-1, allreal=False, pre="", preflag=""):
    e = E()
    sW = 3
    SQ, SK, SV, SO = 16, 20, 24, 28
    sQoff, sQlds, sTmp, sTmp2, sC, sGrp, sOlds = 32, 33, 34, 35, 36, 37, 38
    sStamp = 40
    nst = [0]
    npt = [0]
    def stamp(real=False):
        if npt[0] == enc: e("s_memrealtime s[100:101]")
        npt[0] += 1
        if not stamps: return
        r = sStamp + 2 * nst[0]; nst[0] += 1
        e(f"{'s_memrealtime' if (real or allreal) else 's_memtime'} s[{r}:{r+1}]")
    vLane = 0
    vKA = 8
    vVA = 16
    vDK, vDV = 20, 21
    vDQ = 22
    vM0, vM1, vL0, vL1, vT0, vT1, vMC, vInv = 26, 27, 28, 29, 30, 31, 32, 33
    vOW, vOR, vOG = 34, 36, 38
    vQA = 40
    vKR = 64
    vQ = 96
    vP = 64
    vS = 128
    vO = 128
    vVR = 192
    vE = 224

    e("s_cmp_ge_u32 s2, 256")
    e("s_cbranch_scc1 L_end")
    stamp(True); stamp()
    if spin: e("s_memrealtime s[96:97]")
    e("s_load_dwordx4 s[4:7], s[0:1], 0")
    e("s_load_dwordx4 s[8:11], s[0:1], 16")
    if stamps: e(f"s_load_dwordx2 s[12:13], s[0:1], {32 if dbg else 40}")
    e("v_lshrrev_b32 v1, 6, v0")
    e("v_and_b32 v0, 63, v0")
    e(f"v_readfirstlane_b32 s{sW}, v1")
    e("s_and_b32 s14, s2, 7")
    e("s_lshr_b32 s15, s2, 3")
    e(f"s_lshr_b32 s{sTmp}, s15, 3")
    e("s_lshl_b32 s14, s14, 2")
    e(f"s_add_u32 s14, s14, s{sTmp}")
    e("s_and_b32 s15, s15, 7")
    e(f"s_lshl_b32 s{sTmp}, s14, 3")
    e(f"s_add_u32 s15, s15, s{sTmp}")
    e("s_lshl_b32 s14, s14, 16")
    e("s_lshl_b32 s15, s15, 16")
    e("v_lshrrev_b32 v2, 4, v0")
    e("v_and_b32 v3, 15, v0")
    e("v_xor_b32 v4, v2, v3")
    e("v_lshlrev_b32 v4, 4, v4")
    e(f"v_lshl_add_u32 v{vDQ}, v2, 8, v4")
    for m in range(1, 4):
        e(f"v_xor_b32 v{vDQ+m}, {m*64}, v{vDQ}")
    e(f"s_and_b32 s{sTmp}, s{sW}, 3")
    e(f"s_lshl_b32 s{sTmp}, s{sTmp}, 6")
    e(f"s_lshl_b32 s{sTmp2}, s{sW}, 10")
    e(f"v_xor_b32 v{vDK}, s{sTmp}, v{vDQ}")
    e(f"v_add_u32 v{vDK}, s{sTmp2}, v{vDK}")
    e("v_lshlrev_b32 v4, 2, v2")
    e("v_xor_b32 v4, v4, v3")
    e("v_lshlrev_b32 v4, 4, v4")
    e(f"v_lshl_add_u32 v{vDV}, v2, 8, v4")
    e(f"s_lshl_b32 s{sQoff}, s{sW}, 13")
    e(f"s_cmp_ge_u32 s{sW}, 4")
    e(f"s_cselect_b32 s{sGrp}, 1, 0")
    e(f"s_cselect_b32 s{sTmp}, 1, 2")
    e(f"s_lshl_b32 s{sTmp}, s{sTmp}, 16")
    e(f"s_add_u32 s{sQlds}, s{sTmp}, s{sQoff}")
    e(f"s_sub_u32 s{sTmp}, s{sQoff}, 0x8000")
    e(f"s_cmp_ge_u32 s{sW}, 4")
    e(f"s_cselect_b32 s{sOlds}, s{sTmp}, s{sQlds}")
    e("s_waitcnt lgkmcnt(0)")
    stamp()
    for (srd, p, off) in ((SQ, 4, 15), (SK, 6, 14), (SV, 8, 14), (SO, 10, 15)):
        e(f"s_add_u32 s{srd}, s{p}, s{off}")
        e(f"s_addc_u32 s{srd+1}, s{p+1}, 0")
        e(f"s_mov_b32 s{srd+2}, 0x10000")
        e(f"s_mov_b32 s{srd+3}, 0x20000")

    if pre == "w":
        e("v_lshlrev_b32 v7, 4, v0")
        e(f"s_add_u32 s{sTmp2}, s{sQoff}, 4096")
        for n in range(8):
            e(f"buffer_store_dwordx4 v[64:67], v7, s[{SO}:{SO+3}], s{sQoff if n < 4 else sTmp2} offen offset:{(n%4)*1024} {preflag}")
        e("s_waitcnt vmcnt(0)")
        e("s_memrealtime s[100:101]")
        e("s_barrier")
    if pre == "r":
        e("v_lshlrev_b32 v7, 4, v0")
        e(f"s_add_u32 s{sTmp2}, s{sQoff}, 4096")
        for n in range(8):
            e(f"buffer_load_dwordx4 v[{64+4*n}:{67+4*n}], v7, s[{SQ}:{SQ+3}], s{sQoff if n < 4 else sTmp2} offen offset:{(n%4)*1024} {preflag}")
        e("s_waitcnt vmcnt(0)")
        e("s_memrealtime s[100:101]")
        e("s_barrier")
    def dma_tile(srd, vaddrs, sLds, sOff, flag):
        e(f"s_mov_b32 m0, s{sLds}")
        e(f"s_add_u32 s{sTmp2}, s{sOff}, 4096")
        for n in range(4):
            e(f"buffer_load_dwordx4 v{vaddrs[n]}, s[{srd}:{srd+3}], s{sOff} offen offset:{n*1024} {flag} lds".rstrip())
        e(f"s_add_u32 m0, s{sLds}, 4096")
        e("s_nop 0")
        for n in range(4):
            e(f"buffer_load_dwordx4 v{vaddrs[n]}, s[{srd}:{srd+3}], s{sTmp2} offen offset:{n*1024} {flag} lds".rstrip())
    def dma_q(): dma_tile(SQ, [vDQ, vDQ+1, vDQ+2, vDQ+3], sQlds, sQoff, ldflagq)
    def dma_k():
        e(f"s_lshl_b32 s{sTmp}, s{sW}, 10")
        for t in range(8):
            e(f"s_add_u32 m0, s{sTmp}, {t*8192}")
            e(f"s_mov_b32 s{sTmp2}, {t*8192}")
            e(f"buffer_load_dwordx4 v{vDK}, s[{SK}:{SK+3}], s{sTmp2} offen {ldflagkv} lds".rstrip())
    def dma_v():
        e(f"s_add_u32 s{sTmp}, s{sQoff}, 0x10000")
        dma_tile(SV, [vDV]*4, sTmp, sQoff, ldflagkv)
    def addr_setup():
        e("v_and_b32 v2, 31, v0")
        e("v_lshrrev_b32 v3, 5, v0")
        e("v_and_b32 v4, 15, v0")
        e("v_xor_b32 v4, v4, v3")
        e("v_lshlrev_b32 v4, 4, v4")
        e(f"v_lshl_add_u32 v{vKA}, v2, 8, v4")
        for s in range(1, 8):
            e(f"v_xor_b32 v{vKA+s}, {s*32}, v{vKA}")
        for s in range(8):
            e(f"v_add_u32 v{vQA+s}, s{sQlds}, v{vKA+s}")
        e("v_bfe_u32 v4, v0, 2, 2")
        e("v_lshl_add_u32 v5, v3, 2, v4")
        e("v_lshlrev_b32 v5, 8, v5")
        e("v_lshl_add_u32 v5, v4, 6, v5")
        e("v_bfe_u32 v6, v0, 4, 1")
        e("v_lshl_add_u32 v5, v6, 5, v5")
        e("v_and_b32 v6, 1, v0")
        e("v_lshl_add_u32 v5, v6, 4, v5")
        e("v_bfe_u32 v6, v0, 1, 1")
        e("v_lshl_add_u32 v5, v6, 3, v5")
        e(f"v_add_u32 v{vVA}, 0x10000, v5")
        for t in range(1, 4):
            e(f"v_xor_b32 v{vVA+t}, {t*64}, v{vVA}")
        if store == "direct":
            e("v_lshlrev_b32 v5, 8, v2")
            e("v_lshl_add_u32 v5, v3, 4, v5")
            e(f"v_add_u32 v{vOG}, s{sQoff}, v5")
        else:
            e("v_and_b32 v4, 7, v0")
            e("v_xor_b32 v4, v4, v3")
            e("v_lshlrev_b32 v4, 4, v4")
            e("v_lshl_add_u32 v4, v2, 7, v4")
            e(f"v_add_u32 v{vOW}, s{sOlds}, v4")
            e("v_lshrrev_b32 v4, 3, v0")
            e("v_and_b32 v5, 7, v0")
            e("v_xor_b32 v6, v4, v5")
            e("v_lshlrev_b32 v6, 4, v6")
            e("v_lshl_add_u32 v6, v4, 7, v6")
            e(f"v_add_u32 v{vOR}, s{sOlds}, v6")
            e("v_lshlrev_b32 v5, 4, v5")
            e("v_lshl_add_u32 v5, v4, 8, v5")
            e(f"v_add_u32 v{vOG}, s{sQoff}, v5")
        e(f"s_mov_b32 s{sC}, {hex(f32bits(math.log2(math.e) / math.sqrt(128.0)))}")
    def read_q():
        for s in range(8):
            e(f"ds_read_b128 v[{vQ+4*s}:{vQ+4*s+3}], v{vQA+s}")

    tiles_per_bar = 8 // nkbar
    e(f"s_cmp_eq_u32 s{sGrp}, 1")
    e("s_cbranch_scc1 L_proB")
    dma_q(); stamp(); dma_k(); stamp(); dma_v()
    stamp()
    addr_setup()
    e(f"s_waitcnt vmcnt({16 - tiles_per_bar})")
    e("s_barrier")
    stamp()
    read_q()
    e("s_branch L_qk")
    e.label("L_proB")
    if stamps: nst[0] -= 4
    npt[0] -= 4
    dma_k(); stamp(); dma_q(); stamp()
    stamp()
    addr_setup()
    for b in range(nkbar):
        e(f"s_waitcnt vmcnt({16 - tiles_per_bar*(b+1)})")
        e("s_barrier")
    e("s_waitcnt vmcnt(0)")
    stamp()
    read_q()
    e("s_waitcnt lgkmcnt(0)")
    dma_v()
    e.label("L_qk")
    if prio: e("s_setprio 1")
    DEPTH = 6
    nfr = 64
    def kread(i):
        t, s = divmod(i, 8)
        if s == 0 and t > 0 and t % tiles_per_bar == 0:
            b = t // tiles_per_bar
            e(f"s_cmp_eq_u32 s{sGrp}, 1")
            e(f"s_cbranch_scc1 L_nb{b}")
            e(f"s_waitcnt vmcnt({16 - tiles_per_bar*(b+1)})")
            e("s_barrier")
            e.label(f"L_nb{b}")
        r = vKR + 4 * (i % 8)
        e(f"ds_read_b128 v[{r}:{r+3}], v{vKA+s} offset:{t*8192}")
    for i in range(DEPTH): kread(i)
    maxops = []
    def tile_max(t):
        ops = []
        b = vS + 16 * t
        if t == 0:
            ops.append(f"v_max3_f32 v{vM0}, v{b}, v{b+1}, v{b+2}")
            ops.append(f"v_max3_f32 v{vM1}, v{b+3}, v{b+4}, v{b+5}")
            rest = list(range(6, 16))
        else:
            rest = list(range(0, 16))
        for j in range(0, len(rest), 2):
            m = vM0 if (j // 2) % 2 == 0 else vM1
            ops.append(f"v_max3_f32 v{m}, v{m}, v{b+rest[j]}, v{b+rest[j+1]}")
        return ops
    pend = []
    for i in range(nfr):
        t, s = divmod(i, 8)
        if s == 4 and t >= 1: pend += tile_max(t - 1)
        out = min(i + DEPTH - 1, nfr - 1) - i
        e(f"s_waitcnt lgkmcnt({out})")
        r = vKR + 4 * (i % 8)
        d = vS + 16 * t
        cin = "0" if s == 0 else f"v[{d}:{d+15}]"
        e(f"v_mfma_f32_32x32x16_bf16 v[{d}:{d+15}], v[{r}:{r+3}], v[{vQ+4*s}:{vQ+4*s+3}], {cin}")
        if i + DEPTH < nfr: kread(i + DEPTH)
        n = 1 if i < nfr - 4 else 2
        for _ in range(n):
            if pend: e(pend.pop(0))
    stamp()
    e(f"s_cmp_eq_u32 s{sGrp}, 0")
    e("s_cbranch_scc1 L_nbxB")
    e("s_waitcnt vmcnt(0)")
    e("s_barrier")
    e.label("L_nbxB")
    if prio: e("s_setprio 0")
    assert not pend
    e("s_nop 9")
    for op in tile_max(7): e(op)
    e(f"v_max_f32 v{vM0}, v{vM0}, v{vM1}")
    e(f"v_mov_b32 v{vM1}, v{vM0}")
    e("s_nop 1")
    e(f"v_permlane32_swap_b32 v{vM0}, v{vM1}")
    e(f"v_max_f32 v{vM0}, v{vM0}, v{vM1}")
    e(f"v_mul_f32 v{vMC}, s{sC}, v{vM0}")
    npair = 64
    def fma(i):
        a = vS + 2 * i
        if pk:
            return [f"v_pk_fma_f32 v[{a}:{a+1}], v[{a}:{a+1}], s[{sCC}:{sCC+1}], v[{vMC}:{vMC+1}] neg_lo:[0,0,1] neg_hi:[0,0,1]"]
        return [f"v_fma_f32 v{a}, v{a}, s{sC}, -v{vMC}", f"v_fma_f32 v{a+1}, v{a+1}, s{sC}, -v{vMC}"]
    sCC = 38 + 0
    if pk:
        sCC = 90
        e(f"s_mov_b32 s{sCC}, s{sC}")
        e(f"s_mov_b32 s{sCC+1}, s{sC}")
        e(f"v_mov_b32 v{vMC+1}, v{vMC}")
    for op in fma(0): e(op)
    for op in fma(1): e(op)
    e(f"v_exp_f32 v{vS}, v{vS}")
    e(f"v_exp_f32 v{vS+1}, v{vS+1}")
    for i in range(npair):
        a = vS + 2 * i
        if i + 2 < npair:
            for op in fma(i + 2): e(op)
        if i + 1 < npair: e(f"v_exp_f32 v{a+2}, v{a+2}")
        if pk:
            if i + 1 < npair: e(f"v_exp_f32 v{a+3}, v{a+3}")
            if i == 0: e(f"v_pk_add_f32 v[{vL0}:{vL0+1}], v[{a}:{a+1}], 0")
            else: e(f"v_pk_add_f32 v[{vL0}:{vL0+1}], v[{vL0}:{vL0+1}], v[{a}:{a+1}]")
        else:
            if i == 0: e(f"v_mov_b32 v{vL0}, v{a}")
            else: e(f"v_add_f32 v{vL0}, v{vL0}, v{a}")
            if i + 1 < npair: e(f"v_exp_f32 v{a+3}, v{a+3}")
            if i == 0: e(f"v_mov_b32 v{vL1}, v{a+1}")
            else: e(f"v_add_f32 v{vL1}, v{vL1}, v{a+1}")
        e(f"v_cvt_pk_bf16_f32 v{vP+i}, v{a}, v{a+1}")
    e(f"v_add_f32 v{vL0}, v{vL0}, v{vL1}")
    e(f"v_mov_b32 v{vL1}, v{vL0}")
    e("s_nop 1")
    e(f"v_permlane32_swap_b32 v{vL0}, v{vL1}")
    e(f"v_add_f32 v{vL0}, v{vL0}, v{vL1}")
    e(f"v_rcp_f32 v{vInv}, v{vL0}")
    stamp()
    e(f"s_cmp_eq_u32 s{sGrp}, 1")
    e("s_cbranch_scc1 L_nbxA")
    e("s_waitcnt vmcnt(0)")
    e("s_barrier")
    e.label("L_nbxA")
    if prio: e("s_setprio 1")
    stamp()
    VD = 5
    lds_ops = []
    def vread(i):
        t, ks = divmod(i, 16)
        r = vVR + 4 * (i % 8)
        e(f"ds_read_b64_tr_b16 v[{r}:{r+1}], v{vVA+t} offset:{ks*4096}")
        e(f"ds_read_b64_tr_b16 v[{r+2}:{r+3}], v{vVA+t} offset:{ks*4096+2048}")
        lds_ops.append(("v", i)); lds_ops.append(("v", i))
    def wait_for(tag):
        last = max(j for j, x in enumerate(lds_ops) if x == tag)
        n = len(lds_ops) - 1 - last
        assert n <= 15, n
        e(f"s_waitcnt lgkmcnt({n})")
    def epi(t):
        ops = []
        b = vO + 16 * t
        pkd = vE + 8 * (t % 2)
        for n in range(2):
            for j in range(8):
                ops.append(("valu", f"v_mul_f32 v{b+8*n+j}, v{vInv}, v{b+8*n+j}"))
            for j in range(4):
                ops.append(("valu", f"v_cvt_pk_bf16_f32 v{pkd+4*n+j}, v{b+8*n+2*j}, v{b+8*n+2*j+1}"))
            if store == "direct":
                ops.append(("vm", f"buffer_store_dwordx4 v[{pkd+4*n}:{pkd+4*n+3}], v{vOG}, s[{SO}:{SO+3}], 0 offen offset:{64*t+32*n} {stflag}".rstrip()))
            else:
                x = (4 * (t % 2) + 2 * n) * 16
                ops.append(("valu", f"v_xor_b32 v{vOW+1}, {x}, v{vOW}"))
                ops.append(("ldsw", f"ds_write_b128 v{vOW+1}, v[{pkd+4*n}:{pkd+4*n+3}] offset:{(t//2)*4096}", ("ow", t, n)))
        if store != "direct" and t % 2 == 1:
            hf = t // 2
            tb = vE + 16
            ops.append(("waitl", ("ow", t, 1)))
            for m in range(4):
                ops.append(("ldsw", f"ds_read_b128 v[{tb+4*m}:{tb+4*m+3}], v{vOR} offset:{hf*4096 + m*1024}", ("or", t, m)))
            for m in range(4):
                ops.append(("waitl", ("or", t, m)))
                ops.append(("vm", f"buffer_store_dwordx4 v[{tb+4*m}:{tb+4*m+3}], v{vOG}, s[{SO}:{SO+3}], s{sStO+m} offen offset:{hf*128} {stflag}".rstrip()))
        return ops
    sStO = 92
    if store != "direct":
        for m in range(4): e(f"s_mov_b32 s{sStO+m}, {m*2048}")
    def emit_op(op):
        if op[0] in ("valu", "vm"): e(op[1])
        elif op[0] == "ldsw": e(op[1]); lds_ops.append(op[2])
        elif op[0] == "waitl": wait_for(op[1])
    for i in range(VD): vread(i)
    pend = []
    for i in range(64):
        t, ks = divmod(i, 16)
        if ks == 4 and t >= 1: pend += epi(t - 1)
        wait_for(("v", i))
        r = vVR + 4 * (i % 8)
        d = vO + 16 * t
        cin = "0" if ks == 0 else f"v[{d}:{d+15}]"
        e(f"v_mfma_f32_32x32x16_bf16 v[{d}:{d+15}], v[{r}:{r+3}], v[{vP+4*ks}:{vP+4*ks+3}], {cin}")
        if i + VD < 64: vread(i + VD)
        for _ in range(4):
            if pend: emit_op(pend.pop(0))
    while pend: emit_op(pend.pop(0))
    stamp()
    e("s_nop 11")
    for op in epi(3): emit_op(op)
    stamp()
    if stamps:
        e("s_waitcnt vmcnt(0)")
        stamp(); stamp(True)
        e("s_waitcnt lgkmcnt(0)")
        n = nst[0]
        if dbg:
            e("v_mov_b32 v1, 0")
            e("s_mov_b64 exec, 1")
            for slot, wg in enumerate((0, 255, 129)):
                e(f"s_cmp_lg_u32 s2, {wg}")
                e(f"s_cbranch_scc1 L_d{slot}")
                e(f"s_cmp_lg_u32 s{sW}, 0")
                e(f"s_cbranch_scc1 L_d{slot}b")
                e(f"v_mov_b32 v2, s{sStamp}")
                e(f"global_store_dword v1, v2, s[12:13] offset:{8*slot}")
                e.label(f"L_d{slot}b")
                e(f"s_cmp_lg_u32 s{sW}, 7")
                e(f"s_cbranch_scc1 L_d{slot}")
                e(f"v_mov_b32 v2, s{sStamp+2*(n-1)}")
                e(f"global_store_dword v1, v2, s[12:13] offset:{8*slot+4}")
                e.label(f"L_d{slot}")
            e("s_cmp_lg_u32 s2, 100")
            e("s_cbranch_scc1 L_end")
            e(f"s_cmp_lg_u32 s{sW}, {dbgwave}")
            e("s_cbranch_scc1 L_end")
            e(f"s_sub_u32 s{sTmp}, s{sStamp+2*(n-1)}, s{sStamp}")
            e(f"v_mov_b32 v2, s{sTmp}")
            e(f"global_store_dword v1, v2, s[12:13] offset:24")
            for jj, j in enumerate((2, 3, 4, 6, 7, 8, 10, 11, 12)):
                e(f"s_sub_u32 s{sTmp}, s{sStamp+2*j}, s{sStamp+2}")
                e(f"v_mov_b32 v2, s{sTmp}")
                e(f"global_store_dword v1, v2, s[12:13] offset:{28+4*jj}")
            e("s_endpgm")
        e(f"s_lshl_b32 s{sTmp}, s2, 3")
        e(f"s_add_u32 s{sTmp}, s{sTmp}, s{sW}")
        e(f"s_mul_i32 s{sTmp}, s{sTmp}, {n*8}")
        e(f"s_add_u32 s12, s12, s{sTmp}")
        e("s_addc_u32 s13, s13, 0")
        e("v_mov_b32 v1, 0")
        for j in range(n):
            e(f"v_mov_b32 v2, s{sStamp+2*j}")
            e(f"v_mov_b32 v3, s{sStamp+2*j+1}")
            e(f"global_store_dwordx2 v1, v[2:3], s[12:13] offset:{8*j}")
            e("s_nop 1")
        e.c(f"nstamps={n}")
    if spin:
        e("s_waitcnt vmcnt(0)")
        if enc == 99: e("s_memrealtime s[100:101]")
        e("s_waitcnt lgkmcnt(0)")
        if enc >= 0:
            e("s_sub_u32 s100, s100, s96")
            e("s_lshl_b32 s100, s100, 2")
            if encw >= 0:
                e(f"s_cmp_eq_u32 s{sGrp}, {encw}")
                e("s_cselect_b32 s100, s100, 0")
            e(f"s_add_u32 s100, s100, {spin}")
        else:
            e(f"s_mov_b32 s100, {spin}")
        e.label("L_spin")
        e("s_sleep 4")
        e("s_memrealtime s[98:99]")
        e("s_waitcnt lgkmcnt(0)")
        e("s_sub_u32 s98, s98, s96")
        e(f"s_cmp_lt_u32 s98, s100")
        e("s_cbranch_scc1 L_spin")
    e.label("L_end")
    e("s_endpgm")
    return HEADER + e.text() + FOOTER

if __name__ == "__main__":
    kw = {}
    out = sys.argv[1]
    for a in sys.argv[2:]:
        k, v = a.split("=", 1)
        if v in ("True", "False"): v = v == "True"
        elif v.isdigit(): v = int(v)
        kw[k] = v
    open(out, "w").write(gen(**kw))
```

```python
import sys, math, struct

def f32bits(x): return struct.unpack("<I", struct.pack("<f", x))[0]

class E:
    def __init__(self): self.l = []
    def __call__(self, s): self.l.append("    " + s)
    def label(self, s): self.l.append(s + ":")
    def c(self, s): self.l.append("    ; " + s)
    def text(self): return "\n".join(self.l) + "\n"

HEADER = """; GQA attention forward, B=8 Hq=32 Hkv=4 Sq=Sk=256 D=128, bf16 in/out.
; @launch grid=(256,1,1) block=(512,1,1) lds=163840
.amdgcn_target "amdgcn-amd-amdhsa--gfx950"
.text
.globl standalone__gqa_softmax__near_ridge_kernel
.p2align 8
.type standalone__gqa_softmax__near_ridge_kernel,@function
standalone__gqa_softmax__near_ridge_kernel:
"""
FOOTER = """
.section .rodata,"a"
.p2align 6
.amdhsa_kernel standalone__gqa_softmax__near_ridge_kernel
  .amdhsa_next_free_vgpr 256
  .amdhsa_next_free_sgpr 102
  .amdhsa_accum_offset 256
  .amdhsa_group_segment_fixed_size 0
  .amdhsa_kernarg_size 48
  .amdhsa_user_sgpr_count 2
  .amdhsa_user_sgpr_kernarg_segment_ptr 1
  .amdhsa_system_sgpr_workgroup_id_x 1
.end_amdhsa_kernel
"""

def gen(store="direct", stamps=False, stflag="", ldflagq="", ldflagkv="", prio=True, nkbar=4, pk=False, dbg=False, dbgwave=0, spin=0, enc=-1, encw=-1, allreal=False, pre="", preflag=""):
    e = E()
    sW = 3
    SQ, SK, SV, SO = 16, 20, 24, 28
    sQoff, sQlds, sTmp, sTmp2, sC, sGrp, sOlds = 32, 33, 34, 35, 36, 37, 38
    sStamp = 40
    nst = [0]
    npt = [0]
    def stamp(real=False):
        if npt[0] == enc: e("s_memrealtime s[100:101]")
        npt[0] += 1
        if not stamps: return
        r = sStamp + 2 * nst[0]; nst[0] += 1
        e(f"{'s_memrealtime' if (real or allreal) else 's_memtime'} s[{r}:{r+1}]")
    vLane = 0
    vKA = 8
    vVA = 16
    vDK, vDV = 20, 21
    vDQ = 22
    vM0, vM1, vL0, vL1, vT0, vT1, vMC, vInv = 26, 27, 28, 29, 30, 31, 32, 33
    vOW, vOR, vOG = 34, 36, 38
    vQA = 40
    vKR = 64
    vQ = 96
    vP = 64
    vS = 128
    vO = 128
    vVR = 192
    vE = 224

    e("s_cmp_ge_u32 s2, 256")
    e("s_cbranch_scc1 L_end")
    stamp(True); stamp()
    if spin: e("s_memrealtime s[96:97]")
    e("s_load_dwordx4 s[4:7], s[0:1], 0")
    e("s_load_dwordx4 s[8:11], s[0:1], 16")
    if stamps: e(f"s_load_dwordx2 s[12:13], s[0:1], {32 if dbg else 40}")
    e("v_lshrrev_b32 v1, 6, v0")
    e("v_and_b32 v0, 63, v0")
    e(f"v_readfirstlane_b32 s{sW}, v1")
    e("s_and_b32 s14, s2, 7")
    e("s_lshr_b32 s15, s2, 3")
    e(f"s_lshr_b32 s{sTmp}, s15, 3")
    e("s_lshl_b32 s14, s14, 2")
    e(f"s_add_u32 s14, s14, s{sTmp}")
    e("s_and_b32 s15, s15, 7")
    e(f"s_lshl_b32 s{sTmp}, s14, 3")
    e(f"s_add_u32 s15, s15, s{sTmp}")
    e("s_lshl_b32 s14, s14, 16")
    e("s_lshl_b32 s15, s15, 16")
    e("v_lshrrev_b32 v2, 4, v0")
    e("v_and_b32 v3, 15, v0")
    e("v_xor_b32 v4, v2, v3")
    e("v_lshlrev_b32 v4, 4, v4")
    e(f"v_lshl_add_u32 v{vDQ}, v2, 8, v4")
    for m in range(1, 4):
        e(f"v_xor_b32 v{vDQ+m}, {m*64}, v{vDQ}")
    e(f"s_and_b32 s{sTmp}, s{sW}, 3")
    e(f"s_lshl_b32 s{sTmp}, s{sTmp}, 6")
    e(f"s_lshl_b32 s{sTmp2}, s{sW}, 10")
    e(f"v_xor_b32 v{vDK}, s{sTmp}, v{vDQ}")
    e(f"v_add_u32 v{vDK}, s{sTmp2}, v{vDK}")
    e("v_lshlrev_b32 v4, 2, v2")
    e("v_xor_b32 v4, v4, v3")
    e("v_lshlrev_b32 v4, 4, v4")
    e(f"v_lshl_add_u32 v{vDV}, v2, 8, v4")
    e(f"s_lshl_b32 s{sQoff}, s{sW}, 13")
    e(f"s_cmp_ge_u32 s{sW}, 4")
    e(f"s_cselect_b32 s{sGrp}, 1, 0")
    e(f"s_cselect_b32 s{sTmp}, 1, 2")
    e(f"s_lshl_b32 s{sTmp}, s{sTmp}, 16")
    e(f"s_add_u32 s{sQlds}, s{sTmp}, s{sQoff}")
    e(f"s_sub_u32 s{sTmp}, s{sQoff}, 0x8000")
    e(f"s_cmp_ge_u32 s{sW}, 4")
    e(f"s_cselect_b32 s{sOlds}, s{sTmp}, s{sQlds}")
    e("s_waitcnt lgkmcnt(0)")
    stamp()
    for (srd, p, off) in ((SQ, 4, 15), (SK, 6, 14), (SV, 8, 14), (SO, 10, 15)):
        e(f"s_add_u32 s{srd}, s{p}, s{off}")
        e(f"s_addc_u32 s{srd+1}, s{p+1}, 0")
        e(f"s_mov_b32 s{srd+2}, 0x10000")
        e(f"s_mov_b32 s{srd+3}, 0x20000")

    if pre == "w":
        e("v_lshlrev_b32 v7, 4, v0")
        e(f"s_add_u32 s{sTmp2}, s{sQoff}, 4096")
        for n in range(8):
            e(f"buffer_store_dwordx4 v[64:67], v7, s[{SO}:{SO+3}], s{sQoff if n < 4 else sTmp2} offen offset:{(n%4)*1024} {preflag}")
        e("s_waitcnt vmcnt(0)")
        e("s_memrealtime s[100:101]")
        e("s_barrier")
    if pre == "wh":
        e("v_lshrrev_b32 v4, 3, v0")
        e("v_and_b32 v5, 7, v0")
        e("v_lshlrev_b32 v5, 4, v5")
        e("v_lshl_add_u32 v7, v4, 8, v5")
        e(f"v_add_u32 v7, s{sQoff}, v7")
        for hf in range(2):
            for m in range(4):
                e(f"s_mov_b32 s{sTmp2}, {m*2048}")
                e(f"buffer_store_dwordx4 v[64:67], v7, s[{SO}:{SO+3}], s{sTmp2} offen offset:{hf*128} {preflag}")
        e("s_waitcnt vmcnt(0)")
        e("s_memrealtime s[100:101]")
        e("s_barrier")
    if pre == "r":
        e("v_lshlrev_b32 v7, 4, v0")
        e(f"s_add_u32 s{sTmp2}, s{sQoff}, 4096")
        for n in range(8):
            e(f"buffer_load_dwordx4 v[{64+4*n}:{67+4*n}], v7, s[{SQ}:{SQ+3}], s{sQoff if n < 4 else sTmp2} offen offset:{(n%4)*1024} {preflag}")
        e("s_waitcnt vmcnt(0)")
        e("s_memrealtime s[100:101]")
        e("s_barrier")
    def dma_tile(srd, vaddrs, sLds, sOff, flag):
        e(f"s_mov_b32 m0, s{sLds}")
        e(f"s_add_u32 s{sTmp2}, s{sOff}, 4096")
        for n in range(4):
            e(f"buffer_load_dwordx4 v{vaddrs[n]}, s[{srd}:{srd+3}], s{sOff} offen offset:{n*1024} {flag} lds".rstrip())
        e(f"s_add_u32 m0, s{sLds}, 4096")
        e("s_nop 0")
        for n in range(4):
            e(f"buffer_load_dwordx4 v{vaddrs[n]}, s[{srd}:{srd+3}], s{sTmp2} offen offset:{n*1024} {flag} lds".rstrip())
    def dma_q(): dma_tile(SQ, [vDQ, vDQ+1, vDQ+2, vDQ+3], sQlds, sQoff, ldflagq)
    def dma_k():
        e(f"s_lshl_b32 s{sTmp}, s{sW}, 10")
        for t in range(8):
            e(f"s_add_u32 m0, s{sTmp}, {t*8192}")
            e(f"s_mov_b32 s{sTmp2}, {t*8192}")
            e(f"buffer_load_dwordx4 v{vDK}, s[{SK}:{SK+3}], s{sTmp2} offen {ldflagkv} lds".rstrip())
    def dma_v():
        e(f"s_add_u32 s{sTmp}, s{sQoff}, 0x10000")
        dma_tile(SV, [vDV]*4, sTmp, sQoff, ldflagkv)
    def addr_setup():
        e("v_and_b32 v2, 31, v0")
        e("v_lshrrev_b32 v3, 5, v0")
        e("v_and_b32 v4, 15, v0")
        e("v_xor_b32 v4, v4, v3")
        e("v_lshlrev_b32 v4, 4, v4")
        e(f"v_lshl_add_u32 v{vKA}, v2, 8, v4")
        for s in range(1, 8):
            e(f"v_xor_b32 v{vKA+s}, {s*32}, v{vKA}")
        for s in range(8):
            e(f"v_add_u32 v{vQA+s}, s{sQlds}, v{vKA+s}")
        e("v_bfe_u32 v4, v0, 2, 2")
        e("v_lshl_add_u32 v5, v3, 2, v4")
        e("v_lshlrev_b32 v5, 8, v5")
        e("v_lshl_add_u32 v5, v4, 6, v5")
        e("v_bfe_u32 v6, v0, 4, 1")
        e("v_lshl_add_u32 v5, v6, 5, v5")
        e("v_and_b32 v6, 1, v0")
        e("v_lshl_add_u32 v5, v6, 4, v5")
        e("v_bfe_u32 v6, v0, 1, 1")
        e("v_lshl_add_u32 v5, v6, 3, v5")
        e(f"v_add_u32 v{vVA}, 0x10000, v5")
        for t in range(1, 4):
            e(f"v_xor_b32 v{vVA+t}, {t*64}, v{vVA}")
        if store == "direct":
            e("v_lshlrev_b32 v5, 8, v2")
            e("v_lshl_add_u32 v5, v3, 4, v5")
            e(f"v_add_u32 v{vOG}, s{sQoff}, v5")
        elif store == "full":
            e("v_and_b32 v4, 15, v0")
            e("v_xor_b32 v4, v4, v3")
            e("v_lshlrev_b32 v4, 4, v4")
            e("v_lshl_add_u32 v4, v2, 8, v4")
            e(f"v_add_u32 v{vOW}, s{sOlds}, v4")
            e("v_lshrrev_b32 v4, 4, v0")
            e("v_and_b32 v5, 15, v0")
            e("v_xor_b32 v6, v4, v5")
            e("v_lshlrev_b32 v6, 4, v6")
            e("v_lshl_add_u32 v6, v4, 8, v6")
            e(f"v_add_u32 v{vOR}, s{sOlds}, v6")
            e("v_lshlrev_b32 v5, 4, v0")
            e(f"v_add_u32 v{vOG}, s{sQoff}, v5")
        else:
            e("v_and_b32 v4, 7, v0")
            e("v_xor_b32 v4, v4, v3")
            e("v_lshlrev_b32 v4, 4, v4")
            e("v_lshl_add_u32 v4, v2, 7, v4")
            e(f"v_add_u32 v{vOW}, s{sOlds}, v4")
            e("v_lshrrev_b32 v4, 3, v0")
            e("v_and_b32 v5, 7, v0")
            e("v_xor_b32 v6, v4, v5")
            e("v_lshlrev_b32 v6, 4, v6")
            e("v_lshl_add_u32 v6, v4, 7, v6")
            e(f"v_add_u32 v{vOR}, s{sOlds}, v6")
            e("v_lshlrev_b32 v5, 4, v5")
            e("v_lshl_add_u32 v5, v4, 8, v5")
            e(f"v_add_u32 v{vOG}, s{sQoff}, v5")
        e(f"s_mov_b32 s{sC}, {hex(f32bits(math.log2(math.e) / math.sqrt(128.0)))}")
    def read_q():
        for s in range(8):
            e(f"ds_read_b128 v[{vQ+4*s}:{vQ+4*s+3}], v{vQA+s}")

    tiles_per_bar = 8 // nkbar
    e(f"s_cmp_eq_u32 s{sGrp}, 1")
    e("s_cbranch_scc1 L_proB")
    dma_q(); stamp(); dma_k(); stamp(); dma_v()
    stamp()
    addr_setup()
    e(f"s_waitcnt vmcnt({16 - tiles_per_bar})")
    e("s_barrier")
    stamp()
    read_q()
    e("s_branch L_qk")
    e.label("L_proB")
    if stamps: nst[0] -= 4
    npt[0] -= 4
    dma_k(); stamp(); dma_q(); stamp()
    stamp()
    addr_setup()
    for b in range(nkbar):
        e(f"s_waitcnt vmcnt({16 - tiles_per_bar*(b+1)})")
        e("s_barrier")
    e("s_waitcnt vmcnt(0)")
    stamp()
    read_q()
    e("s_waitcnt lgkmcnt(0)")
    dma_v()
    e.label("L_qk")
    if prio: e("s_setprio 1")
    DEPTH = 6
    nfr = 64
    def kread(i):
        t, s = divmod(i, 8)
        if s == 0 and t > 0 and t % tiles_per_bar == 0:
            b = t // tiles_per_bar
            e(f"s_cmp_eq_u32 s{sGrp}, 1")
            e(f"s_cbranch_scc1 L_nb{b}")
            e(f"s_waitcnt vmcnt({16 - tiles_per_bar*(b+1)})")
            e("s_barrier")
            e.label(f"L_nb{b}")
        r = vKR + 4 * (i % 8)
        e(f"ds_read_b128 v[{r}:{r+3}], v{vKA+s} offset:{t*8192}")
    for i in range(DEPTH): kread(i)
    maxops = []
    def tile_max(t):
        ops = []
        b = vS + 16 * t
        if t == 0:
            ops.append(f"v_max3_f32 v{vM0}, v{b}, v{b+1}, v{b+2}")
            ops.append(f"v_max3_f32 v{vM1}, v{b+3}, v{b+4}, v{b+5}")
            rest = list(range(6, 16))
        else:
            rest = list(range(0, 16))
        for j in range(0, len(rest), 2):
            m = vM0 if (j // 2) % 2 == 0 else vM1
            ops.append(f"v_max3_f32 v{m}, v{m}, v{b+rest[j]}, v{b+rest[j+1]}")
        return ops
    pend = []
    for i in range(nfr):
        t, s = divmod(i, 8)
        if s == 4 and t >= 1: pend += tile_max(t - 1)
        out = min(i + DEPTH - 1, nfr - 1) - i
        e(f"s_waitcnt lgkmcnt({out})")
        r = vKR + 4 * (i % 8)
        d = vS + 16 * t
        cin = "0" if s == 0 else f"v[{d}:{d+15}]"
        e(f"v_mfma_f32_32x32x16_bf16 v[{d}:{d+15}], v[{r}:{r+3}], v[{vQ+4*s}:{vQ+4*s+3}], {cin}")
        if i + DEPTH < nfr: kread(i + DEPTH)
        n = 1 if i < nfr - 4 else 2
        for _ in range(n):
            if pend: e(pend.pop(0))
    stamp()
    e(f"s_cmp_eq_u32 s{sGrp}, 0")
    e("s_cbranch_scc1 L_nbxB")
    e("s_waitcnt vmcnt(0)")
    e("s_barrier")
    e.label("L_nbxB")
    if prio: e("s_setprio 0")
    assert not pend
    e("s_nop 9")
    for op in tile_max(7): e(op)
    e(f"v_max_f32 v{vM0}, v{vM0}, v{vM1}")
    e(f"v_mov_b32 v{vM1}, v{vM0}")
    e("s_nop 1")
    e(f"v_permlane32_swap_b32 v{vM0}, v{vM1}")
    e(f"v_max_f32 v{vM0}, v{vM0}, v{vM1}")
    e(f"v_mul_f32 v{vMC}, s{sC}, v{vM0}")
    npair = 64
    def fma(i):
        a = vS + 2 * i
        if pk:
            return [f"v_pk_fma_f32 v[{a}:{a+1}], v[{a}:{a+1}], s[{sCC}:{sCC+1}], v[{vMC}:{vMC+1}] neg_lo:[0,0,1] neg_hi:[0,0,1]"]
        return [f"v_fma_f32 v{a}, v{a}, s{sC}, -v{vMC}", f"v_fma_f32 v{a+1}, v{a+1}, s{sC}, -v{vMC}"]
    sCC = 38 + 0
    if pk:
        sCC = 90
        e(f"s_mov_b32 s{sCC}, s{sC}")
        e(f"s_mov_b32 s{sCC+1}, s{sC}")
        e(f"v_mov_b32 v{vMC+1}, v{vMC}")
    for op in fma(0): e(op)
    for op in fma(1): e(op)
    e(f"v_exp_f32 v{vS}, v{vS}")
    e(f"v_exp_f32 v{vS+1}, v{vS+1}")
    for i in range(npair):
        a = vS + 2 * i
        if i + 2 < npair:
            for op in fma(i + 2): e(op)
        if i + 1 < npair: e(f"v_exp_f32 v{a+2}, v{a+2}")
        if pk:
            if i + 1 < npair: e(f"v_exp_f32 v{a+3}, v{a+3}")
            if i == 0: e(f"v_pk_add_f32 v[{vL0}:{vL0+1}], v[{a}:{a+1}], 0")
            else: e(f"v_pk_add_f32 v[{vL0}:{vL0+1}], v[{vL0}:{vL0+1}], v[{a}:{a+1}]")
        else:
            if i == 0: e(f"v_mov_b32 v{vL0}, v{a}")
            else: e(f"v_add_f32 v{vL0}, v{vL0}, v{a}")
            if i + 1 < npair: e(f"v_exp_f32 v{a+3}, v{a+3}")
            if i == 0: e(f"v_mov_b32 v{vL1}, v{a+1}")
            else: e(f"v_add_f32 v{vL1}, v{vL1}, v{a+1}")
        e(f"v_cvt_pk_bf16_f32 v{vP+i}, v{a}, v{a+1}")
    e(f"v_add_f32 v{vL0}, v{vL0}, v{vL1}")
    e(f"v_mov_b32 v{vL1}, v{vL0}")
    e("s_nop 1")
    e(f"v_permlane32_swap_b32 v{vL0}, v{vL1}")
    e(f"v_add_f32 v{vL0}, v{vL0}, v{vL1}")
    e(f"v_rcp_f32 v{vInv}, v{vL0}")
    stamp()
    e(f"s_cmp_eq_u32 s{sGrp}, 1")
    e("s_cbranch_scc1 L_nbxA")
    e("s_waitcnt vmcnt(0)")
    e("s_barrier")
    e.label("L_nbxA")
    if prio: e("s_setprio 1")
    stamp()
    VD = 5
    lds_ops = []
    def vread(i):
        t, ks = divmod(i, 16)
        r = vVR + 4 * (i % 8)
        e(f"ds_read_b64_tr_b16 v[{r}:{r+1}], v{vVA+t} offset:{ks*4096}")
        e(f"ds_read_b64_tr_b16 v[{r+2}:{r+3}], v{vVA+t} offset:{ks*4096+2048}")
        lds_ops.append(("v", i)); lds_ops.append(("v", i))
    def wait_for(tag):
        last = max(j for j, x in enumerate(lds_ops) if x == tag)
        n = len(lds_ops) - 1 - last
        assert n <= 15, n
        e(f"s_waitcnt lgkmcnt({n})")
    def epi(t):
        ops = []
        b = vO + 16 * t
        pkd = vE + 8 * (t % 2)
        for n in range(2):
            for j in range(8):
                ops.append(("valu", f"v_mul_f32 v{b+8*n+j}, v{vInv}, v{b+8*n+j}"))
            for j in range(4):
                ops.append(("valu", f"v_cvt_pk_bf16_f32 v{pkd+4*n+j}, v{b+8*n+2*j}, v{b+8*n+2*j+1}"))
            if store == "direct":
                ops.append(("vm", f"buffer_store_dwordx4 v[{pkd+4*n}:{pkd+4*n+3}], v{vOG}, s[{SO}:{SO+3}], 0 offen offset:{64*t+32*n} {stflag}".rstrip()))
            elif store == "full":
                x = (4 * t + 2 * n) * 16
                ops.append(("valu", f"v_xor_b32 v{vOW+1}, {x}, v{vOW}"))
                ops.append(("ldsw", f"ds_write_b128 v{vOW+1}, v[{pkd+4*n}:{pkd+4*n+3}]", ("ow", t, n)))
            else:
                x = (4 * (t % 2) + 2 * n) * 16
                ops.append(("valu", f"v_xor_b32 v{vOW+1}, {x}, v{vOW}"))
                ops.append(("ldsw", f"ds_write_b128 v{vOW+1}, v[{pkd+4*n}:{pkd+4*n+3}] offset:{(t//2)*4096}", ("ow", t, n)))
        if store == "full" and t == 3:
            tb = 128
            ops.append(("waitl", ("ow", t, 1)))
            for m in range(8):
                ops.append(("valu", f"v_xor_b32 v{vOR+1}, {(m%4)*64}, v{vOR}"))
                ops.append(("ldsw", f"ds_read_b128 v[{tb+4*m}:{tb+4*m+3}], v{vOR+1} offset:{m*1024}", ("or", t, m)))
            for m in range(8):
                ops.append(("waitl", ("or", t, m)))
                ops.append(("vm", f"buffer_store_dwordx4 v[{tb+4*m}:{tb+4*m+3}], v{vOG}, s[{SO}:{SO+3}], s{sStO+2*(m//4)} offen offset:{(m%4)*1024} {stflag}".rstrip()))
        if store == "lds" and t % 2 == 1:
            hf = t // 2
            tb = vE + 16
            ops.append(("waitl", ("ow", t, 1)))
            for m in range(4):
                ops.append(("ldsw", f"ds_read_b128 v[{tb+4*m}:{tb+4*m+3}], v{vOR} offset:{hf*4096 + m*1024}", ("or", t, m)))
            for m in range(4):
                ops.append(("waitl", ("or", t, m)))
                ops.append(("vm", f"buffer_store_dwordx4 v[{tb+4*m}:{tb+4*m+3}], v{vOG}, s[{SO}:{SO+3}], s{sStO+m} offen offset:{hf*128} {stflag}".rstrip()))
        return ops
    sStO = 92
    if store != "direct":
        for m in range(4): e(f"s_mov_b32 s{sStO+m}, {m*2048}")
    def emit_op(op):
        if op[0] in ("valu", "vm"): e(op[1])
        elif op[0] == "ldsw": e(op[1]); lds_ops.append(op[2])
        elif op[0] == "waitl": wait_for(op[1])
    for i in range(VD): vread(i)
    pend = []
    for i in range(64):
        t, ks = divmod(i, 16)
        if ks == 4 and t >= 1: pend += epi(t - 1)
        wait_for(("v", i))
        r = vVR + 4 * (i % 8)
        d = vO + 16 * t
        cin = "0" if ks == 0 else f"v[{d}:{d+15}]"
        e(f"v_mfma_f32_32x32x16_bf16 v[{d}:{d+15}], v[{r}:{r+3}], v[{vP+4*ks}:{vP+4*ks+3}], {cin}")
        if i + VD < 64: vread(i + VD)
        for _ in range(4):
            if pend: emit_op(pend.pop(0))
    while pend: emit_op(pend.pop(0))
    stamp()
    e("s_nop 11")
    for op in epi(3): emit_op(op)
    stamp()
    if stamps:
        e("s_waitcnt vmcnt(0)")
        stamp(); stamp(True)
        e("s_waitcnt lgkmcnt(0)")
        n = nst[0]
        if dbg:
            e("v_mov_b32 v1, 0")
            e("s_mov_b64 exec, 1")
            for slot, wg in enumerate((0, 255, 129)):
                e(f"s_cmp_lg_u32 s2, {wg}")
                e(f"s_cbranch_scc1 L_d{slot}")
                e(f"s_cmp_lg_u32 s{sW}, 0")
                e(f"s_cbranch_scc1 L_d{slot}b")
                e(f"v_mov_b32 v2, s{sStamp}")
                e(f"global_store_dword v1, v2, s[12:13] offset:{8*slot}")
                e.label(f"L_d{slot}b")
                e(f"s_cmp_lg_u32 s{sW}, 7")
                e(f"s_cbranch_scc1 L_d{slot}")
                e(f"v_mov_b32 v2, s{sStamp+2*(n-1)}")
                e(f"global_store_dword v1, v2, s[12:13] offset:{8*slot+4}")
                e.label(f"L_d{slot}")
            e("s_cmp_lg_u32 s2, 100")
            e("s_cbranch_scc1 L_end")
            e(f"s_cmp_lg_u32 s{sW}, {dbgwave}")
            e("s_cbranch_scc1 L_end")
            e(f"s_sub_u32 s{sTmp}, s{sStamp+2*(n-1)}, s{sStamp}")
            e(f"v_mov_b32 v2, s{sTmp}")
            e(f"global_store_dword v1, v2, s[12:13] offset:24")
            for jj, j in enumerate((2, 3, 4, 6, 7, 8, 10, 11, 12)):
                e(f"s_sub_u32 s{sTmp}, s{sStamp+2*j}, s{sStamp+2}")
                e(f"v_mov_b32 v2, s{sTmp}")
                e(f"global_store_dword v1, v2, s[12:13] offset:{28+4*jj}")
            e("s_endpgm")
        e(f"s_lshl_b32 s{sTmp}, s2, 3")
        e(f"s_add_u32 s{sTmp}, s{sTmp}, s{sW}")
        e(f"s_mul_i32 s{sTmp}, s{sTmp}, {n*8}")
        e(f"s_add_u32 s12, s12, s{sTmp}")
        e("s_addc_u32 s13, s13, 0")
        e("v_mov_b32 v1, 0")
        for j in range(n):
            e(f"v_mov_b32 v2, s{sStamp+2*j}")
            e(f"v_mov_b32 v3, s{sStamp+2*j+1}")
            e(f"global_store_dwordx2 v1, v[2:3], s[12:13] offset:{8*j}")
            e("s_nop 1")
        e.c(f"nstamps={n}")
    if spin:
        e("s_waitcnt vmcnt(0)")
        if enc == 99: e("s_memrealtime s[100:101]")
        e("s_waitcnt lgkmcnt(0)")
        if enc >= 0:
            e("s_sub_u32 s100, s100, s96")
            e("s_lshl_b32 s100, s100, 2")
            if encw >= 0:
                e(f"s_cmp_eq_u32 s{sGrp}, {encw}")
                e("s_cselect_b32 s100, s100, 0")
            e(f"s_add_u32 s100, s100, {spin}")
        else:
            e(f"s_mov_b32 s100, {spin}")
        e.label("L_spin")
        e("s_sleep 4")
        e("s_memrealtime s[98:99]")
        e("s_waitcnt lgkmcnt(0)")
        e("s_sub_u32 s98, s98, s96")
        e(f"s_cmp_lt_u32 s98, s100")
        e("s_cbranch_scc1 L_spin")
    e.label("L_end")
    e("s_endpgm")
    return HEADER + e.text() + FOOTER

if __name__ == "__main__":
    kw = {}
    out = sys.argv[1]
    for a in sys.argv[2:]:
        k, v = a.split("=", 1)
        if v in ("True", "False"): v = v == "True"
        elif v.isdigit(): v = int(v)
        kw[k] = v
    open(out, "w").write(gen(**kw))
```

```python
import sys, math, struct
from gen1 import E, FOOTER, f32bits
import hz

HEADER = """; GQA attention forward, B=8 Hq=32 Hkv=4 Sq=Sk=256 D=128, bf16 in/out.
; @launch grid=(256,1,1) block=(512,1,1) lds=163840
.amdgcn_target "amdgcn-amd-amdhsa--gfx950"
.text
.globl standalone__gqa_softmax__near_ridge_kernel
.p2align 8
.type standalone__gqa_softmax__near_ridge_kernel,@function
standalone__gqa_softmax__near_ridge_kernel:
"""

def gen(stamps=False, allreal=False, stflag="sc1", prioA=1, prioB=0, gates="0,0,1,2,6,8,10", lw=3, order="", D=12, LAT=160,
        spin=0, enc=-1, encw=-1, codepf=True, rot=True, needs="1,3,5,7,9,11,13,16", thr=2.0**30, forcefb=False, verbose=False, tailmode=0, barpos=1):
    e = E()
    sW = 3
    SQ, SK, SV, SO = 16, 20, 24, 28
    sProg, sRot, sT, sT2, sQoff, sGate, sT3 = 32, 33, 34, 35, 36, 37, 14
    sMask = 38
    sStO = 92
    sStamp = 40
    nst = [0]; npt = [0]
    def stamp(real=False):
        if npt[0] == enc: e("s_memrealtime s[100:101]")
        npt[0] += 1
        if not stamps: return
        r = sStamp + 2 * nst[0]; nst[0] += 1
        assert r + 1 < 92
        e(f"{'s_memrealtime' if (real or allreal) else 's_memtime'} s[{r}:{r+1}]")
    vKA = 8; vVA = 16
    vQO, vOW, vOW2, vOR, vOG, vFl, vBit = 20, 21, 22, 23, 24, 25, 26
    vM0, vM1, vNM, vC, vL0, vL1, vMT, vInv, vTmp = 27, 28, 29, 30, 31, 32, 33, 34, 35
    vDK, vDV = 40, 44
    vT = 40
    vP = 48
    vQ = 56
    vS = 88
    vO = 120
    vKR = 184; RK = 8
    vVR = 216; RV = 8
    FLAG = 163840 - 4096
    gl = [int(x) for x in gates.split(",")]
    assert len(gl) == 7 and max(gl) <= 15
    gatelit = sum(g << (4 * w) for w, g in enumerate(gl))
    if order: units = [(u[0], int(u[1])) for u in order.split(",")]
    else:
        units = [("K", 0)]
        for i in range(1, 8): units += [("K", i), ("V", i - 1)]
        units += [("V", 7)]
    assert len(units) == 16
    need = {u: n + 1 for n, u in enumerate(units)}

    e("s_cmp_ge_u32 s2, 256")
    e("s_cbranch_scc1 L_end")
    stamp(True); stamp()
    if spin: e("s_memrealtime s[96:97]")
    e("s_load_dwordx4 s[4:7], s[0:1], 0")
    e("s_load_dwordx4 s[8:11], s[0:1], 16")
    if stamps: e("s_load_dwordx2 s[12:13], s[0:1], 40")
    e("v_lshrrev_b32 v1, 6, v0")
    e("v_and_b32 v0, 63, v0")
    e(f"v_readfirstlane_b32 s{sW}, v1")
    e("s_and_b32 s14, s2, 7")
    e("s_lshr_b32 s15, s2, 3")
    e(f"s_lshr_b32 s{sT}, s15, 3")
    e("s_lshl_b32 s14, s14, 2")
    e(f"s_add_u32 s14, s14, s{sT}")
    e("s_and_b32 s15, s15, 7")
    if rot: e(f"s_lshl_b32 s{sRot}, s15, 13")
    else: e(f"s_mov_b32 s{sRot}, 0")
    e(f"s_lshl_b32 s{sT}, s14, 3")
    e(f"s_add_u32 s15, s15, s{sT}")
    e("s_lshl_b32 s14, s14, 16")
    e("s_lshl_b32 s15, s15, 16")
    e(f"v_mov_b32 v{vFl}, {FLAG}")
    e(f"s_cmp_eq_u32 s{sW}, 7")
    e("s_cbranch_scc1 L_loader")
    def srd(r, p, off):
        e(f"s_add_u32 s{r}, s{p}, s{off}")
        e(f"s_addc_u32 s{r+1}, s{p+1}, 0")
        e(f"s_mov_b32 s{r+2}, 0x10000")
        e(f"s_mov_b32 s{r+3}, 0x20000")
    def q_addr():
        e(f"s_lshl_b32 s{sQoff}, s{sW}, 13")
        e("v_and_b32 v2, 31, v0")
        e("v_lshrrev_b32 v3, 5, v0")
        e("v_lshlrev_b32 v4, 8, v2")
        e(f"v_lshl_add_u32 v{vQO}, v3, 4, v4")
    def q_load():
        for s in (0, 4, 1, 5, 2, 6, 3, 7):
            e(f"buffer_load_dwordx4 v[{vQ+4*s}:{vQ+4*s+3}], v{vQO}, s[{SQ}:{SQ+3}], s{sQoff} offen offset:{s*32}")
    stubs = []
    def check(n, tag, cmp=True):
        if cmp: e(f"s_cmp_ge_u32 s{sProg}, {n}")
        e(f"s_cbranch_scc0 L_poll_{tag}")
        e.label(f"L_ret_{tag}")
        stubs.append((tag, str(n)))
    if codepf:
        e(f"s_cmp_lg_u32 s{sW}, 6")
        e("s_cbranch_scc1 L_nopf")
        e("s_getpc_b64 s[18:19]")
        e("v_lshlrev_b32 v2, 7, v0")
        e("v_mov_b32 v3, s19")
        e("v_add_co_u32 v2, vcc, s18, v2")
        e("s_nop 1")
        e("v_addc_co_u32 v3, vcc, 0, v3, vcc")
        e("global_load_dword v4, v[2:3], off")
        e("v_add_co_u32 v2, vcc, 0x2000, v2")
        e("s_nop 1")
        e("v_addc_co_u32 v3, vcc, 0, v3, vcc")
        e("v_cmp_gt_u32 vcc, CODE_PF2, v0")
        e("s_and_saveexec_b64 s[18:19], vcc")
        e("global_load_dword v5, v[2:3], off")
        e("s_mov_b64 exec, s[18:19]")
        e.label("L_nopf")
    q_addr()
    e(f"s_lshl_b32 s{sT}, s{sW}, 2")
    e(f"s_lshr_b32 s{sGate}, {hex(gatelit)}, s{sT}")
    e(f"s_and_b32 s{sGate}, s{sGate}, 15")
    e(f"s_mov_b32 s{sProg}, 0")
    e("s_waitcnt lgkmcnt(0)")
    stamp()
    srd(SQ, 4, 15)
    e(f"s_cmp_eq_u32 s{sGate}, 0")
    e("s_cbranch_scc1 L_qnow")
    e("s_barrier")
    e.label("L_gate")
    e(f"ds_read_b32 v{vTmp}, v{vFl}")
    e("s_waitcnt lgkmcnt(0)")
    e(f"v_readfirstlane_b32 s{sProg}, v{vTmp}")
    e(f"s_cmp_ge_u32 s{sProg}, s{sGate}")
    e("s_cbranch_scc0 L_gate")
    q_load()
    e("s_branch L_common")
    e.label("L_qnow")
    q_load()
    e("s_barrier")
    e("s_branch L_common")
    e.label("L_loader")
    e("v_mov_b32 v2, 0")
    e("v_mov_b32 v3, 0")
    e(f"ds_write_b64 v{vFl}, v[2:3]")
    e("v_lshrrev_b32 v2, 4, v0")
    e("v_and_b32 v3, 15, v0")
    e("v_xor_b32 v4, v2, v3")
    e("v_lshlrev_b32 v4, 4, v4")
    e(f"v_lshl_add_u32 v{vDK}, v2, 8, v4")
    for m in range(1, 4): e(f"v_xor_b32 v{vDK+m}, {m*64}, v{vDK}")
    e("v_lshlrev_b32 v4, 2, v2")
    e("v_xor_b32 v4, v4, v3")
    e("v_lshlrev_b32 v4, 4, v4")
    e(f"v_lshl_add_u32 v{vDV}, v2, 8, v4")
    npt[0] -= 1; nst[0] -= 1 if stamps else 0
    e("s_waitcnt lgkmcnt(0)")
    stamp()
    srd(SK, 6, 14)
    def unit(n):
        kind, i = units[n]
        base = (0 if kind == "K" else 0x10000) + i * 8192
        r = SK if kind == "K" else SV
        va = [vDK + m for m in range(4)] if kind == "K" else [vDV] * 4
        if i == 0: e(f"s_mov_b32 s{sT}, s{sRot}")
        else:
            e(f"s_add_u32 s{sT}, s{sRot}, {i*8192}")
            e(f"s_and_b32 s{sT}, s{sT}, 0xffff")
        e(f"s_mov_b32 m0, {base}")
        e(f"s_add_u32 s{sT2}, s{sT}, 4096")
        for m in range(4): e(f"buffer_load_dwordx4 v{va[m]}, s[{r}:{r+3}], s{sT} offen offset:{m*1024} lds")
        e(f"s_mov_b32 m0, {base+4096}")
        e("s_nop 0")
        for m in range(4): e(f"buffer_load_dwordx4 v{va[m]}, s[{r}:{r+3}], s{sT2} offen offset:{m*1024} lds")
    def signal(p):
        e(f"v_mov_b32 v2, {p}")
        e(f"ds_write_b32 v{vFl}, v2")
    for n in range(16):
        if n == 1: srd(SV, 8, 14)
        if n == barpos: e("s_barrier")
        if n >= lw:
            e(f"s_waitcnt vmcnt({8*(lw-1)})")
            signal(n - lw + 1)
        unit(n)
    srd(SQ, 4, 15)
    q_addr()
    q_load()
    for p in range(16 - lw + 1, 17):
        e(f"s_waitcnt vmcnt({8*(16-p)+8})")
        signal(p)
    e(f"s_mov_b32 s{sProg}, 16")
    e.label("L_common")
    stamp()
    srd(SO, 10, 15)
    e("v_and_b32 v2, 31, v0")
    e("v_lshrrev_b32 v3, 5, v0")
    e("v_and_b32 v4, 15, v0")
    e("v_xor_b32 v4, v4, v3")
    e("v_lshlrev_b32 v4, 4, v4")
    e(f"v_lshl_add_u32 v{vKA}, v2, 8, v4")
    for s in range(1, 8): e(f"v_xor_b32 v{vKA+s}, {s*32}, v{vKA}")
    e("v_bfe_u32 v4, v0, 2, 2")
    e("v_lshl_add_u32 v5, v3, 2, v4")
    e("v_lshlrev_b32 v5, 8, v5")
    e("v_lshl_add_u32 v5, v4, 6, v5")
    e("v_bfe_u32 v6, v0, 4, 1")
    e("v_lshl_add_u32 v5, v6, 5, v5")
    e("v_and_b32 v6, 1, v0")
    e("v_lshl_add_u32 v5, v6, 4, v5")
    e("v_bfe_u32 v6, v0, 1, 1")
    e("v_lshl_add_u32 v5, v6, 3, v5")
    e(f"v_add_u32 v{vVA}, 0x10000, v5")
    for t in range(1, 4): e(f"v_xor_b32 v{vVA+t}, {t*64}, v{vVA}")
    e(f"s_lshl_b32 s{sT}, s{sW}, 12")
    e(f"s_add_u32 s{sT}, s{sT}, 0x20000")
    e("v_and_b32 v4, 7, v0")
    e("v_xor_b32 v4, v4, v3")
    e("v_lshlrev_b32 v4, 4, v4")
    e("v_lshl_add_u32 v4, v2, 7, v4")
    e(f"v_add_u32 v{vOW}, s{sT}, v4")
    e("v_lshrrev_b32 v4, 3, v0")
    e("v_and_b32 v5, 7, v0")
    e("v_xor_b32 v6, v4, v5")
    e("v_lshlrev_b32 v6, 4, v6")
    e("v_lshl_add_u32 v6, v4, 7, v6")
    e(f"v_add_u32 v{vOR}, s{sT}, v6")
    e("v_lshlrev_b32 v5, 4, v5")
    e("v_lshl_add_u32 v5, v4, 8, v5")
    e(f"v_add_u32 v{vOG}, s{sQoff}, v5")
    for m in range(4): e(f"s_mov_b32 s{sStO+m}, {m*2048}")
    e(f"s_lshl_b32 s{sT}, 1, s{sW}")
    e(f"v_mov_b32 v{vBit}, s{sT}")
    e(f"v_mov_b32 v{vC}, {hex(f32bits(math.log2(math.e) / math.sqrt(128.0)))}")
    e(f"v_mov_b32 v{vMT}, 0xff800000")
    e(f"s_mov_b64 s[{sMask}:{sMask+1}], -1")
    if prioA != prioB or prioA:
        e(f"s_setprio {prioA}")
        e(f"s_cmp_ge_u32 s{sW}, 4")
        e("s_cbranch_scc0 L_prio")
        e(f"s_setprio {prioB}")
        e.label("L_prio")
    e.label("L_main")
    mf = []
    def QK(i, s): mf.append(dict(ty="Q", i=i, s=s))
    def PV(i, k, t): mf.append(dict(ty="P", i=i, k=k, t=t))
    for s in range(8): QK(0, s)
    for s in range(8): QK(1, s)
    for s in range(4): PV(0, 0, s)
    for p in range(1, 8):
        for s in range(8):
            if p + 1 <= 7: QK(p + 1, s)
            if tailmode == 1 and p == 7: continue
            if s < 4:
                if p >= 1: PV(p - 1, 1, s)
            else: PV(p, 0, s - 4)
    if tailmode == 1:
        for t in range(4): PV(6, 1, t); PV(7, 0, t); PV(7, 1, t)
    else:
        for t in range(4): PV(7, 1, t)
    assert len(mf) == 128
    nq = npv = 0
    for m in mf:
        if m["ty"] == "Q":
            m["slot"] = nq % RK; m["seq"] = nq; nq += 1
            r = vKR + 4 * m["slot"]
            m["reads"] = [f"ds_read_b128 v[{r}:{r+3}], v{vKA+m['s']} offset:{m['i']*8192}"]
            m["unit"] = ("K", m["i"])
            d = vS + 16 * (m["i"] % 2)
            m["text"] = f"v_mfma_f32_32x32x16_bf16 v[{d}:{d+15}], v[{r}:{r+3}], v[{vQ+4*m['s']}:{vQ+4*m['s']+3}], " + ("0" if m["s"] == 0 else f"v[{d}:{d+15}]")
            m["tag"] = ("Q", m["i"], m["s"])
            m["deps"] = [(("f", m["i"] - 2, 15), 0)] if (m["s"] == 0 and m["i"] >= 2) else []
        else:
            m["slot"] = npv % RV; m["seq"] = npv; npv += 1
            r = vVR + 4 * m["slot"]
            ks = 2 * m["i"] + m["k"]
            m["reads"] = [f"ds_read_b64_tr_b16 v[{r}:{r+1}], v{vVA+m['t']} offset:{ks*4096}",
                          f"ds_read_b64_tr_b16 v[{r+2}:{r+3}], v{vVA+m['t']} offset:{ks*4096+2048}"]
            m["unit"] = ("V", m["i"])
            d = vO + 16 * m["t"]
            pb = vP + 4 * m["k"]
            if tailmode == 1 and (m["i"], m["k"]) == (7, 1): pb = vS + 16 * 0
            m["text"] = f"v_mfma_f32_32x32x16_bf16 v[{d}:{d+15}], v[{r}:{r+3}], v[{pb}:{pb+3}], " + ("0" if ks == 0 else f"v[{d}:{d+15}]")
            m["tag"] = ("P", m["i"], m["k"], m["t"])
            m["deps"] = [(("c", m["i"], 4 * m["k"] + 3), 2)]
    q = []
    def V(text, cost=4, tag=None, deps=(), kind="valu"): q.append(dict(text=text, cost=cost, tag=tag, deps=list(deps), kind=kind))
    b = vS
    V(f"v_max3_f32 v{vM0}, v{b}, v{b+1}, v{b+2}", deps=[(("Q", 0, 7), 12)])
    V(f"v_max3_f32 v{vM1}, v{b+3}, v{b+4}, v{b+5}")
    for j in range(6, 16, 2):
        m = vM0 if (j // 2) % 2 == 1 else vM1
        V(f"v_max3_f32 v{m}, v{m}, v{b+j}, v{b+j+1}")
    V(f"v_max3_f32 v{vM0}, v{vM0}, v{vM1}, v{vMT}")
    V(f"v_mov_b32 v{vM1}, v{vM0}", tag="mv")
    V(f"v_permlane32_swap_b32 v{vM0}, v{vM1}", deps=[("mv", 2)])
    V(f"v_max_f32 v{vM0}, v{vM0}, v{vM1}")
    V(f"v_mul_f32 v{vNM}, {hex(f32bits(-math.log2(math.e) / math.sqrt(128.0)))}, v{vM0}")
    pendc = None
    for p in range(8):
        for u in range(8):
            sa = vS + 16 * (p % 2) + 2 * u
            ta = vT + 2 * (u % 4)
            if pendc: V(**pendc); pendc = None
            V(f"v_fma_f32 v{ta}, v{sa}, v{vC}, v{vNM}", tag=("f", p, 2 * u), deps=[(("Q", p, 7), 12)] if u == 0 else [])
            V(f"v_fma_f32 v{ta+1}, v{sa+1}, v{vC}, v{vNM}", tag=("f", p, 2 * u + 1))
            V(f"v_exp_f32 v{ta}, v{ta}", cost=8)
            V(f"v_exp_f32 v{ta+1}, v{ta+1}", cost=8)
            first = (p == 0 and u == 0)
            V(f"v_mov_b32 v{vL0}, v{ta}" if first else f"v_add_f32 v{vL0}, v{vL0}, v{ta}")
            pr = vP + u
            if tailmode == 1 and p == 7 and u >= 4: pr = vS + (u - 4)
            cdeps = []
            if p >= 1:
                if not (tailmode == 1 and p == 7 and u >= 4): cdeps = [(("P", p - 1, u // 4, 3), 0)]
            cv = dict(text=f"v_cvt_pk_bf16_f32 v{pr}, v{ta}, v{ta+1}", tag=("c", p, u), deps=cdeps)
            if p == 7 and u == 7: V(**cv)
            else: pendc = cv
            V(f"v_mov_b32 v{vL1}, v{ta+1}" if first else f"v_add_f32 v{vL1}, v{vL1}, v{ta+1}")
    V(f"v_add_f32 v{vL0}, v{vL0}, v{vL1}")
    V(f"v_mov_b32 v{vL1}, v{vL0}", tag="mv2")
    V(f"v_permlane32_swap_b32 v{vL0}, v{vL1}", deps=[("mv2", 2)])
    V(f"v_add_f32 v{vL0}, v{vL0}, v{vL1}")
    V(f"v_cmp_nge_f32 vcc, {hex(f32bits(-1.0 if forcefb else thr))}, v{vL0}")
    V(f"v_rcp_f32 v{vInv}, v{vL0}", cost=8, tag="rcp")
    V(f"s_and_b64 vcc, vcc, s[{sMask}:{sMask+1}]", kind="salu")
    V(f"s_cmp_eq_u32 s{sW}, 7", kind="salu")
    V("s_cbranch_vccnz L_fb", kind="salu")
    V("s_cbranch_scc1 L_ackpoll", kind="salu")
    V("L_ackret:", kind="label", cost=0)
    lastP = {t: [m for m in mf if m["ty"] == "P" and m["t"] == t][-1]["tag"] for t in range(4)}
    for t in range(4):
        ob = vO + 16 * t
        pk = vS + 16 + 8 * (t % 2)
        for n in range(2):
            for j in range(8):
                V(f"v_mul_f32 v{ob+8*n+j}, v{vInv}, v{ob+8*n+j}", deps=[(lastP[t], 12), ("rcp", 1)] if (n == 0 and j == 0) else [])
            x = (4 * (t % 2) + 2 * n) * 16
            if x: V(f"v_xor_b32 v{vOW2}, {x}, v{vOW}")
            for j in range(4): V(f"v_cvt_pk_bf16_f32 v{pk+4*n+j}, v{ob+8*n+2*j}, v{ob+8*n+2*j+1}")
            if t == 2 and n == 0: V(None, kind="waitl", tag=("or", 0, 3))
            V(f"ds_write_b128 v{vOW2 if x else vOW}, v[{pk+4*n}:{pk+4*n+3}]", kind="lds", tag=("ow", t, n))
        if t % 2 == 1:
            hf = t // 2
            tb = vKR + 16 * hf
            V(None, kind="waitl", tag=("ow", t, 1))
            for m in range(4): V(f"ds_read_b128 v[{tb+4*m}:{tb+4*m+3}], v{vOR} offset:{m*1024}", kind="lds", tag=("or", hf, m))
            if hf == 1:
                for m in range(4):
                    V(None, kind="waitl", tag=("or", hf, m))
                    V(f"buffer_store_dwordx4 v[{tb+4*m}:{tb+4*m+3}], v{vOG}, s[{SO}:{SO+3}], s{sStO+m} offen offset:{hf*128} {stflag}".rstrip(), kind="vm")
        if t == 2:
            tb = vKR
            for m in range(4):
                V(f"buffer_store_dwordx4 v[{tb+4*m}:{tb+4*m+3}], v{vOG}, s[{SO}:{SO+3}], s{sStO+m} offen offset:0 {stflag}".rstrip(), kind="vm")
    pos = {}
    ni = [0]; t = [0]
    lds = []
    covered = [-1]
    last_kind = [None]
    def emit(text, cost, tag=None, kind="valu"):
        if kind == "lds" and last_kind[0] == "valu": cost += 8
        e(text);
        if tag is not None: pos[tag] = ni[0]
        ni[0] += 1; t[0] += cost; last_kind[0] = kind
    def deps_ok(deps): return all(d in pos and ni[0] - pos[d] - 1 >= n for d, n in deps)
    def deps_emitted(deps): return all(d in pos for d, n in deps)
    def pad(deps):
        k = max(n - (ni[0] - pos[d] - 1) for d, n in deps)
        if k > 0:
            e(f"s_nop {k-1}"); ni[0] += k; t[0] += 4 * k; last_kind[0] = "salu"
    def wait_lds(tag, greedy):
        last = max(j for j, x in enumerate(lds) if x[0] == tag)
        if last <= covered[0]: return
        if greedy:
            while last + 1 < len(lds) and lds[last + 1][1] <= t[0] - LAT: last += 1
        n = len(lds) - 1 - last
        if n > 15: last = len(lds) - 1 - 15; n = 15
        t[0] = max(t[0], lds[last][1] + 100)
        emit(f"s_waitcnt lgkmcnt({n})", 4, kind="salu")
        covered[0] = last
    checked = [0]; cmpd = [0]
    needl = [int(x) for x in needs.split(",")]
    def precmp():
        for j in range(rp[0], min(rp[0] + 2, 128)):
            nd = need[mf[j]["unit"]]
            if nd > checked[0]:
                nd = min(x for x in needl if x >= nd)
                if cmpd[0] != nd and j > rp[0]:
                    emit(f"s_cmp_ge_u32 s{sProg}, {nd}", 4, kind="salu"); cmpd[0] = nd
                return
    rp = [0]
    def can_read(n_issued):
        if rp[0] >= 128: return False
        m = mf[rp[0]]
        if rp[0] > n_issued + D: return False
        R = RK if m["ty"] == "Q" else RV
        prev = [x for x in mf if x["ty"] == m["ty"] and x["seq"] == m["seq"] - R]
        if prev and prev[0]["tag"] not in pos: return False
        if len(lds) - 1 - covered[0] + len(m["reads"]) > 24: return False
        return True
    def do_read():
        m = mf[rp[0]]
        nd = need[m["unit"]]
        if nd > checked[0]:
            nd = min(x for x in needl if x >= nd)
            if cmpd[0] == nd: check(nd, f"{nd}", False); ni[0] += 1; t[0] += 6
            else: check(nd, f"{nd}"); ni[0] += 2; t[0] += 24
            last_kind[0] = "salu"
            checked[0] = nd
            if nd == 16:
                emit(f"ds_or_b32 v{vFl}, v{vBit} offset:4", 4, kind="lds"); lds.append((("ack",), t[0]))
        for r in m["reads"]:
            emit(r, 4, kind="lds"); lds.append((("A", rp[0]), t[0]))
        rp[0] += 1
    def emit_q():
        o = q.pop(0)
        if o["kind"] == "waitl": wait_lds(o["tag"], False)
        elif o["kind"] == "label": e.label(o["text"][:-1])
        elif o["kind"] == "lds": emit(o["text"], o["cost"], o["tag"], "lds"); lds.append((o["tag"], t[0]))
        else: emit(o["text"], o["cost"], o["tag"], o["kind"])
    while can_read(-3 + 0) and rp[0] < RK: do_read()
    e("s_waitcnt vmcnt(0)"); ni[0] += 1
    stamp()
    pipe = 0
    log = []
    for n, m in enumerate(mf):
        while True:
            if not deps_emitted(m["deps"]):
                o = q[0]
                if not deps_ok(o["deps"]):
                    assert deps_emitted(o["deps"]), (m["tag"], o)
                    pad(o["deps"])
                emit_q(); continue
            if q and deps_ok(q[0]["deps"]) and (t[0] + q[0]["cost"] <= pipe or not deps_ok(m["deps"])):
                emit_q(); continue
            break
        if not deps_ok(m["deps"]): pad(m["deps"])
        while rp[0] <= n: do_read()
        wait_lds(("A", n), True)
        precmp()
        t[0] = max(t[0], pipe)
        log.append((n, m["tag"], t[0]))
        pipe = t[0] + 32
        emit(m["text"], 8, m["tag"], "mfma")
        k = 0
        while can_read(n) and k < 2:
            k += len(mf[rp[0]]["reads"]); do_read()
        if stamps and m["tag"] in (("Q", 0, 7), ("P", 3, 0, 0), ("Q", 7, 7)): stamp(); ni[0] += 1; t[0] += 4
        elif m["tag"] in (("Q", 0, 7), ("P", 3, 0, 0), ("Q", 7, 7)): stamp()
    stamp()
    while q:
        o = q[0]
        if not deps_ok(o["deps"]): pad(o["deps"])
        emit_q()
    if verbose:
        for x in log: sys.stderr.write(f"{x}\n")
        sys.stderr.write(f"model end t={t[0]}\n")
    stamp()
    if stamps:
        e("s_waitcnt vmcnt(0)")
        stamp(); stamp(True)
        e("s_waitcnt lgkmcnt(0)")
        n = nst[0]
        e.c(f"nstamps={n}")
        e(f"s_lshl_b32 s{sT}, s2, 3")
        e(f"s_add_u32 s{sT}, s{sT}, s{sW}")
        e(f"s_mul_i32 s{sT}, s{sT}, {n*8}")
        e(f"s_add_u32 s12, s12, s{sT}")
        e("s_addc_u32 s13, s13, 0")
        e("v_mov_b32 v1, 0")
        for j in range(n):
            e(f"v_mov_b32 v2, s{sStamp+2*j}")
            e(f"v_mov_b32 v3, s{sStamp+2*j+1}")
            e(f"global_store_dwordx2 v1, v[2:3], s[12:13] offset:{8*j}")
            e("s_nop 1")
    if spin:
        e("s_waitcnt vmcnt(0)")
        if enc == 99: e("s_memrealtime s[100:101]")
        e("s_waitcnt lgkmcnt(0)")
        if enc >= 0:
            e("s_sub_u32 s100, s100, s96")
            e("s_lshl_b32 s100, s100, 2")
            if encw >= 0:
                e(f"s_cmp_eq_u32 s{sW}, {encw}")
                e("s_cselect_b32 s100, s100, 0")
            e(f"s_add_u32 s100, s100, {spin}")
        else: e(f"s_mov_b32 s100, {spin}")
        e.label("L_spin")
        e("s_sleep 4")
        e("s_memrealtime s[98:99]")
        e("s_waitcnt lgkmcnt(0)")
        e("s_sub_u32 s98, s98, s96")
        e("s_cmp_lt_u32 s98, s100")
        e("s_cbranch_scc1 L_spin")
    e.label("L_end")
    e("s_endpgm")
    for tag, n in stubs:
        e.label(f"L_poll_{tag}")
        e(f"ds_read_b32 v{vTmp}, v{vFl}")
        e("s_waitcnt lgkmcnt(0)")
        e(f"v_readfirstlane_b32 s{sProg}, v{vTmp}")
        e(f"s_cmp_ge_u32 s{sProg}, {n}")
        e(f"s_cbranch_scc0 L_poll_{tag}")
        e(f"s_branch L_ret_{tag}")
    e.label("L_ackpoll")
    e(f"ds_read_b32 v{vTmp}, v{vFl} offset:4")
    e("s_waitcnt lgkmcnt(0)")
    e(f"v_readfirstlane_b32 s{sT}, v{vTmp}")
    e(f"s_cmp_eq_u32 s{sT}, 0xff")
    e("s_cbranch_scc0 L_ackpoll")
    e("s_branch L_ackret")
    e.label("L_codeend")
    e.label("L_fb")
    e("s_waitcnt lgkmcnt(0)")
    e("s_nop 15")
    e(f"s_mov_b64 s[{sMask}:{sMask+1}], 0")
    e(f"v_mov_b32 v{vBit}, 0")
    e(f"s_mov_b32 s{sT}, 0")
    e.label("L_fbloop")
    for s in range(8): e(f"ds_read_b128 v[{vKR+4*s}:{vKR+4*s+3}], v{vKA+s}")
    e("s_waitcnt lgkmcnt(0)")
    for s in range(8):
        e(f"v_mfma_f32_32x32x16_bf16 v[{vS}:{vS+15}], v[{vKR+4*s}:{vKR+4*s+3}], v[{vQ+4*s}:{vQ+4*s+3}], " + ("0" if s == 0 else f"v[{vS}:{vS+15}]"))
    for s in range(8): e(f"v_add_u32 v{vKA+s}, 0x2000, v{vKA+s}")
    e("s_nop 7")
    for j in range(0, 16, 2): e(f"v_max3_f32 v{vMT}, v{vMT}, v{vS+j}, v{vS+j+1}")
    e(f"s_add_u32 s{sT}, s{sT}, 1")
    e(f"s_cmp_lt_u32 s{sT}, 8")
    e("s_cbranch_scc1 L_fbloop")
    for s in range(8): e(f"v_subrev_u32 v{vKA+s}, 0x10000, v{vKA+s}")
    e("s_branch L_main")
    text = e.text()
    errs = hz.check(text.split("\n"))
    for x in errs: sys.stderr.write(x + "\n")
    pre = ".set CODE_PF2, ((L_codeend - standalone__gqa_softmax__near_ridge_kernel - 0x2000) >> 7) + 1\n" if codepf else ""
    return HEADER + text + pre + FOOTER

if __name__ == "__main__":
    kw = {}
    out = sys.argv[1]
    for a in sys.argv[2:]:
        k, v = a.split("=", 1)
        if v in ("True", "False"): v = v == "True"
        elif v.lstrip("-").isdigit(): v = int(v)
        kw[k] = v
    open(out, "w").write(gen(**kw))
```

```python
import re
def regs(tok):
    tok = tok.strip().lstrip("-")
    tok = tok.replace("abs(", "").replace(")", "").strip("|")
    m = re.fullmatch(r"([vsa])(\d+)", tok)
    if m: return {(m.group(1), int(m.group(2)))}
    m = re.fullmatch(r"([vsa])\[(\d+):(\d+)\]", tok)
    if m: return {(m.group(1), i) for i in range(int(m.group(2)), int(m.group(3)) + 1)}
    if tok == "vcc": return {("s", "vcc")}
    if tok == "m0": return {("s", "m0")}
    if tok == "exec": return {("s", "exec")}
    return set()
TRANS = ("v_exp_", "v_log_", "v_rcp_", "v_rsq_", "v_sqrt_", "v_sin_", "v_cos_")
def parse(line):
    line = line.split(";")[0].strip()
    if not line or line.endswith(":") or line.startswith("."): return None
    parts = line.split(None, 1)
    mn = parts[0]
    ops = []
    if len(parts) > 1:
        ops = [x.strip() for x in re.split(r",\s*(?![^\[]*\])", parts[1])]
        ops[-1:] = ops[-1].split()[:1] + ops[-1].split()[1:] if ops else []
    w, r = set(), set()
    kind = "other"
    if mn.startswith("v_mfma"):
        kind = "mfma"; w = regs(ops[0]); a = regs(ops[1]) | regs(ops[2]); c = regs(ops[3]); r = a | c
        return dict(mn=mn, kind=kind, w=w, r=r, ab=a, c=c, line=line, passes=8 if "32x32x16" in mn else 4)
    if mn.startswith("v_"):
        kind = "valu"
        if mn.startswith("v_cmp"): w = regs(ops[0]); r = set().union(*[regs(o) for o in ops[1:]])
        elif mn.startswith("v_permlane") and "swap" in mn: w = regs(ops[0]) | regs(ops[1]); r = set(w)
        elif mn.startswith(("v_add_co", "v_addc_co", "v_sub_co")): w = regs(ops[0]) | regs(ops[1]); r = set().union(*[regs(o) for o in ops[2:]])
        else:
            w = regs(ops[0]); r = set().union(*[regs(o) for o in ops[1:]]) if len(ops) > 1 else set()
            if mn.startswith(("v_fmac", "v_dot2c")): r |= w
            if mn.startswith("v_cndmask") and len(ops) == 3: r |= {("s", "vcc")}
    elif mn.startswith("ds_"):
        kind = "ds"
        if mn.startswith("ds_read"): w = regs(ops[0]); r = regs(ops[1])
        else: r = set().union(*[regs(o) for o in ops])
    elif mn.startswith(("buffer_", "global_")):
        kind = "vmem"
        toks = line.split()
        if "lds" in toks: r = set().union(*[regs(o) for o in ops]) | {("s", "m0")}
        elif "load" in mn: w = regs(ops[0]); r = set().union(*[regs(o) for o in ops[1:]])
        else: r = set().union(*[regs(o) for o in ops])
    elif mn.startswith("s_"):
        kind = "salu"
        if mn.startswith(("s_cmp", "s_cbranch", "s_branch", "s_waitcnt", "s_nop", "s_barrier", "s_setprio", "s_endpgm", "s_sleep", "s_setpc")):
            r = set().union(*[regs(o) for o in ops]) if ops else set()
        else:
            w = regs(ops[0]) if ops else set(); r = set().union(*[regs(o) for o in ops[1:]]) if len(ops) > 1 else set()
    return dict(mn=mn, kind=kind, w=w, r=r, line=line)
def states(i):
    if i["mn"] == "s_nop": return int(i["line"].split()[1]) + 1
    return 1
def check(lines, window=24):
    ins = [p for p in (parse(l) for l in lines) if p]
    errs = []
    for n, b in enumerate(ins):
        dist = 0
        for m in range(n - 1, max(-1, n - window - 1), -1):
            a = ins[m]
            if a["mn"] in ("s_branch", "s_endpgm", "s_setpc_b64"): break
            need = 0
            vw = {x for x in a["w"] if x[0] in "va"}
            sw = {x for x in a["w"] if x[0] == "s"}
            if a["kind"] == "mfma":
                P = a["passes"]
                full = {8: 12, 4: 8}[P]; part = {8: 10, 4: 6}[P]; war = {8: 7, 4: 3}[P]
                if b["kind"] == "mfma":
                    if vw & b["ab"]: need = full
                    if vw & b["c"] and not (b["c"] == a["w"] and b["passes"] == P): need = max(need, part)
                    if vw & b["w"] and not (b["c"] == a["w"] and b["w"] == a["w"]): need = max(need, full)
                elif b["kind"] in ("valu", "ds", "vmem"):
                    if vw & (b["r"] | b["w"]): need = full
                    if b["kind"] == "valu" and a["c"] & b["w"]: need = max(need, war)
            elif a["kind"] == "valu":
                if b["kind"] == "mfma" and vw & b["r"]: need = 2
                if a["mn"].startswith(TRANS) and b["kind"] in ("valu",) and not b["mn"].startswith(TRANS) and vw & b["r"]: need = max(need, 1)
                if a["mn"].startswith(TRANS) and b["kind"] in ("mfma",) and vw & b["r"]: need = max(need, 2)
                if b["mn"].startswith("v_permlane") and vw & b["r"]: need = max(need, 2)
                if b["mn"].startswith(("v_readfirstlane", "v_readlane")) and vw & b["r"]: need = max(need, 1)
                if b["kind"] == "vmem" and sw & b["r"]: need = max(need, 5)
                if b["kind"] == "valu" and sw & b["r"]: need = max(need, 2)
                if b["mn"].startswith("s_cbranch_vcc") and ("s", "vcc") in sw: need = max(need, 0)
            elif a["kind"] == "salu":
                if ("s", "m0") in sw and b["kind"] == "vmem" and ("s", "m0") in b["r"]: need = 1
            elif a["kind"] == "vmem" and "store" in a["mn"] and ("x4" in a["mn"] or "x3" in a["mn"]):
                if b["kind"] == "valu" and (a["r"] & b["w"]): need = 2
                elif (a["r"] & b["w"]): need = 1
            if dist < need: errs.append(f"hazard need {need} have {dist}:\n    {a['line']}\n    {b['line']}")
            dist += states(a)
    return errs
if __name__ == "__main__":
    import sys
    for e in check(open(sys.argv[1]).read().split("\n")): print(e)
```

```python
import sys, math, struct
from gen1 import E, FOOTER, f32bits
from gen2 import HEADER
import hz
CC = math.log2(math.e) / math.sqrt(128.0)

def gen(stamps=False, allreal=False, stflag="sc1", prioA=1, prioB=0, needs="1,3,5,9,16", ahead=5, qh1=16, qh2=-1,
        nsA=4, nsB=2, D=12, LAT=160, spin=0, enc=-1, encw=-1, codepf=True, thr=2.0**30, forcefb=False, verbose=False,
        ldq="", ldkv="", align=0):
    e = E()
    sW = 3
    SQ, SK, SV, SO = 16, 20, 24, 28
    sT, sT2, sQoff, sBuf, sW2, sT3 = 32, 33, 34, 35, 36, 37
    sMask = 38
    sStO = 92
    sStamp = 40
    nst = [0]; npt = [0]
    def stamp(real=False):
        if npt[0] == enc: e("s_memrealtime s[100:101]")
        npt[0] += 1
        if not stamps: return False
        r = sStamp + 2 * nst[0]; nst[0] += 1
        assert r + 1 < 92
        e(f"{'s_memrealtime' if (real or allreal) else 's_memtime'} s[{r}:{r+1}]")
        return True
    vKA = 8; vVA = 16
    vQA = 20
    vOW, vOW2, vOR, vOG = 24, 25, 26, 27
    vM0, vM1, vNM, vC, vL0, vL1, vMT, vInv = 28, 29, 30, 31, 32, 33, 34, 35
    vDQ, vDK, vDV = 36, 38, 7
    vT = 40
    vQ = 48
    vS = 80
    units = [("K", 0)]
    for i in range(1, 8): units += [("K", i), ("V", i - 1)]
    units += [("V", 7)]
    need = {u: n + 1 for n, u in enumerate(units)}
    needl = [int(x) for x in needs.split(",")]
    assert needl[0] >= 1 and needl[-1] == 16

    e("s_cmp_ge_u32 s2, 256")
    e("s_cbranch_scc1 L_end")
    stamp(True); stamp()
    if spin: e("s_memrealtime s[96:97]")
    e("s_load_dwordx4 s[4:7], s[0:1], 0")
    e("s_load_dwordx4 s[8:11], s[0:1], 16")
    if stamps: e("s_load_dwordx2 s[12:13], s[0:1], 40")
    e("v_lshrrev_b32 v1, 6, v0")
    e("v_and_b32 v0, 63, v0")
    e("s_lshr_b32 s15, s2, 3")
    e(f"v_readfirstlane_b32 s{sW}, v1")
    if codepf:
        e("s_getpc_b64 s[18:19]")
        e(f"s_lshl_b32 s{sT}, s15, 9")
        e(f"s_add_u32 s18, s18, s{sT}")
        e("s_addc_u32 s19, s19, 0")
        e("v_and_b32 v2, 3, v0")
        e("v_lshlrev_b32 v2, 7, v2")
        e("global_load_dword v1, v2, s[18:19]")
    e("s_and_b32 s14, s2, 7")
    e(f"s_lshr_b32 s{sT}, s15, 3")
    e("s_lshl_b32 s14, s14, 2")
    e(f"s_add_u32 s14, s14, s{sT}")
    e("s_and_b32 s15, s15, 7")
    e(f"s_lshl_b32 s{sT}, s14, 3")
    e(f"s_add_u32 s15, s15, s{sT}")
    e("s_lshl_b32 s14, s14, 16")
    e("s_lshl_b32 s15, s15, 16")
    e("v_lshrrev_b32 v2, 4, v0")
    e("v_and_b32 v3, 15, v0")
    e("v_xor_b32 v4, v2, v3")
    e("v_lshlrev_b32 v4, 4, v4")
    e(f"v_lshl_add_u32 v{vDK}, v2, 8, v4")
    e(f"s_and_b32 s{sW2}, s{sW}, 3")
    e(f"s_lshl_b32 s{sT}, s{sW2}, 6")
    e(f"v_xor_b32 v5, s{sT}, v{vDK}")
    e("v_and_b32 v3, 7, v0")
    e("v_xor_b32 v3, v2, v3")
    e("v_lshlrev_b32 v3, 4, v3")
    e("v_lshrrev_b32 v4, 3, v0")
    e(f"v_lshl_add_u32 v{vDQ}, v4, 8, v3")
    e(f"v_xor_b32 v{vDQ+1}, 64, v{vDQ}")
    e(f"s_lshl_b32 s{sT}, s{sW}, 10")
    e(f"s_lshl_b32 s{sQoff}, s{sW2}, 13")
    e(f"s_lshr_b32 s{sT3}, s{sW}, 2")
    e(f"s_lshl_b32 s{sBuf}, s{sT3}, 12")
    e(f"s_add_u32 s{sBuf}, s{sBuf}, s{sQoff}")
    e(f"s_add_u32 s{sBuf}, s{sBuf}, 0x20000")
    e(f"s_lshl_b32 s{sT3}, s{sT3}, 7")
    e(f"s_add_u32 s{sT3}, s{sT3}, s{sQoff}")
    e(f"s_mov_b32 m0, s{sT}")
    def srd(r, p, off):
        e(f"s_add_u32 s{r}, s{p}, s{off}")
        e(f"s_addc_u32 s{r+1}, s{p+1}, 0")
    for r in (SQ, SK):
        e(f"s_mov_b32 s{r+2}, 0x10000")
        e(f"s_mov_b32 s{r+3}, 0x20000")
    e("s_waitcnt lgkmcnt(0)")
    stamp()
    srd(SK, 6, 14)
    e(f"buffer_load_dwordx4 v5, s[{SK}:{SK+3}], s{sT} offen {ldkv} lds")
    srd(SQ, 4, 15)
    def q_half(sSrc):
        for m in range(4):
            if m == 0: e(f"s_mov_b32 m0, s{sBuf}")
            else: e(f"s_add_u32 m0, s{sBuf}, {m*1024}")
            if m == 0: e("s_nop 0")
            else: e(f"s_add_u32 s{sT}, s{sSrc}, {m*2048}")
            e(f"buffer_load_dwordx4 v{vDQ+(m&1)}, s[{SQ}:{SQ+3}], s{sSrc if m == 0 else sT} offen {ldq} lds")
    q_half(sT3)
    stamp()
    e(f"s_lshl_b32 s{sQoff}, s{sW}, 13")
    e(f"s_cmp_lt_u32 s{sW}, 4")
    e("s_cbranch_scc1 L_A")

    def setup():
        srd(SO, 10, 15)
        e(f"s_mov_b32 s{SO+2}, 0x10000")
        e(f"s_mov_b32 s{SO+3}, 0x20000")
        e("v_and_b32 v2, 31, v0")
        e("v_lshrrev_b32 v3, 5, v0")
        e("v_and_b32 v4, 15, v0")
        e("v_xor_b32 v4, v4, v3")
        e("v_lshlrev_b32 v4, 4, v4")
        e(f"v_lshl_add_u32 v{vKA}, v2, 8, v4")
        for s in range(1, 8): e(f"v_xor_b32 v{vKA+s}, {s*32}, v{vKA}")
        e("v_bfe_u32 v4, v0, 1, 3")
        e("v_xor_b32 v4, v4, v3")
        e("v_lshlrev_b32 v4, 4, v4")
        e("v_lshl_add_u32 v4, v2, 7, v4")
        e(f"v_add_u32 v{vQA}, s{sBuf}, v4")
        for s in range(1, 4): e(f"v_xor_b32 v{vQA+s}, {s*32}, v{vQA}")
        e("v_bfe_u32 v4, v0, 2, 2")
        e("v_lshl_add_u32 v5, v3, 2, v4")
        e("v_lshlrev_b32 v5, 8, v5")
        e("v_lshl_add_u32 v5, v4, 6, v5")
        e("v_bfe_u32 v6, v0, 4, 1")
        e("v_lshl_add_u32 v5, v6, 5, v5")
        e("v_and_b32 v6, 1, v0")
        e("v_lshl_add_u32 v5, v6, 4, v5")
        e("v_bfe_u32 v6, v0, 1, 1")
        e("v_lshl_add_u32 v5, v6, 3, v5")
        e(f"v_add_u32 v{vVA}, 0x10000, v5")
        for t in range(1, 4): e(f"v_xor_b32 v{vVA+t}, {t*64}, v{vVA}")
        e("v_and_b32 v4, 7, v0")
        e("v_xor_b32 v4, v4, v3")
        e("v_lshlrev_b32 v4, 4, v4")
        e("v_lshl_add_u32 v4, v2, 7, v4")
        e(f"v_add_u32 v{vOW}, s{sBuf}, v4")
        e("v_lshrrev_b32 v4, 3, v0")
        e("v_and_b32 v5, 7, v0")
        e("v_xor_b32 v6, v4, v5")
        e("v_lshlrev_b32 v6, 4, v6")
        e("v_lshl_add_u32 v6, v4, 7, v6")
        e(f"v_add_u32 v{vOR}, s{sBuf}, v6")
        e("v_lshlrev_b32 v5, 4, v5")
        e("v_lshl_add_u32 v5, v4, 8, v5")
        e(f"v_add_u32 v{vOG}, s{sQoff}, v5")
        for m in range(4): e(f"s_mov_b32 s{sStO+m}, {m*2048}")
        e(f"v_mov_b32 v{vC}, {hex(f32bits(CC))}")
        e(f"v_mov_b32 v{vMT}, 0xff800000")
        e(f"s_mov_b64 s[{sMask}:{sMask+1}], -1")

    srd(SV, 8, 14)
    e(f"s_mov_b32 s{SV+2}, 0x10000")
    e(f"s_mov_b32 s{SV+3}, 0x20000")
    e(f"s_and_b32 s{sT}, s{sW}, 1")
    e(f"s_lshl_b32 s{sT}, s{sT}, 7")
    e(f"v_xor_b32 v{vDK}, s{sT}, v{vDK}")
    e(f"v_xor_b32 v{vDK+1}, 64, v{vDK}")
    e("v_lshlrev_b32 v4, 2, v2")
    e("v_and_b32 v3, 15, v0")
    e("v_xor_b32 v4, v4, v3")
    e("v_lshlrev_b32 v4, 4, v4")
    e(f"v_lshl_add_u32 v{vDV}, v2, 8, v4")
    e(f"s_lshl_b32 s{sW2}, s{sW2}, 11")
    vm = ["u0"] + ["qa"] * 4
    def unit(n):
        kind, i = units[n]
        base = (0 if kind == "K" else 0x10000) + i * 8192
        r = SK if kind == "K" else SV
        va = [vDK, vDK + 1] if kind == "K" else [vDV, vDV]
        e(f"s_add_u32 m0, s{sW2}, {base}")
        e(f"s_add_u32 s{sT}, s{sW2}, {i*8192}")
        for m in range(2): e(f"buffer_load_dwordx4 v{va[m]}, s[{r}:{r+3}], s{sT} offen offset:{m*1024} {ldkv} lds")
        vm.extend([f"u{n}"] * 2)
    def vmwait(tags):
        last = max(j for j, x in enumerate(vm) if x in tags)
        e(f"s_waitcnt vmcnt({len(vm)-1-last})")
        return last
    issued = 1
    setup_done = False
    q1 = q2 = False
    def q_read(hf, off):
        for s in range(4): e(f"ds_read_b128 v[{vQ+16*hf+4*s}:{vQ+16*hf+4*s+3}], v{vQA+s} offset:{off}")
    def after_q1():
        q_read(0, 0)
        e("s_waitcnt lgkmcnt(0)")
        e(f"s_add_u32 s{sT3}, s{sQoff}, 128")
        q_half(sT3); vm.extend(["q2"] * 4)
    for bi, nd in enumerate(needl):
        while issued < min(16, nd + ahead):
            if bi >= 2 and not q1 and issued >= qh1: q_half(sQoff); vm.extend(["q1"] * 4); q1 = True
            unit(issued); issued += 1
        if bi >= 2 and not q1 and issued >= qh1: q_half(sQoff); vm.extend(["q1"] * 4); q1 = True
        if not setup_done: setup(); setup_done = True
        last = vmwait({f"u{nd-1}", "qa"})
        e("s_barrier")
        if q1 and not q2 and max(j for j, x in enumerate(vm) if x == "q1") <= last: after_q1(); q2 = True
    stamp()
    if not q1: q_half(sQoff); vm.extend(["q1"] * 4)
    if not q2: vmwait({"q1"}); after_q1()
    e("s_waitcnt vmcnt(0)")
    q_read(1, 0)
    if prioB: e(f"s_setprio {prioB}")
    e.label("L_mainB")

    def body(grp, ns):
        nm = grp
        if ns == 4:
            vP = 112; vO = [120, 136, 152, 168]; pool = [184 + 4 * i for i in range(16)]; pk0 = vS + 16
            preg = lambda i, u: vP + u
        else:
            vP = 112; pool = [208 + 4 * i for i in range(12)]
            vO = [176, 192, vQ, vQ + 16]
            if ns == 3: vO = [176, 192, 208, vQ]; pool = [224 + 4 * i for i in range(8)]
            preg = lambda i, u: vP + 8 * i + u
        mf = []
        def QK(i, s): mf.append(dict(ty="Q", i=i, s=s))
        def PV(i, k, t): mf.append(dict(ty="P", i=i, k=k, t=t))
        for s in range(8): QK(0, s)
        for s in range(8): QK(1, s)
        for t in range(ns): PV(0, 0, t)
        for p in range(1, 7):
            lst = [(p - 1, 1, t) for t in range(ns)] + [(p, 0, t) for t in range(ns)]
            done = 0
            for s in range(8):
                QK(p + 1, s)
                want = (s + 1) * len(lst) // 8
                while done < want: PV(*lst[done]); done += 1
        deferred = [(ks // 2, ks % 2, t) for t in range(ns, 4) for ks in range(16)]
        def defer(n):
            for _ in range(n):
                if deferred: PV(*deferred.pop(0))
        nfill = {4: 0, 3: 3, 2: 4}[ns]
        for t in range(ns): PV(6, 1, t)
        defer(nfill)
        for t in range(ns): PV(7, 0, t)
        defer(nfill)
        for t in range(ns): PV(7, 1, t)
        defer(64)
        assert len(mf) == 128
        for m in mf:
            if m["ty"] == "Q":
                m["unit"] = ("K", m["i"]); m["tag"] = ("Q", m["i"], m["s"])
                m["deps"] = [(("f", m["i"] - 2, 15), 0)] if (m["s"] == 0 and m["i"] >= 2) else []
            else:
                m["unit"] = ("V", m["i"]); m["tag"] = ("P", m["i"], m["k"], m["t"])
                m["deps"] = [(("c", m["i"], 4 * m["k"] + 3), 2)]
        def reads(m, r):
            if m["ty"] == "Q": return [f"ds_read_b128 v[{r}:{r+3}], v{vKA+m['s']} offset:{m['i']*8192}"]
            ks = 2 * m["i"] + m["k"]
            return [f"ds_read_b64_tr_b16 v[{r}:{r+1}], v{vVA+m['t']} offset:{ks*4096}",
                    f"ds_read_b64_tr_b16 v[{r+2}:{r+3}], v{vVA+m['t']} offset:{ks*4096+2048}"]
        def mtext(m):
            r = m["slot"]
            if m["ty"] == "Q":
                d = vS + 16 * (m["i"] % 2); b = vQ + 4 * m["s"]; first = m["s"] == 0
            else:
                d = vO[m["t"]]; b = preg(m["i"], 4 * m["k"]); first = (m["i"], m["k"]) == (0, 0)
            return f"v_mfma_f32_32x32x16_bf16 v[{d}:{d+15}], v[{r}:{r+3}], v[{b}:{b+3}], " + ("0" if first else f"v[{d}:{d+15}]")
        q = []
        def V(text, cost=4, tag=None, deps=(), kind="valu"): q.append(dict(text=text, cost=cost, tag=tag, deps=list(deps), kind=kind))
        b = vS
        V(f"v_max3_f32 v{vM0}, v{b}, v{b+1}, v{b+2}", deps=[(("Q", 0, 7), 12)])
        V(f"v_max3_f32 v{vM1}, v{b+3}, v{b+4}, v{b+5}")
        for j in range(6, 16, 2):
            m = vM0 if (j // 2) % 2 == 1 else vM1
            V(f"v_max3_f32 v{m}, v{m}, v{b+j}, v{b+j+1}")
        V(f"v_max3_f32 v{vM0}, v{vM0}, v{vM1}, v{vMT}")
        V(f"v_mov_b32 v{vM1}, v{vM0}", tag="mv")
        V(f"v_permlane32_swap_b32 v{vM0}, v{vM1}", deps=[("mv", 2)])
        V(f"v_max_f32 v{vM0}, v{vM0}, v{vM1}")
        V(f"v_mul_f32 v{vNM}, {hex(f32bits(-CC))}, v{vM0}")
        pendc = None
        for p in range(8):
            for u in range(8):
                sa = vS + 16 * (p % 2) + 2 * u
                ta = vT + 2 * (u % 4)
                if pendc: V(**pendc); pendc = None
                V(f"v_fma_f32 v{ta}, v{sa}, v{vC}, v{vNM}", tag=("f", p, 2 * u), deps=[(("Q", p, 7), 12)] if u == 0 else [])
                V(f"v_fma_f32 v{ta+1}, v{sa+1}, v{vC}, v{vNM}", tag=("f", p, 2 * u + 1))
                V(f"v_exp_f32 v{ta}, v{ta}", cost=8)
                V(f"v_exp_f32 v{ta+1}, v{ta+1}", cost=8)
                first = (p == 0 and u == 0)
                V(f"v_mov_b32 v{vL0}, v{ta}" if first else f"v_add_f32 v{vL0}, v{vL0}, v{ta}")
                cdeps = [(("P", p - 1, u // 4, 3), 0)] if (p >= 1 and ns == 4) else []
                cv = dict(text=f"v_cvt_pk_bf16_f32 v{preg(p, u)}, v{ta}, v{ta+1}", tag=("c", p, u), deps=cdeps)
                if p == 7 and u == 7: V(**cv)
                else: pendc = cv
                V(f"v_mov_b32 v{vL1}, v{ta+1}" if first else f"v_add_f32 v{vL1}, v{vL1}, v{ta+1}")
        V(f"v_add_f32 v{vL0}, v{vL0}, v{vL1}")
        V(f"v_mov_b32 v{vL1}, v{vL0}", tag="mv2")
        V(f"v_permlane32_swap_b32 v{vL0}, v{vL1}", deps=[("mv2", 2)])
        V(f"v_add_f32 v{vL0}, v{vL0}, v{vL1}")
        V(f"v_cmp_nge_f32 vcc, {hex(f32bits(-1.0 if forcefb else thr))}, v{vL0}")
        V(f"v_rcp_f32 v{vInv}, v{vL0}", cost=8, tag="rcp")
        V(f"s_and_b64 vcc, vcc, s[{sMask}:{sMask+1}]", kind="salu")
        for n in range(1, 4): V(f"v_xor_b32 v{vQA+n}, {32*n}, v{vOW}")
        V("s_cbranch_vccnz L_fb", kind="salu")
        lastP = {t: [m for m in mf if m["ty"] == "P" and m["t"] == t][-1]["tag"] for t in range(4)}
        pkb = vS
        tbb = vS + 16
        for t in range(4):
            ob = vO[t]
            pk = pkb + 8 * (t % 2)
            for n in range(2):
                for j in range(8):
                    V(f"v_mul_f32 v{ob+8*n+j}, v{vInv}, v{ob+8*n+j}", deps=[(lastP[t], 12), ("rcp", 1)] if (n == 0 and j == 0) else [])
                for j in range(4): V(f"v_cvt_pk_bf16_f32 v{pk+4*n+j}, v{ob+8*n+2*j}, v{ob+8*n+2*j+1}")
            if t == 2: V(None, kind="waitl", tag=("or", 0, 3))
            for n in range(2):
                x = 2 * (t % 2) + n
                V(f"ds_write_b128 v{vQA+x if x else vOW}, v[{pk+4*n}:{pk+4*n+3}]", kind="lds", tag=("ow", t, n))
            if t % 2 == 1:
                hf = t // 2
                V(None, kind="waitl", tag=("ow", t, 1))
                for m in range(4): V(f"ds_read_b128 v[{tbb+4*m}:{tbb+4*m+3}], v{vOR} offset:{m*1024}", kind="lds", tag=("or", hf, m))
                for m in range(4):
                    V(None, kind="waitl", tag=("or", hf, m))
                    V(f"buffer_store_dwordx4 v[{tbb+4*m}:{tbb+4*m+3}], v{vOG}, s[{SO}:{SO+3}], s{sStO+m} offen offset:{hf*128} {stflag}".rstrip(), kind="vm")
        pos = {}; ni = [0]; t = [0]; lds = []; covered = [-1]; last_kind = [None]
        def emit(text, cost, tag=None, kind="valu"):
            if kind == "lds" and last_kind[0] == "valu": cost += 8
            e(text)
            if tag is not None: pos[tag] = ni[0]
            ni[0] += 1; t[0] += cost; last_kind[0] = kind
        def deps_ok(deps): return all(d in pos and ni[0] - pos[d] - 1 >= n for d, n in deps)
        def deps_emitted(deps): return all(d in pos for d, n in deps)
        def pad(deps):
            k = max(n - (ni[0] - pos[d] - 1) for d, n in deps)
            if k > 0: e(f"s_nop {k-1}"); ni[0] += k; t[0] += 4 * k; last_kind[0] = "salu"
        def lds_ready_time(tag): return lds[max(j for j, x in enumerate(lds) if x[0] == tag)][1] + 100
        def wait_lds(tag, greedy):
            last = max(j for j, x in enumerate(lds) if x[0] == tag)
            if last <= covered[0]: return
            if greedy:
                while last + 1 < len(lds) and lds[last + 1][1] <= t[0] - LAT: last += 1
            n = len(lds) - 1 - last
            if n > 15: last = len(lds) - 1 - 15; n = 15
            t[0] = max(t[0], lds[last][1] + 100)
            emit(f"s_waitcnt lgkmcnt({n})", 4, kind="salu")
            covered[0] = last
        checked = [needl[0] if grp == "A" else 16]
        rp = [0]
        free = list(pool)
        def can_read(n_issued):
            if rp[0] >= 128 or not free: return False
            if rp[0] > n_issued + D: return False
            m = mf[rp[0]]
            if len(lds) - 1 - covered[0] + (1 if m["ty"] == "Q" else 2) > 24: return False
            return True
        def do_read():
            m = mf[rp[0]]
            nd = need[m["unit"]]
            if nd > checked[0]:
                nd = min(x for x in needl if x >= nd)
                wait_lds(("Qf", 7), False)
                emit("s_barrier", 8, kind="salu")
                checked[0] = nd
            m["slot"] = free.pop(0)
            for r in reads(m, m["slot"]):
                emit(r, 4, kind="lds"); lds.append((("A", rp[0]), t[0]))
            rp[0] += 1
        def emit_q():
            o = q.pop(0)
            if o["kind"] == "waitl": wait_lds(o["tag"], False)
            elif o["kind"] == "lds": emit(o["text"], o["cost"], o["tag"], "lds"); lds.append((o["tag"], t[0]))
            else: emit(o["text"], o["cost"], o["tag"], o["kind"])
        if grp == "A":
            for s in range(8):
                emit(f"ds_read_b128 v[{vQ+4*s}:{vQ+4*s+3}], v{vQA+(s%4)} offset:{(s//4)*4096}", 4, kind="lds"); lds.append((("Qf", s), t[0]))
                do_read()
        else:
            for s in range(4): lds.append((("Qf", 4 + s), 0))
            for s in range(8): do_read()
        pipe = 0; log = []
        for n, m in enumerate(mf):
            while True:
                if not deps_emitted(m["deps"]):
                    o = q[0]
                    if not deps_ok(o["deps"]):
                        assert deps_emitted(o["deps"]), (m["tag"], o)
                        pad(o["deps"])
                    emit_q(); continue
                if q and deps_ok(q[0]["deps"]):
                    o = q[0]
                    if o["kind"] == "waitl" and lds_ready_time(o["tag"]) > t[0] + 4: break
                    c = o["cost"] + (8 if (o["kind"] == "lds" and last_kind[0] == "valu") else 0)
                    if t[0] + c <= pipe or not deps_ok(m["deps"]): emit_q(); continue
                break
            if not deps_ok(m["deps"]): pad(m["deps"])
            while rp[0] <= n: do_read()
            wait_lds(("A", n), True)
            t[0] = max(t[0], pipe)
            log.append((n, m["tag"], t[0]))
            pipe = t[0] + 32
            emit(mtext(m), 8, m["tag"], "mfma")
            free.append(m["slot"])
            k = 0
            while can_read(n) and k < 2:
                k += 1 if mf[rp[0]]["ty"] == "Q" else 2
                do_read()
            if m["tag"] in (("Q", 0, 7), ("P", 3, 0, 0), ("Q", 7, 7)):
                if stamp(): ni[0] += 1; t[0] += 4
        stamp()
        while q:
            if not deps_ok(q[0]["deps"]): pad(q[0]["deps"])
            emit_q()
        if verbose:
            for x in log[::8]: sys.stderr.write(f"{grp} {x}\n")
            sys.stderr.write(f"{grp} last mfma {log[-1]} model end t={t[0]}\n")
        stamp()

    s0 = (nst[0], npt[0])
    stamp()
    body("B", nsB)
    e("s_branch L_fin")
    if align: e(f".p2align {align}")
    e.label("L_A")
    nst[0], npt[0] = s0[0] - (1 if stamps else 0), s0[1] - 1
    setup()
    if prioA: e(f"s_setprio {prioA}")
    e("s_waitcnt vmcnt(0)")
    stamp()
    e("s_barrier")
    stamp()
    body("A", nsA)
    e.label("L_fin")
    if stamps:
        e("s_waitcnt vmcnt(0)")
        stamp(); stamp(True)
        e("s_waitcnt lgkmcnt(0)")
        n = nst[0]
        e.c(f"nstamps={n}")
        e(f"s_lshl_b32 s{sT}, s2, 3")
        e(f"s_add_u32 s{sT}, s{sT}, s{sW}")
        e(f"s_mul_i32 s{sT}, s{sT}, {n*8}")
        e(f"s_add_u32 s12, s12, s{sT}")
        e("s_addc_u32 s13, s13, 0")
        e("v_mov_b32 v1, 0")
        for j in range(n):
            e(f"v_mov_b32 v2, s{sStamp+2*j}")
            e(f"v_mov_b32 v3, s{sStamp+2*j+1}")
            e(f"global_store_dwordx2 v1, v[2:3], s[12:13] offset:{8*j}")
            e("s_nop 1")
    if spin:
        e("s_waitcnt vmcnt(0)")
        if enc == 99: e("s_memrealtime s[100:101]")
        e("s_waitcnt lgkmcnt(0)")
        if enc >= 0:
            e("s_sub_u32 s100, s100, s96")
            e("s_lshl_b32 s100, s100, 2")
            if encw >= 0:
                e(f"s_lshr_b32 s98, s{sW}, 2")
                e(f"s_cmp_eq_u32 s98, {encw}")
                e("s_cselect_b32 s100, s100, 0")
            e(f"s_add_u32 s100, s100, {spin}")
        else: e(f"s_mov_b32 s100, {spin}")
        e.label("L_spin")
        e("s_sleep 4")
        e("s_memrealtime s[98:99]")
        e("s_waitcnt lgkmcnt(0)")
        e("s_sub_u32 s98, s98, s96")
        e("s_cmp_lt_u32 s98, s100")
        e("s_cbranch_scc1 L_spin")
    e.label("L_end")
    e("s_endpgm")
    e.label("L_fb")
    e("s_waitcnt lgkmcnt(0)")
    e("s_nop 15")
    e(f"s_mov_b64 s[{sMask}:{sMask+1}], 0")
    e("v_and_b32 v2, 31, v0")
    e("v_lshrrev_b32 v3, 5, v0")
    e("v_lshlrev_b32 v4, 8, v2")
    e("v_lshl_add_u32 v4, v3, 4, v4")
    for s in range(8): e(f"buffer_load_dwordx4 v[{vQ+4*s}:{vQ+4*s+3}], v4, s[{SQ}:{SQ+3}], s{sQoff} offen offset:{s*32}")
    e(f"s_mov_b32 s{sT}, 0")
    e("s_waitcnt vmcnt(0)")
    e.label("L_fbloop")
    for s in range(8): e(f"ds_read_b128 v[{208+4*s}:{208+4*s+3}], v{vKA+s}")
    e("s_waitcnt lgkmcnt(0)")
    for s in range(8):
        e(f"v_mfma_f32_32x32x16_bf16 v[{vS}:{vS+15}], v[{208+4*s}:{208+4*s+3}], v[{vQ+4*s}:{vQ+4*s+3}], " + ("0" if s == 0 else f"v[{vS}:{vS+15}]"))
    for s in range(8): e(f"v_add_u32 v{vKA+s}, 0x2000, v{vKA+s}")
    e("s_nop 7")
    for j in range(0, 16, 2): e(f"v_max3_f32 v{vMT}, v{vMT}, v{vS+j}, v{vS+j+1}")
    e(f"s_add_u32 s{sT}, s{sT}, 1")
    e(f"s_cmp_lt_u32 s{sT}, 8")
    e("s_cbranch_scc1 L_fbloop")
    for s in range(8): e(f"v_subrev_u32 v{vKA+s}, 0x10000, v{vKA+s}")
    e("s_branch L_mainB")
    if codepf:
        e.c("pad so that the code prefetch (16 KB from the entry) stays inside .text")
        e.label("L_pad")
        e(".fill (16384 + 256 - (L_pad - standalone__gqa_softmax__near_ridge_kernel)) / 4, 4, 0xbf810000")
    text = e.text()
    errs = hz.check(text.split("\n"))
    for x in errs: sys.stderr.write(x + "\n")
    return HEADER + text + FOOTER

if __name__ == "__main__":
    kw = {}
    out = sys.argv[1]
    for a in sys.argv[2:]:
        k, v = a.split("=", 1)
        if v in ("True", "False"): v = v == "True"
        elif v.lstrip("-").isdigit(): v = int(v)
        kw[k] = v
    open(out, "w").write(gen(**kw))
```

```python
import sys, math, struct
from gen1 import E, FOOTER, f32bits
import hz
CC = math.log2(math.e) / math.sqrt(128.0)
KN = "standalone__gqa_softmax__near_ridge_kernel"

HEADER = """; GQA attention forward: B=8, Hq=32, Hkv=4, Sq=Sk=256, D=128, bf16 in / bf16 out, fp32 accumulation.
; Kernarg: q, k, v, out, debug, ws (8-byte pointers at offsets 0, 8, 16, 24, 32, 40).
;
; One workgroup (8 waves) per (batch, q head); the 8 heads that share a KV head sit on workgroup ids that are equal
; mod 8 (L2 locality only).  K and V of the head live in LDS (64 KB each, XOR-swizzled, filled by LDS-DMA); the last
; 32 KB hold one 4 KB staging block per wave (Q on the way in, O on the way out).
; Every wave owns one 32-row q tile.  S^T = K.Q^T and O^T = V^T.P^T are computed with 32x32x16 MFMAs, so a lane holds
; one q row and P feeds the second MFMA without any shuffle.  Waves 0-3 run first (0,1 lead; 2,3 follow when their Q
; has arrived); waves 4-7 issue the K/V loads meanwhile and run their own tiles afterwards.
; Softmax: the exponent is taken relative to the row maximum of the first 32 keys.  After the row sums are known they
; are checked against 2^30; if any row of the tile exceeds that (the stand-in was too low), the tile is redone with
; the exact row maximum over all 256 keys (L_fb).  The row sum is >= 1 by construction, so nothing can underflow.
; @launch grid=(256,1,1) block=(512,1,1) lds=163840
.amdgcn_target "amdgcn-amd-amdhsa--gfx950"
.text
.globl %s
.p2align 8
.type %s,@function
%s:
""" % (KN, KN, KN)

def gen(stamps=False, allreal=False, lite=False, pairs=False, barst=False, spin=0, enc=-1, encw=-1, verbose=False, forcefb=False,
        stflag="sc1", prioA=1, prioB=0, needs="1,2,4,8,16", caps="4,7,8,8,16", npre=2, lagsites="10,40", t6="76,54",
        nsA=0, selA=False, patA="", nfA=6, nsB=2, selB=True, patB="QPQQPLQQQQPQPL", nfB=0,
        D=12, LAT=160, Dbar=5, post=150, WB=48, lateA=True, pklast=True, thr=2.0**30, codepf=True, gate=True, ldq="", ldkv="",
        uorder="kfirst", vrot=True, q1at=99, uni=0, t5=""):
    e = E()
    ints = lambda x: [int(y) for y in str(x).split(",")] if str(x) else []
    sW = 3
    SQ, SK, SV, SO = 16, 20, 24, 28
    sT, sT2, sQoff, sBuf, sW2, sT3, sVs = 32, 33, 34, 35, 36, 37, 38
    sStO = 92
    sStamp = 40
    nst = [0]; npt = [0]
    def stamp(real=False, keep=False):
        if npt[0] == enc: e("s_memrealtime s[100:101]")
        npt[0] += 1
        if not stamps or (lite and not keep): return False
        r = sStamp + 2 * nst[0]; nst[0] += 1
        assert r + 1 < 92
        e(f"{'s_memrealtime' if (real or allreal) else 's_memtime'} s[{r}:{r+1}]")
        return True
    def mark(): return (nst[0], npt[0])
    def rewind(m): nst[0], npt[0] = m
    vThr, vDV = 6, 7
    vKA, vVA, vQA = 8, 16, 20
    vOW, vOR, vOG = 24, 26, 27
    vM0, vM1, vNM, vC, vL0, vL1, vMT, vInv = 28, 29, 30, 31, 32, 33, 34, 35
    vDQ = 36
    vT = 40
    vDK = vT
    vQ, vS, vP = 48, 80, 112
    vO = [176, 192, vQ, vQ + 16]
    POOL = [208 + 4 * i for i in range(12)]
    vSelA, vSelC = POOL[-2], POOL[-1]
    if uorder == "kfirst": units = [("K", i) for i in range(8)] + [("V", i) for i in range(8)]
    else: units = [(u[0], int(u[1])) for u in uorder.split(",")]
    need = {u: n + 1 for n, u in enumerate(units)}
    needl, capl, lagl, t6l, t5l = ints(needs), ints(caps), ints(lagsites), ints(t6), ints(t5)
    assert needl[0] == 1 and needl[-1] == 16 and len(capl) == len(needl) and len(lagl) == len(needl) - 1 - npre
    if vrot: assert uorder == "kfirst" and not [x for x in needl if 8 < x < 16]

    def srd(r, p, off):
        e(f"s_add_u32 s{r}, s{p}, s{off}")
        e(f"s_addc_u32 s{r+1}, s{p+1}, 0")
    def srd_tail(r):
        e(f"s_mov_b32 s{r+2}, 0x10000")
        e(f"s_mov_b32 s{r+3}, 0x20000")
    def q_patterns():
        e("v_and_b32 v3, 7, v0")
        e("v_xor_b32 v3, v2, v3")
        e("v_lshlrev_b32 v3, 4, v3")
        e("v_lshrrev_b32 v4, 3, v0")
        e(f"v_lshl_add_u32 v{vDQ}, v4, 8, v3")
        e(f"v_xor_b32 v3, 64, v{vDQ}")
        e(f"v_add_u32 v{vDQ+2}, 0x800, v{vDQ}")
        e(f"v_add_u32 v{vDQ+1}, 0x400, v3")
        e(f"v_add_u32 v{vDQ+3}, 0xc00, v3")
    def k_pattern0(dst):
        e("v_and_b32 v3, 15, v0")
        e("v_xor_b32 v4, v2, v3")
        e("v_lshlrev_b32 v4, 4, v4")
        e(f"v_lshl_add_u32 v{dst}, v2, 8, v4")
    def q_dma(sSrc):
        for m in range(4): e(f"buffer_load_dwordx4 v{vDQ+m}, s[{SQ}:{SQ+3}], s{sSrc} offen offset:{m*1024} {ldq} lds")
    def q_tile():
        q_dma(sQoff)
        e(f"s_add_u32 m0, s{sBuf}, 4096")
        e("s_nop 0")
        q_dma(sT3)

    e("s_cmp_ge_u32 s2, 256")
    e("s_cbranch_scc1 L_end")
    stamp(True, True); stamp(False, True)
    if spin: e("s_memrealtime s[96:97]")
    e("s_load_dwordx4 s[4:7], s[0:1], 0")
    e("s_load_dwordx4 s[8:11], s[0:1], 16")
    if stamps: e("s_load_dwordx2 s[12:13], s[0:1], 40")
    e("v_lshrrev_b32 v1, 6, v0")
    e("v_and_b32 v0, 63, v0")
    e("s_lshr_b32 s15, s2, 3")
    e(f"v_readfirstlane_b32 s{sW}, v1")
    if codepf:
        e.c("pull this kernel's code into L2 (4 lines of 128 B per workgroup)")
        e("s_getpc_b64 s[18:19]")
        e(f"s_lshl_b32 s{sT}, s15, 9")
        e(f"s_add_u32 s18, s18, s{sT}")
        e("s_addc_u32 s19, s19, 0")
        e("v_and_b32 v2, 3, v0")
        e("v_lshlrev_b32 v2, 7, v2")
        e("global_load_dword v1, v2, s[18:19]")
    e("s_and_b32 s14, s2, 7")
    e(f"s_lshr_b32 s{sT}, s15, 3")
    e("s_lshl_b32 s14, s14, 2")
    e(f"s_add_u32 s14, s14, s{sT}")
    e("s_and_b32 s15, s15, 7")
    e(f"s_lshl_b32 s{sT}, s14, 3")
    e(f"s_add_u32 s15, s15, s{sT}")
    e("s_lshl_b32 s14, s14, 16")
    e("s_lshl_b32 s15, s15, 16")
    e("v_lshrrev_b32 v2, 4, v0")
    e(f"s_lshl_b32 s{sQoff}, s{sW}, 13")
    m0 = mark()
    if uni:
        sA, sB2, sOf, SX, vX = sT2, sT3, sW2, SO, 44
        q_patterns()
        k_pattern0(vDK)
        for m in range(1, 4): e(f"v_xor_b32 v{vDK+m}, {64*m}, v{vDK}")
        e(f"s_cmp_ge_u32 s{sW}, {2+uni}")
        e("s_cbranch_scc1 L_B")
        e(f"s_add_u32 s{sBuf}, s{sQoff}, 0x20000   ; staging block")
        e(f"s_sub_u32 s{sA}, s{sQoff}, 0x4000")
        srd_tail(SX)
        e(f"s_movk_i32 s{sB2}, 0x1000")
        e(f"s_cmp_lt_u32 s{sW}, 2")
        e("s_cselect_b64 vcc, -1, 0")
        e(f"s_cselect_b32 s{sT}, s{sBuf}, s{sA}")
        e(f"s_cselect_b32 s{sA}, s{sQoff}, s{sA}")
        e(f"s_cselect_b32 s{sB2}, 128, s{sB2}")
        e(f"s_cselect_b32 s{sOf}, s15, s14")
        e(f"s_mov_b32 m0, s{sT}")
        for m in range(4): e(f"v_cndmask_b32 v{vX+m}, v{vDK+m}, v{vDQ+m}, vcc")
        e("s_waitcnt lgkmcnt(0)")
        stamp()
        e(f"s_cselect_b32 s{SX}, s4, s6")
        e(f"s_cselect_b32 s{SX+1}, s5, s7")
        srd(SX, SX, sOf)
        for m in range(4): e(f"buffer_load_dwordx4 v{vX+m}, s[{SX}:{SX+3}], s{sA} offen offset:{m*1024} lds")
        e(f"s_add_u32 m0, s{sT}, 4096")
        e(f"s_add_u32 s{sB2}, s{sB2}, s{sA}")
        for m in range(4): e(f"buffer_load_dwordx4 v{vX+m}, s[{SX}:{SX+3}], s{sB2} offen offset:{m*1024} lds")
        e(f"s_cmp_ge_u32 s{sW}, 4")
        e("s_cbranch_scc1 L_B")
        srd(SQ, 4, 15); srd_tail(SQ)
        e(f"s_cmp_lt_u32 s{sW}, 2")
        e("s_cbranch_scc1 L_lead0")
        e(f"s_add_u32 s{sT3}, s{sQoff}, 128")
        e(f"s_mov_b32 m0, s{sBuf}")
        if gate: e("s_waitcnt vmcnt(0)")
        q_tile()
        e.label("L_lead0")
        stamp()
        e("s_branch L_A")
    else:
        e(f"s_cmp_ge_u32 s{sW}, 4")
        e("s_cbranch_scc1 L_B")
        e(f"s_add_u32 s{sBuf}, s{sQoff}, 0x20000   ; staging block")
        e(f"s_add_u32 s{sT3}, s{sQoff}, 128")
        srd_tail(SQ)
        e(f"s_cmp_ge_u32 s{sW}, 2")
        e("s_cbranch_scc1 L_lag")
        q_patterns()
        e(f"s_mov_b32 m0, s{sBuf}")
        e("s_waitcnt lgkmcnt(0)")
        stamp()
        srd(SQ, 4, 15)
        q_tile()
        stamp()
        e("s_branch L_A")
        e.label("L_lag")
        rewind(m0)
        k_pattern0(vDK)
        for m in range(1, 4): e(f"v_xor_b32 v{vDK+m}, {64*m}, v{vDK}")
        srd_tail(SK)
        e(f"s_and_b32 s{sT2}, s{sW}, 1")
        e(f"s_lshl_b32 s{sT2}, s{sT2}, 12")
        e(f"s_mov_b32 m0, s{sT2}")
        e("s_waitcnt lgkmcnt(0)")
        stamp()
        srd(SK, 6, 14)
        for m in range(4): e(f"buffer_load_dwordx4 v{vDK+m}, s[{SK}:{SK+3}], s{sT2} offen offset:{m*1024} {ldkv} lds")
        srd(SQ, 4, 15)
        e(f"s_mov_b32 m0, s{sBuf}")
        q_patterns()
        if gate: e("s_waitcnt vmcnt(0)")
        q_tile()
        stamp()
        e("s_branch L_A")

    def sel_const():
        e.c("row-sum MFMA A operand: 1.0 where (k group parity) == (row group parity)")
        e("v_lshrrev_b32 v4, 4, v0")
        e("v_lshrrev_b32 v5, 2, v0")
        e("v_xor_b32 v4, v4, v5")
        e("v_and_b32 v4, 1, v4")
        e("v_sub_u32 v4, v4, 1")
        for j in range(4): e(f"v_and_b32 v{vSelA+j}, 0x3f803f80, v4")
    def setup(sel):
        srd(SO, 10, 15); srd_tail(SO)
        e("v_and_b32 v2, 31, v0")
        e("v_lshrrev_b32 v3, 5, v0")
        e.c("K fragment addresses")
        e("v_and_b32 v4, 15, v0")
        e("v_xor_b32 v4, v4, v3")
        e("v_lshlrev_b32 v4, 4, v4")
        e(f"v_lshl_add_u32 v{vKA}, v2, 8, v4")
        for s in range(1, 8): e(f"v_xor_b32 v{vKA+s}, {s*32}, v{vKA}")
        e.c("Q fragment addresses")
        e("v_bfe_u32 v4, v0, 1, 3")
        e("v_xor_b32 v4, v4, v3")
        e("v_lshlrev_b32 v4, 4, v4")
        e("v_lshl_add_u32 v4, v2, 7, v4")
        e(f"v_add_u32 v{vQA}, s{sBuf}, v4")
        for s in range(1, 4): e(f"v_xor_b32 v{vQA+s}, {s*32}, v{vQA}")
        e.c("V fragment addresses (transposing reads)")
        e("v_bfe_u32 v4, v0, 2, 2")
        e("v_lshl_add_u32 v5, v3, 2, v4")
        e("v_lshlrev_b32 v5, 8, v5")
        e("v_lshl_add_u32 v5, v4, 6, v5")
        e("v_bfe_u32 v6, v0, 4, 1")
        e("v_lshl_add_u32 v5, v6, 5, v5")
        e("v_and_b32 v6, 1, v0")
        e("v_lshl_add_u32 v5, v6, 4, v5")
        e("v_bfe_u32 v6, v0, 1, 1")
        e("v_lshl_add_u32 v5, v6, 3, v5")
        e(f"v_add_u32 v{vVA}, 0x10000, v5")
        for t in range(1, 4): e(f"v_xor_b32 v{vVA+t}, {t*64}, v{vVA}")
        e.c("O staging: write, read-back and global addresses")
        e("v_and_b32 v4, 7, v0")
        e("v_xor_b32 v4, v4, v3")
        e("v_lshlrev_b32 v4, 4, v4")
        e("v_lshl_add_u32 v4, v2, 7, v4")
        e(f"v_add_u32 v{vOW}, s{sBuf}, v4")
        e("v_lshrrev_b32 v4, 3, v0")
        e("v_and_b32 v5, 7, v0")
        e("v_xor_b32 v6, v4, v5")
        e("v_lshlrev_b32 v6, 4, v6")
        e("v_lshl_add_u32 v6, v4, 7, v6")
        e(f"v_add_u32 v{vOR}, s{sBuf}, v6")
        e("v_lshlrev_b32 v5, 4, v5")
        e("v_lshl_add_u32 v5, v4, 8, v5")
        e(f"v_add_u32 v{vOG}, s{sQoff}, v5")
        for m in range(4): e(f"s_mov_b32 s{sStO+m}, {m*2048}")
        e(f"v_mov_b32 v{vC}, {hex(f32bits(CC))}")
        e(f"v_mov_b32 v{vMT}, 0xff800000")
        e(f"v_mov_b32 v{vThr}, {hex(f32bits(-1.0 if forcefb else thr))}")
        if sel: sel_const()

    e.label("L_B")
    rewind(m0)
    if not uni: k_pattern0(vDK)
    e(f"s_and_b32 s{sT}, s{sW}, 1")
    e(f"s_lshl_b32 s{sT}, s{sT}, 7")
    e(f"v_xor_b32 v{vDK}, s{sT}, v{vDK}")
    e(f"v_xor_b32 v{vDK+1}, 64, v{vDK}")
    e(f"s_and_b32 s{sW2}, s{sW}, 3")
    e(f"s_lshl_b32 s{sBuf}, s{sW2}, 13")
    e(f"s_add_u32 s{sBuf}, s{sBuf}, 0x21000")
    e(f"s_lshl_b32 s{sW2}, s{sW2}, 11")
    srd_tail(SK)
    e("s_waitcnt lgkmcnt(0)")
    stamp()
    srd(SK, 6, 14)
    vm = ["x"] + [f"u{j}" for j in range(2, uni)]
    def unit(n):
        kind, i = units[n]
        if kind == "V" and vrot:
            if i == 0:
                e.c("V tiles in an order rotated by the member index of the KV group")
                e(f"s_lshr_b32 s{sVs}, s15, 3")
                e(f"s_and_b32 s{sVs}, s{sVs}, 0xe000")
                e(f"s_add_u32 s{sVs}, s{sVs}, s{sW2}")
            else:
                e(f"s_add_u32 s{sVs}, s{sVs}, 8192")
                e(f"s_and_b32 s{sVs}, s{sVs}, 0xffff")
            e(f"s_add_u32 m0, s{sVs}, 0x10000")
            e("s_nop 0")
            so = sVs
        else:
            e(f"s_add_u32 m0, s{sW2}, {(0 if kind == 'K' else 0x10000) + i*8192}")
            e(f"s_add_u32 s{sT}, s{sW2}, {i*8192}")
            so = sT
        r = SK if kind == "K" else SV
        va = [vDK, vDK + 1] if kind == "K" else [vDV, vDV]
        for m in range(2): e(f"buffer_load_dwordx4 v{va[m]}, s[{r}:{r+3}], s{so} offen offset:{m*1024} {ldkv} lds")
        vm.extend([f"u{n}"] * 2)
    def vmwait(tags):
        idx = [j for j, x in enumerate(vm) if x in tags]
        if idx: e(f"s_waitcnt vmcnt({len(vm)-1-max(idx)})")
    def q1():
        e(f"s_mov_b32 m0, s{sBuf}")
        e("s_nop 0")
        q_dma(sQoff); vm.extend(["q1"] * 4)
    issued = max(1, uni); q1done = False
    for bi, nd in enumerate(needl):
        assert max(capl[bi], uni) >= nd
        while issued < capl[bi]: unit(issued); issued += 1
        if bi == 0:
            stamp()
            srd(SV, 8, 14); srd_tail(SV); srd(SQ, 4, 15); srd_tail(SQ)
            e("v_lshlrev_b32 v5, 2, v2")
            e("v_and_b32 v3, 15, v0")
            e("v_xor_b32 v5, v5, v3")
            e("v_lshlrev_b32 v5, 4, v5")
            e(f"v_lshl_add_u32 v{vDV}, v2, 8, v5")
            if not uni: q_patterns()
            setup(selB)
        if bi == q1at:
            assert bi > npre + 1 or bi == len(needl) - 1
            q1(); q1done = True
        vmwait({f"u{j}" for j in range(nd)})
        e("s_barrier")
    stamp()
    if t5l: e("s_barrier")
    if t6l:
        assert not q1done
        e(f"s_bitcmp1_b32 s{sW}, 1")
        e("s_cbranch_scc0 L_t6a")
        e("s_barrier")
        e.label("L_t6a")
        q1()
        e(f"s_bitcmp1_b32 s{sW}, 1")
        e("s_cbranch_scc1 L_t6b")
        e("s_barrier")
        e.label("L_t6b")
    elif not q1done: q1()
    def q_read(hf):
        for s in range(4): e(f"ds_read_b128 v[{vQ+16*hf+4*s}:{vQ+16*hf+4*s+3}], v{vQA+s}")
    e(f"s_add_u32 s{sT3}, s{sQoff}, 128")
    e("s_waitcnt vmcnt(0)")
    q_read(0)
    e("s_waitcnt lgkmcnt(0)")
    q_dma(sT3)
    e("s_waitcnt vmcnt(0)")
    q_read(1)
    if prioB: e(f"s_setprio {prioB}")
    e.label("L_mainB")

    def body(grp, ns, sel, pat, nf):
        pool = POOL[:-2] if sel else POOL
        preg = lambda i, u: vP + 8 * i + u
        mf = []
        def SEL(i, k):
            if sel: mf.append(dict(ty="L", i=i, k=k))
        def QK(i, s): mf.append(dict(ty="Q", i=i, s=s))
        def PV(i, k, t): mf.append(dict(ty="P", i=i, k=k, t=t))
        for s in range(8): QK(0, s)
        for s in range(8): QK(1, s)
        for t in range(ns): PV(0, 0, t)
        SEL(0, 0)
        for p in range(1, 7):
            lst = [(p - 1, 1, t) for t in range(ns)] + [(p, 0, t) for t in range(ns)]
            done = 0
            if pat:
                sq = sl = 0
                for ch in pat:
                    if ch == "Q": QK(p + 1, sq); sq += 1
                    elif ch == "P": PV(*lst[done]); done += 1
                    else: SEL(*((p - 1, 1) if sl == 0 else (p, 0))); sl += 1
                assert sq == 8 and done == len(lst)
                continue
            for s in range(8):
                QK(p + 1, s)
                want = (s + 1) * len(lst) // 8
                while done < want:
                    PV(*lst[done]); done += 1
                    if lst[done - 1][2] == min(1, ns - 1): SEL(*lst[done - 1][:2])
                if ns == 0 and s == 1: SEL(p - 1, 1)
                if ns == 0 and s == 5: SEL(p, 0)
        deferred = [(ks // 2, ks % 2, t) for t in range(ns, 4) for ks in range(16)]
        def defer(n):
            for _ in range(n):
                if deferred: PV(*deferred.pop(0))
        if ns == 0:
            d0, d1 = deferred[:16], deferred[16:32]
            deferred[:32] = d0[:14] + d1[:nf] + d0[14:15] + d1[nf:2*nf] + d0[15:] + d1[2*nf:]
            defer(12); SEL(6, 1); defer(2 + nf); SEL(7, 0); defer(1 + nf); SEL(7, 1); defer(64)
        else:
            for t in range(ns): PV(6, 1, t)
            SEL(6, 1); defer(nf)
            for t in range(ns): PV(7, 0, t)
            SEL(7, 0); defer(nf); SEL(7, 1)
            for t in range(ns): PV(7, 1, t)
            defer(64)
        NM = len(mf)
        assert NM == (144 if sel else 128)
        for m in mf:
            if m["ty"] == "Q":
                m["unit"] = ("K", m["i"]); m["tag"] = ("Q", m["i"], m["s"])
                m["deps"] = [(("f", m["i"] - 2, 15), 0)] if (m["s"] == 0 and m["i"] >= 2) else []
            elif m["ty"] == "L":
                m["tag"] = ("L", m["i"], m["k"]); m["deps"] = [(("c", m["i"], 4 * m["k"] + 3), 2)]
            else:
                m["unit"] = ("V", m["i"]); m["tag"] = ("P", m["i"], m["k"], m["t"])
                m["deps"] = [(("c", m["i"], 4 * m["k"] + 3), 2)]
        def reads(m, r):
            if m["ty"] == "Q": return [f"ds_read_b128 v[{r}:{r+3}], v{vKA+m['s']} offset:{m['i']*8192}"]
            ks = 2 * m["i"] + m["k"]
            return [f"ds_read_b64_tr_b16 v[{r}:{r+1}], v{vVA+m['t']} offset:{ks*4096}",
                    f"ds_read_b64_tr_b16 v[{r+2}:{r+3}], v{vVA+m['t']} offset:{ks*4096+2048}"]
        def mtext(m):
            if m["ty"] == "L":
                b = preg(m["i"], 4 * m["k"])
                return f"v_mfma_f32_16x16x32_bf16 v[{vSelC}:{vSelC+3}], v[{vSelA}:{vSelA+3}], v[{b}:{b+3}], " + ("0" if (m["i"], m["k"]) == (0, 0) else f"v[{vSelC}:{vSelC+3}]")
            r = m["slot"]
            if m["ty"] == "Q": d = vS + 16 * (m["i"] % 2); b = vQ + 4 * m["s"]; first = m["s"] == 0
            else: d = vO[m["t"]]; b = preg(m["i"], 4 * m["k"]); first = (m["i"], m["k"]) == (0, 0)
            return f"v_mfma_f32_32x32x16_bf16 v[{d}:{d+15}], v[{r}:{r+3}], v[{b}:{b+3}], " + ("0" if first else f"v[{d}:{d+15}]")
        q, qm = [], []
        def V(text, cost=4, tag=None, deps=(), kind="valu"): q.append(dict(text=text, cost=cost, tag=tag, deps=list(deps), kind=kind))
        def M(text, tag=None, deps=(), kind="lds"): qm.append(dict(text=text, cost=4, tag=tag, deps=list(deps), kind=kind))
        b = vS
        V(f"v_max3_f32 v{vM0}, v{b}, v{b+1}, v{b+2}", deps=[(("Q", 0, 7), 12)])
        V(f"v_max3_f32 v{vM1}, v{b+3}, v{b+4}, v{b+5}")
        for j in range(6, 16, 2):
            m = vM0 if (j // 2) % 2 == 1 else vM1
            V(f"v_max3_f32 v{m}, v{m}, v{b+j}, v{b+j+1}")
        V(f"v_max3_f32 v{vM0}, v{vM0}, v{vM1}, v{vMT}")
        V(f"v_mov_b32 v{vM1}, v{vM0}", tag="mv")
        V(f"v_permlane32_swap_b32 v{vM0}, v{vM1}", deps=[("mv", 2)])
        V(f"v_max_f32 v{vM0}, v{vM0}, v{vM1}")
        V(f"v_mul_f32 v{vNM}, {hex(f32bits(-CC))}, v{vM0}")
        def cvt(i):
            p, u = divmod(i, 8); ta = vT + 2 * (u % 4)
            return dict(text=f"v_cvt_pk_bf16_f32 v{preg(p, u)}, v{ta}, v{ta+1}", tag=("c", p, u), deps=[(("e", p, u), 1)])
        for i in range(64):
            p, u = divmod(i, 8)
            sa = vS + 16 * (p % 2) + 2 * u; ta = vT + 2 * (u % 4)
            f = [dict(text=f"v_fma_f32 v{ta}, v{sa}, v{vC}, v{vNM}", tag=("f", p, 2 * u), deps=[(("Q", p, 7), 12)] if u == 0 else []),
                 dict(text=f"v_fma_f32 v{ta+1}, v{sa+1}, v{vC}, v{vNM}", tag=("f", p, 2 * u + 1))]
            ee = [dict(text=f"v_exp_f32 v{ta}, v{ta}", cost=8, tag=("e0", p, u)), dict(text=f"v_exp_f32 v{ta+1}, v{ta+1}", cost=8, tag=("e", p, u))]
            a = [] if sel else [dict(text=f"v_mov_b32 v{vL0}, v{ta}" if i == 0 else f"v_add_f32 v{vL0}, v{vL0}, v{ta}", deps=[(("e0", p, u), 1)]),
                                dict(text=f"v_mov_b32 v{vL1}, v{ta+1}" if i == 0 else f"v_add_f32 v{vL1}, v{vL1}, v{ta+1}", deps=[(("e", p, u), 1)])]
            c = [cvt(i - 1)] if i else []
            lastc = [cvt(i)] if i == 63 else []
            for o in (f[:1] + c + f[1:] if (sel and u > 0) else c + f) + ee + a[:1] + lastc + a[1:]: V(**o)
        if sel:
            V(f"v_cmp_lt_f32 vcc, v{vThr}, v{vSelC}", deps=[(("L", 7, 1), 8)])
            V(f"v_rcp_f32 v{vInv}, v{vSelC}", cost=8, tag="rcp")
        else:
            V(f"v_add_f32 v{vL0}, v{vL0}, v{vL1}")
            V(f"v_mov_b32 v{vL1}, v{vL0}", tag="mv2")
            V(f"v_permlane32_swap_b32 v{vL0}, v{vL1}", deps=[("mv2", 2)])
            V(f"v_add_f32 v{vL0}, v{vL0}, v{vL1}")
            V(f"v_cmp_lt_f32 vcc, v{vThr}, v{vL0}")
            V(f"v_rcp_f32 v{vInv}, v{vL0}", cost=8, tag="rcp")
        for n in range(1, 4): V(f"v_xor_b32 v{vQA+n}, {32*n}, v{vOW}")
        V("s_cbranch_vccnz L_fb", kind="salu", tag="chk", deps=[("lastsite", 0)] if (grp == "A" and t6l) else [])
        lastP = {t: [m for m in mf if m["ty"] == "P" and m["t"] == t][-1]["tag"] for t in range(4)}
        late = lateA and grp == "A"
        def stores(h):
            base = vS + 16 * h
            for m in range(4):
                M(None, kind="waitl", tag=("or", h, m))
                M(f"buffer_store_dwordx4 v[{base+4*m}:{base+4*m+3}], v{vOG}, s[{SO}:{SO+3}], s{sStO+m} offen offset:{h*128} {stflag}".rstrip(), kind="vm")
        for t in range(4):
            ob = vO[t]
            for n in range(2):
                dd = [(lastP[t], 12), ("rcp", 1), ("chk", 0)] if n == 0 else []
                if pklast and t == 3:
                    if n == 0: V(f"v_mov_b32 v{vInv-1}, v{vInv}", deps=[("rcp", 1), ("chk", 0)])
                    for j in range(4): V(f"v_pk_mul_f32 v[{ob+8*n+2*j}:{ob+8*n+2*j+1}], v[{vInv-1}:{vInv}], v[{ob+8*n+2*j}:{ob+8*n+2*j+1}]", deps=dd if j == 0 else [])
                else:
                    for j in range(8): V(f"v_mul_f32 v{ob+8*n+j}, v{vInv}, v{ob+8*n+j}", deps=dd if j == 0 else [])
                for j in range(4): V(f"v_cvt_pk_bf16_f32 v{ob+4*n+j}, v{ob+8*n+2*j}, v{ob+8*n+2*j+1}", tag=("pk", t, n, j))
                x = 2 * (t % 2) + n
                if t == 2 and n == 0: M(None, kind="waitl", tag=("or", 0, 3))
                M(f"ds_write_b128 v{vQA+x if x else vOW}, v[{ob+4*n}:{ob+4*n+3}]", tag=("ow", t, n), deps=[(("pk", t, n, 3), 0)])
            if t % 2 == 1:
                hf = t // 2; tb = vS + 16 * hf
                M(None, kind="waitl", tag=("ow", t, 1))
                for m in range(4): M(f"ds_read_b128 v[{tb+4*m}:{tb+4*m+3}], v{vOR} offset:{m*1024}", tag=("or", hf, m))
                if late and hf == 1: stores(0)
                if not (late and hf == 0): stores(hf)
        pos = {}; ni = [0]; t = [0]; lds = []; covered = [-1]; last_kind = [None]; wbusy = [0]
        def emit(text, cost, tag=None, kind="valu"):
            if kind == "lds" and last_kind[0] == "valu": cost += 8
            if kind in ("lds", "vm") and t[0] < wbusy[0]: t[0] = wbusy[0]
            if text.startswith("ds_write"): wbusy[0] = t[0] + WB
            e(text)
            if tag is not None: pos[tag] = ni[0]
            ni[0] += 1; t[0] += cost; last_kind[0] = kind
        def deps_ok(deps): return all(d in pos and ni[0] - pos[d] - 1 >= n for d, n in deps)
        def deps_emitted(deps): return all(d in pos for d, n in deps)
        def pad(deps):
            k = max(n - (ni[0] - pos[d] - 1) for d, n in deps)
            if k > 0: e(f"s_nop {k-1}"); ni[0] += k; t[0] += 4 * k; last_kind[0] = "salu"
        def lds_last(tag): return max(j for j, x in enumerate(lds) if x[0] == tag)
        def wait_lds(tag, greedy):
            last = lds_last(tag)
            if last <= covered[0]: return
            if greedy:
                while last + 1 < len(lds) and lds[last + 1][1] <= t[0] - LAT: last += 1
            n = len(lds) - 1 - last
            if n > 15: last = len(lds) - 1 - 15; n = 15
            t[0] = max(t[0], lds[last][1] + 100)
            emit(f"s_waitcnt lgkmcnt({n})", 4, kind="salu")
            covered[0] = last
        def site(name, skip):
            assert "chk" not in pos
            if barst: stamp(False, True)
            emit(f"s_cbranch_{skip} {name}", 10, kind="salu")
            e("s_barrier"); t[0] += 4
            e.label(name)
            if barst: stamp(False, True); sys.stderr.write(f"site {name} t={t[0]}\n")
        checked = [needl[0] if grp == "A" else 16]
        rp = [0]; lagdone = [0]; free = list(pool)
        def dep_far(m):
            for d, _ in m["deps"]:
                if d not in pos:
                    c = 0
                    for o in q:
                        if o["tag"] == d: break
                        c += o["cost"]
                    if c > post: return True
            return False
        def can_read(n_issued):
            while rp[0] < NM and mf[rp[0]]["ty"] == "L": rp[0] += 1
            if rp[0] >= NM or not free or rp[0] > n_issued + D: return False
            if t[0] < wbusy[0] and rp[0] > n_issued + 4: return False
            m = mf[rp[0]]
            if need[m["unit"]] > checked[0] and (rp[0] > n_issued + Dbar or dep_far(m)): return False
            return len(lds) - 1 - covered[0] + (1 if m["ty"] == "Q" else 2) <= 24
        def do_read():
            m = mf[rp[0]]
            if m["ty"] == "L": rp[0] += 1; return
            nd = need[m["unit"]]
            while nd > checked[0]:
                nx = min(x for x in needl if x > checked[0])
                bidx = needl.index(nx)
                assert bidx <= npre or lagdone[0] >= bidx - npre, (nx, "the followers' barrier site must come first")
                wait_lds(("Qf", 7), False)
                site(f"L_nb{nx}", "scc1")
                checked[0] = nx
            m["slot"] = free.pop(0)
            for r in reads(m, m["slot"]):
                emit(r, 4, kind="lds"); lds.append((("A", rp[0]), t[0]))
            rp[0] += 1
        def qm_ready(must=False):
            if not qm or not deps_ok(qm[0]["deps"]): return False
            o = qm[0]
            if o["kind"] == "waitl":
                if not any(x[0] == o["tag"] for x in lds): return False
                return must or lds[lds_last(o["tag"])][1] + 100 <= t[0] + 4 or lds_last(o["tag"]) <= covered[0]
            return must or t[0] >= wbusy[0]
        def emit_q(qq):
            o = qq.pop(0)
            if o["kind"] == "waitl": wait_lds(o["tag"], False)
            else:
                emit(o["text"], o["cost"], o["tag"], o["kind"])
                if o["kind"] == "lds": lds.append((o["tag"], t[0]))
        if grp == "A":
            for s in range(8):
                emit(f"ds_read_b128 v[{vQ+4*s}:{vQ+4*s+3}], v{vQA+(s%4)} offset:{(s//4)*4096}", 4, kind="lds"); lds.append((("Qf", s), t[0]))
                do_read()
        else:
            for s in range(4): lds.append((("Qf", 4 + s), 0))
            for s in range(8): do_read()
        pipe = 0; log = []
        for n, m in enumerate(mf):
            while True:
                if not deps_emitted(m["deps"]):
                    if rp[0] <= n and can_read(n - 1):
                        for _ in range(4):
                            if can_read(n - 1): do_read()
                    if not deps_ok(q[0]["deps"]):
                        assert deps_emitted(q[0]["deps"]), (m["tag"], q[0])
                        pad(q[0]["deps"])
                    emit_q(q); continue
                if q and deps_ok(q[0]["deps"]) and (t[0] + q[0]["cost"] <= pipe or not deps_ok(m["deps"])): emit_q(q); continue
                break
            if not deps_ok(m["deps"]): pad(m["deps"])
            while rp[0] <= n: do_read()
            if m["ty"] != "L": wait_lds(("A", n), True)
            t[0] = max(t[0], pipe)
            log.append((n, m["tag"], t[0]))
            pipe = t[0] + (16 if m["ty"] == "L" else 32)
            emit(mtext(m), 8, m["tag"], "mfma")
            if m["ty"] != "L": free.append(m["slot"])
            k = 0
            while can_read(n) and k < (1 if m["ty"] == "L" else (4 if rp[0] < n + 9 else 2)):
                k += 1 if mf[rp[0]]["ty"] == "Q" else 2
                do_read()
            while qm_ready() and t[0] + 4 <= pipe:
                isw = qm[0]["text"] and qm[0]["text"].startswith("ds_write")
                emit_q(qm)
                if isw: break
            if grp == "A":
                for j, x in enumerate(lagl + t5l[1:] + t6l[1:]):
                    if n == x: site(f"L_lg{j}", "scc0"); lagdone[0] += 1
                if t5l and n == t5l[0]:
                    assert checked[0] == 16
                    site("L_ld5", "scc1")
                if t6l and n == t6l[0]:
                    assert checked[0] == 16
                    site("L_ld6", "scc1"); pos["lastsite"] = ni[0] - 1
            if pairs and n in ((7, 23, 39, 55, 71, 87, 103, 119, 127) if NM == 128 else (7, 25, 43, 61, 79, 97, 115, 133, 143)):
                stamp(True, True); stamp(False, True); ni[0] += 2; t[0] += 8
            if m["tag"] in (("Q", 0, 7), ("P", 3, 0, 0), ("Q", 7, 7)):
                if stamp(): ni[0] += 1; t[0] += 4
        stamp()
        while q or qm:
            if qm_ready(): emit_q(qm)
            elif q and deps_ok(q[0]["deps"]): emit_q(q)
            elif qm_ready(True): emit_q(qm)
            else: pad(q[0]["deps"]); emit_q(q)
        if verbose:
            for x in log[::(1 if verbose == 2 else 8)]: sys.stderr.write(f"{grp} {x}\n")
            sys.stderr.write(f"{grp} last mfma {log[-1]} model end t={t[0]}\n")
        stamp()
        if pairs: stamp(True, True); stamp(False, True)

    m1 = mark()
    stamp()
    body("B", nsB, selB, patB, nfB)
    e("s_branch L_fin" if (stamps or spin) else "s_endpgm")
    e.label("L_A")
    rewind((m1[0] - (1 if (stamps and not lite) else 0), m1[1] - 1))
    setup(selA)
    if prioA: e(f"s_setprio {prioA}")
    if not gate: e("s_waitcnt vmcnt(8)")
    stamp()
    e("s_barrier                               ; K tile 0")
    e(f"s_bitcmp1_b32 s{sW}, 1")
    e("s_cbranch_scc0 L_lead")
    for _ in range(npre): e("s_barrier")
    e.label("L_lead")
    e("s_waitcnt vmcnt(0)")
    stamp()
    body("A", nsA, selA, patA, nfA)
    e.label("L_fin")
    if stamps:
        e("s_waitcnt vmcnt(0)")
        stamp(False, True); stamp(True, True)
        e("s_waitcnt lgkmcnt(0)")
        n = nst[0]
        e.c(f"nstamps={n}" + (" pairs" if pairs else ""))
        e(f"s_lshl_b32 s{sT}, s2, 3")
        e(f"s_add_u32 s{sT}, s{sT}, s{sW}")
        e(f"s_mul_i32 s{sT}, s{sT}, {n*8}")
        e(f"s_add_u32 s12, s12, s{sT}")
        e("s_addc_u32 s13, s13, 0")
        e("v_mov_b32 v1, 0")
        for j in range(n):
            e(f"v_mov_b32 v2, s{sStamp+2*j}")
            e(f"v_mov_b32 v3, s{sStamp+2*j+1}")
            e(f"global_store_dwordx2 v1, v[2:3], s[12:13] offset:{8*j}")
            e("s_nop 1")
    if spin:
        e("s_waitcnt vmcnt(0)")
        if enc == 99: e("s_memrealtime s[100:101]")
        e("s_waitcnt lgkmcnt(0)")
        if enc >= 0:
            e("s_sub_u32 s100, s100, s96")
            e("s_lshl_b32 s100, s100, 2")
            if encw >= 0:
                e(f"s_lshr_b32 s98, s{sW}, 1")
                e(f"s_cmp_eq_u32 s98, {encw}")
                e("s_cselect_b32 s100, s100, 0")
            e(f"s_add_u32 s100, s100, {spin}")
        else: e(f"s_mov_b32 s100, {spin}")
        e.label("L_spin")
        e("s_sleep 4")
        e("s_memrealtime s[98:99]")
        e("s_waitcnt lgkmcnt(0)")
        e("s_sub_u32 s98, s98, s96")
        e("s_cmp_lt_u32 s98, s100")
        e("s_cbranch_scc1 L_spin")
    e.label("L_end")
    e("s_endpgm")
    e.label("L_fb")
    e("s_waitcnt lgkmcnt(0)")
    e("s_nop 15")
    e(f"v_mov_b32 v{vThr}, 0x7f800000")
    e("v_and_b32 v2, 31, v0")
    e("v_lshrrev_b32 v3, 5, v0")
    e("v_lshlrev_b32 v4, 8, v2")
    e("v_lshl_add_u32 v4, v3, 4, v4")
    for s in range(8): e(f"buffer_load_dwordx4 v[{vQ+4*s}:{vQ+4*s+3}], v4, s[{SQ}:{SQ+3}], s{sQoff} offen offset:{s*32}")
    e(f"s_mov_b32 s{sT}, 0")
    e("s_waitcnt vmcnt(0)")
    e.label("L_fbloop")
    for s in range(8): e(f"ds_read_b128 v[{208+4*s}:{208+4*s+3}], v{vKA+s}")
    e("s_waitcnt lgkmcnt(0)")
    for s in range(8):
        e(f"v_mfma_f32_32x32x16_bf16 v[{vS}:{vS+15}], v[{208+4*s}:{208+4*s+3}], v[{vQ+4*s}:{vQ+4*s+3}], " + ("0" if s == 0 else f"v[{vS}:{vS+15}]"))
    for s in range(8): e(f"v_add_u32 v{vKA+s}, 0x2000, v{vKA+s}")
    e("s_nop 7")
    for j in range(0, 16, 2): e(f"v_max3_f32 v{vMT}, v{vMT}, v{vS+j}, v{vS+j+1}")
    e(f"s_add_u32 s{sT}, s{sT}, 1")
    e(f"s_cmp_lt_u32 s{sT}, 8")
    e("s_cbranch_scc1 L_fbloop")
    for s in range(8): e(f"v_subrev_u32 v{vKA+s}, 0x10000, v{vKA+s}")
    if selB: sel_const()
    e("s_branch L_mainB")
    if codepf:
        e.c("pad so that the code prefetch (16 KB from the entry) stays inside .text")
        e.label("L_pad")
        e(f".fill (16384 + 256 - (L_pad - {KN})) / 4, 4, 0xbf810000")
    text = e.text()
    for x in hz.check(text.split("\n")): sys.stderr.write(x + "\n")
    return HEADER + text + FOOTER

if __name__ == "__main__":
    kw = {}
    out = sys.argv[1]
    for a in sys.argv[2:]:
        k, v = a.split("=", 1)
        if v in ("True", "False"): v = v == "True"
        elif v.lstrip("-").isdigit(): v = int(v)
        kw[k] = v
    open(out, "w").write(gen(**kw))
```

```python
import sys, math, struct
from gen1 import E, FOOTER, f32bits
import hz
CC = math.log2(math.e) / math.sqrt(128.0)
KN = "standalone__gqa_softmax__near_ridge_kernel"

HEADER = """; GQA attention forward: B=8, Hq=32, Hkv=4, Sq=Sk=256, D=128, bf16 in / bf16 out, fp32 accumulation.
; Kernarg: q, k, v, out, debug, ws (8-byte pointers at offsets 0, 8, 16, 24, 32, 40).
;
; One workgroup (8 waves) per (batch, q head); the 8 heads that share a KV head sit on workgroup ids that are equal
; mod 8 (L2 locality only).  K and V of the head live in LDS (64 KB each, XOR-swizzled, filled by LDS-DMA); the last
; 32 KB hold one 4 KB staging block per wave (Q on the way in, O on the way out).
; Every wave owns one 32-row q tile.  S^T = K.Q^T and O^T = V^T.P^T are computed with 32x32x16 MFMAs, so a lane holds
; one q row and P feeds the second MFMA without any shuffle.  Waves 0-3 run first (0,1 lead; 2,3 follow when their Q
; has arrived); waves 4-7 issue the K/V loads meanwhile and run their own tiles afterwards.
; Softmax: the exponent is taken relative to the row maximum of the first 32 keys.  After the row sums are known they
; are checked against 2^30; if any row of the tile exceeds that (the stand-in was too low), the tile is redone with
; the exact row maximum over all 256 keys (L_fb).  The row sum is >= 1 by construction, so nothing can underflow.
; @launch grid=(256,1,1) block=(512,1,1) lds=163840
.amdgcn_target "amdgcn-amd-amdhsa--gfx950"
.text
.globl %s
.p2align 8
.type %s,@function
%s:
""" % (KN, KN, KN)

def gen(stamps=False, allreal=False, lite=False, pairs=False, barst=False, spin=0, enc=-1, encw=-1, verbose=False, forcefb=False,
        stflag="sc1", prioA=1, prioB=0, needs="1,2,4,8,16", caps="4,7,8,8,16", npre=2, lagsites="8,34", t6="70,42",
        nsA=0, selA=False, patA="", nfA=6, nsB=2, selB=True, patB="QPQQPLQQQQPQPL", nfB=0,
        D=12, LAT=160, Dbar=5, post=150, WB=48, lateA=True, pklast=True, thr=2.0**30, codepf=True, gate=True, ldq="", ldkv="",
        uorder="kfirst", vrot=True, q1at=99, uni=0, t5="", pkA=True, gatecnt=0, early8=-1):
    e = E()
    ints = lambda x: [int(y) for y in str(x).split(",")] if str(x) else []
    sW = 3
    SQ, SK, SV, SO = 16, 20, 24, 28
    sT, sT2, sQoff, sBuf, sW2, sT3, sVs = 32, 33, 34, 35, 36, 37, 38
    sStO = 92
    sStamp = 40
    nst = [0]; npt = [0]
    def stamp(real=False, keep=False):
        if npt[0] == enc: e("s_memrealtime s[100:101]")
        npt[0] += 1
        if not stamps or (lite and not keep): return False
        r = sStamp + 2 * nst[0]; nst[0] += 1
        assert r + 1 < 92
        e(f"{'s_memrealtime' if (real or allreal) else 's_memtime'} s[{r}:{r+1}]")
        return True
    def mark(): return (nst[0], npt[0])
    def rewind(m): nst[0], npt[0] = m
    vThr, vDV = 6, 7
    vKA, vVA, vQA = 8, 16, 20
    vOW, vOR, vOG = 24, 26, 27
    vM0, vM1, vNM, vC, vL0, vL1, vMT, vInv = 28, 29, 30, 31, 32, 33, 34, 35
    vDQ = 36
    vT = 40
    vDK = vT
    vQ, vS, vP = 48, 80, 112
    vO = [176, 192, vQ, vQ + 16]
    POOL = [208 + 4 * i for i in range(12)]
    vSelA, vSelC = POOL[-2], POOL[-1]
    if uorder == "kfirst": units = [("K", i) for i in range(8)] + [("V", i) for i in range(8)]
    else: units = [(u[0], int(u[1])) for u in uorder.split(",")]
    need = {u: n + 1 for n, u in enumerate(units)}
    needl, capl, lagl, t6l, t5l = ints(needs), ints(caps), ints(lagsites), ints(t6), ints(t5)
    assert needl[0] == 1 and needl[-1] == 16 and len(capl) == len(needl) and len(lagl) == len(needl) - 1 - npre
    if vrot: assert uorder == "kfirst" and not [x for x in needl if 8 < x < 16]

    def srd(r, p, off):
        e(f"s_add_u32 s{r}, s{p}, s{off}")
        e(f"s_addc_u32 s{r+1}, s{p+1}, 0")
    def srd_tail(r):
        e(f"s_mov_b32 s{r+2}, 0x10000")
        e(f"s_mov_b32 s{r+3}, 0x20000")
    def q_patterns():
        e("v_and_b32 v3, 7, v0")
        e("v_xor_b32 v3, v2, v3")
        e("v_lshlrev_b32 v3, 4, v3")
        e("v_lshrrev_b32 v4, 3, v0")
        e(f"v_lshl_add_u32 v{vDQ}, v4, 8, v3")
        e(f"v_xor_b32 v3, 64, v{vDQ}")
        e(f"v_add_u32 v{vDQ+2}, 0x800, v{vDQ}")
        e(f"v_add_u32 v{vDQ+1}, 0x400, v3")
        e(f"v_add_u32 v{vDQ+3}, 0xc00, v3")
    def k_pattern0(dst):
        e("v_and_b32 v3, 15, v0")
        e("v_xor_b32 v4, v2, v3")
        e("v_lshlrev_b32 v4, 4, v4")
        e(f"v_lshl_add_u32 v{dst}, v2, 8, v4")
    def q_dma(sSrc):
        for m in range(4): e(f"buffer_load_dwordx4 v{vDQ+m}, s[{SQ}:{SQ+3}], s{sSrc} offen offset:{m*1024} {ldq} lds")
    def q_tile():
        q_dma(sQoff)
        e(f"s_add_u32 m0, s{sBuf}, 4096")
        e("s_nop 0")
        q_dma(sT3)

    e("s_cmp_ge_u32 s2, 256")
    e("s_cbranch_scc1 L_end")
    stamp(True, True); stamp(False, True)
    if spin: e("s_memrealtime s[96:97]")
    e("s_load_dwordx4 s[4:7], s[0:1], 0")
    e("s_load_dwordx4 s[8:11], s[0:1], 16")
    if stamps: e("s_load_dwordx2 s[12:13], s[0:1], 40")
    e("v_lshrrev_b32 v1, 6, v0")
    e("v_and_b32 v0, 63, v0")
    e("s_lshr_b32 s15, s2, 3")
    e(f"v_readfirstlane_b32 s{sW}, v1")
    if codepf:
        e.c("pull this kernel's code into L2 (4 lines of 128 B per workgroup)")
        e("s_getpc_b64 s[18:19]")
        e(f"s_lshl_b32 s{sT}, s15, 9")
        e(f"s_add_u32 s18, s18, s{sT}")
        e("s_addc_u32 s19, s19, 0")
        e("v_and_b32 v2, 3, v0")
        e("v_lshlrev_b32 v2, 7, v2")
        e("global_load_dword v1, v2, s[18:19]")
    e("s_and_b32 s14, s2, 7")
    e(f"s_lshr_b32 s{sT}, s15, 3")
    e("s_lshl_b32 s14, s14, 2")
    e(f"s_add_u32 s14, s14, s{sT}")
    e("s_and_b32 s15, s15, 7")
    e(f"s_lshl_b32 s{sT}, s14, 3")
    e(f"s_add_u32 s15, s15, s{sT}")
    e("s_lshl_b32 s14, s14, 16")
    e("s_lshl_b32 s15, s15, 16")
    e("v_lshrrev_b32 v2, 4, v0")
    e(f"s_lshl_b32 s{sQoff}, s{sW}, 13")
    m0 = mark()
    if uni:
        sA, sB2, sOf, SX, vX = sT2, sT3, sW2, SO, 44
        q_patterns()
        k_pattern0(vDK)
        for m in range(1, 4): e(f"v_xor_b32 v{vDK+m}, {64*m}, v{vDK}")
        e(f"s_cmp_ge_u32 s{sW}, {2+uni}")
        e("s_cbranch_scc1 L_B")
        e(f"s_add_u32 s{sBuf}, s{sQoff}, 0x20000   ; staging block")
        e(f"s_sub_u32 s{sA}, s{sQoff}, 0x4000")
        srd_tail(SX)
        e(f"s_movk_i32 s{sB2}, 0x1000")
        e(f"s_cmp_lt_u32 s{sW}, 2")
        e("s_cselect_b64 vcc, -1, 0")
        e(f"s_cselect_b32 s{sT}, s{sBuf}, s{sA}")
        e(f"s_cselect_b32 s{sA}, s{sQoff}, s{sA}")
        e(f"s_cselect_b32 s{sB2}, 128, s{sB2}")
        e(f"s_cselect_b32 s{sOf}, s15, s14")
        e(f"s_mov_b32 m0, s{sT}")
        for m in range(4): e(f"v_cndmask_b32 v{vX+m}, v{vDK+m}, v{vDQ+m}, vcc")
        e("s_waitcnt lgkmcnt(0)")
        stamp()
        e(f"s_cselect_b32 s{SX}, s4, s6")
        e(f"s_cselect_b32 s{SX+1}, s5, s7")
        srd(SX, SX, sOf)
        for m in range(4): e(f"buffer_load_dwordx4 v{vX+m}, s[{SX}:{SX+3}], s{sA} offen offset:{m*1024} lds")
        e(f"s_add_u32 m0, s{sT}, 4096")
        e(f"s_add_u32 s{sB2}, s{sB2}, s{sA}")
        for m in range(4): e(f"buffer_load_dwordx4 v{vX+m}, s[{SX}:{SX+3}], s{sB2} offen offset:{m*1024} lds")
        e(f"s_cmp_ge_u32 s{sW}, 4")
        e("s_cbranch_scc1 L_B")
        srd(SQ, 4, 15); srd_tail(SQ)
        e(f"s_cmp_lt_u32 s{sW}, 2")
        e("s_cbranch_scc1 L_lead0")
        e(f"s_add_u32 s{sT3}, s{sQoff}, 128")
        e(f"s_mov_b32 m0, s{sBuf}")
        if gate: e("s_waitcnt vmcnt(0)")
        q_tile()
        e.label("L_lead0")
        stamp()
        e("s_branch L_A")
    else:
        e(f"s_cmp_ge_u32 s{sW}, 4")
        e("s_cbranch_scc1 L_B")
        e(f"s_add_u32 s{sBuf}, s{sQoff}, 0x20000   ; staging block")
        e(f"s_add_u32 s{sT3}, s{sQoff}, 128")
        srd_tail(SQ)
        e(f"s_cmp_ge_u32 s{sW}, 2")
        e("s_cbranch_scc1 L_lag")
        q_patterns()
        e(f"s_mov_b32 m0, s{sBuf}")
        e("s_waitcnt lgkmcnt(0)")
        stamp()
        srd(SQ, 4, 15)
        q_tile()
        stamp()
        e("s_branch L_A")
        e.label("L_lag")
        rewind(m0)
        k_pattern0(vDK)
        for m in range(1, 4): e(f"v_xor_b32 v{vDK+m}, {64*m}, v{vDK}")
        srd_tail(SK)
        e(f"s_and_b32 s{sT2}, s{sW}, 1")
        e(f"s_lshl_b32 s{sT2}, s{sT2}, 12")
        e(f"s_mov_b32 m0, s{sT2}")
        e("s_waitcnt lgkmcnt(0)")
        stamp()
        srd(SK, 6, 14)
        for m in range(4): e(f"buffer_load_dwordx4 v{vDK+m}, s[{SK}:{SK+3}], s{sT2} offen offset:{m*1024} {ldkv} lds")
        srd(SQ, 4, 15)
        e(f"s_mov_b32 m0, s{sBuf}")
        q_patterns()
        if gate: e(f"s_waitcnt vmcnt({gatecnt})")
        q_tile()
        stamp()
        e("s_branch L_A")

    def sel_const():
        e.c("row-sum MFMA A operand: 1.0 where (k group parity) == (row group parity)")
        e("v_lshrrev_b32 v4, 4, v0")
        e("v_lshrrev_b32 v5, 2, v0")
        e("v_xor_b32 v4, v4, v5")
        e("v_and_b32 v4, 1, v4")
        e("v_sub_u32 v4, v4, 1")
        for j in range(4): e(f"v_and_b32 v{vSelA+j}, 0x3f803f80, v4")
    def setup(sel):
        srd(SO, 10, 15); srd_tail(SO)
        e("v_and_b32 v2, 31, v0")
        e("v_lshrrev_b32 v3, 5, v0")
        e.c("K fragment addresses")
        e("v_and_b32 v4, 15, v0")
        e("v_xor_b32 v4, v4, v3")
        e("v_lshlrev_b32 v4, 4, v4")
        e(f"v_lshl_add_u32 v{vKA}, v2, 8, v4")
        for s in range(1, 8): e(f"v_xor_b32 v{vKA+s}, {s*32}, v{vKA}")
        e.c("Q fragment addresses")
        e("v_bfe_u32 v4, v0, 1, 3")
        e("v_xor_b32 v4, v4, v3")
        e("v_lshlrev_b32 v4, 4, v4")
        e("v_lshl_add_u32 v4, v2, 7, v4")
        e(f"v_add_u32 v{vQA}, s{sBuf}, v4")
        for s in range(1, 4): e(f"v_xor_b32 v{vQA+s}, {s*32}, v{vQA}")
        e.c("V fragment addresses (transposing reads)")
        e("v_bfe_u32 v4, v0, 2, 2")
        e("v_lshl_add_u32 v5, v3, 2, v4")
        e("v_lshlrev_b32 v5, 8, v5")
        e("v_lshl_add_u32 v5, v4, 6, v5")
        e("v_bfe_u32 v6, v0, 4, 1")
        e("v_lshl_add_u32 v5, v6, 5, v5")
        e("v_and_b32 v6, 1, v0")
        e("v_lshl_add_u32 v5, v6, 4, v5")
        e("v_bfe_u32 v6, v0, 1, 1")
        e("v_lshl_add_u32 v5, v6, 3, v5")
        e(f"v_add_u32 v{vVA}, 0x10000, v5")
        for t in range(1, 4): e(f"v_xor_b32 v{vVA+t}, {t*64}, v{vVA}")
        e.c("O staging: write, read-back and global addresses")
        e("v_and_b32 v4, 7, v0")
        e("v_xor_b32 v4, v4, v3")
        e("v_lshlrev_b32 v4, 4, v4")
        e("v_lshl_add_u32 v4, v2, 7, v4")
        e(f"v_add_u32 v{vOW}, s{sBuf}, v4")
        e("v_lshrrev_b32 v4, 3, v0")
        e("v_and_b32 v5, 7, v0")
        e("v_xor_b32 v6, v4, v5")
        e("v_lshlrev_b32 v6, 4, v6")
        e("v_lshl_add_u32 v6, v4, 7, v6")
        e(f"v_add_u32 v{vOR}, s{sBuf}, v6")
        e("v_lshlrev_b32 v5, 4, v5")
        e("v_lshl_add_u32 v5, v4, 8, v5")
        e(f"v_add_u32 v{vOG}, s{sQoff}, v5")
        for m in range(4): e(f"s_mov_b32 s{sStO+m}, {m*2048}")
        e(f"v_mov_b32 v{vC}, {hex(f32bits(CC))}")
        e(f"v_mov_b32 v{vMT}, 0xff800000")
        e(f"v_mov_b32 v{vThr}, {hex(f32bits(-1.0 if forcefb else thr))}")
        if sel: sel_const()

    e.label("L_B")
    rewind(m0)
    if not uni: k_pattern0(vDK)
    e(f"s_and_b32 s{sT}, s{sW}, 1")
    e(f"s_lshl_b32 s{sT}, s{sT}, 7")
    e(f"v_xor_b32 v{vDK}, s{sT}, v{vDK}")
    e(f"v_xor_b32 v{vDK+1}, 64, v{vDK}")
    e(f"s_and_b32 s{sW2}, s{sW}, 3")
    e(f"s_lshl_b32 s{sBuf}, s{sW2}, 13")
    e(f"s_add_u32 s{sBuf}, s{sBuf}, 0x21000")
    e(f"s_lshl_b32 s{sW2}, s{sW2}, 11")
    srd_tail(SK)
    e("s_waitcnt lgkmcnt(0)")
    stamp()
    srd(SK, 6, 14)
    vm = ["x"] + [f"u{j}" for j in range(2, uni)]
    def unit(n):
        kind, i = units[n]
        if kind == "V" and vrot:
            if i == 0:
                e.c("V tiles in an order rotated by the member index of the KV group")
                e(f"s_lshr_b32 s{sVs}, s15, 3")
                e(f"s_and_b32 s{sVs}, s{sVs}, 0xe000")
                e(f"s_add_u32 s{sVs}, s{sVs}, s{sW2}")
            else:
                e(f"s_add_u32 s{sVs}, s{sVs}, 8192")
                e(f"s_and_b32 s{sVs}, s{sVs}, 0xffff")
            e(f"s_add_u32 m0, s{sVs}, 0x10000")
            e("s_nop 0")
            so = sVs
        else:
            e(f"s_add_u32 m0, s{sW2}, {(0 if kind == 'K' else 0x10000) + i*8192}")
            e(f"s_add_u32 s{sT}, s{sW2}, {i*8192}")
            so = sT
        r = SK if kind == "K" else SV
        va = [vDK, vDK + 1] if kind == "K" else [vDV, vDV]
        for m in range(2): e(f"buffer_load_dwordx4 v{va[m]}, s[{r}:{r+3}], s{so} offen offset:{m*1024} {ldkv} lds")
        vm.extend([f"u{n}"] * 2)
    def vmwait(tags):
        idx = [j for j, x in enumerate(vm) if x in tags]
        if idx: e(f"s_waitcnt vmcnt({len(vm)-1-max(idx)})")
    def q1():
        e(f"s_mov_b32 m0, s{sBuf}")
        e("s_nop 0")
        q_dma(sQoff); vm.extend(["q1"] * 4)
    issued = max(1, uni); q1done = False
    for bi, nd in enumerate(needl):
        assert max(capl[bi], uni) >= nd
        while issued < capl[bi]: unit(issued); issued += 1
        if bi == 0:
            stamp()
            srd(SV, 8, 14); srd_tail(SV); srd(SQ, 4, 15); srd_tail(SQ)
            e("v_lshlrev_b32 v5, 2, v2")
            e("v_and_b32 v3, 15, v0")
            e("v_xor_b32 v5, v5, v3")
            e("v_lshlrev_b32 v5, 4, v5")
            e(f"v_lshl_add_u32 v{vDV}, v2, 8, v5")
            if not uni: q_patterns()
            setup(selB)
        if bi == q1at:
            assert bi > npre + 1 or bi == len(needl) - 1
            q1(); q1done = True
        vmwait({f"u{j}" for j in range(nd)})
        e("s_barrier")
    stamp()
    if t5l: e("s_barrier")
    if t6l:
        assert not q1done
        e(f"s_bitcmp1_b32 s{sW}, 1")
        e("s_cbranch_scc0 L_t6a")
        e("s_barrier")
        e.label("L_t6a")
        q1()
        e(f"s_bitcmp1_b32 s{sW}, 1")
        e("s_cbranch_scc1 L_t6b")
        e("s_barrier")
        e.label("L_t6b")
    elif not q1done: q1()
    def q_read(hf):
        for s in range(4): e(f"ds_read_b128 v[{vQ+16*hf+4*s}:{vQ+16*hf+4*s+3}], v{vQA+s}")
    e(f"s_add_u32 s{sT3}, s{sQoff}, 128")
    e("s_waitcnt vmcnt(0)")
    q_read(0)
    e("s_waitcnt lgkmcnt(0)")
    q_dma(sT3)
    e("s_waitcnt vmcnt(0)")
    q_read(1)
    if prioB: e(f"s_setprio {prioB}")
    e.label("L_mainB")

    def body(grp, ns, sel, pat, nf):
        pool = POOL[:-2] if sel else POOL
        preg = lambda i, u: vP + 8 * i + u
        mf = []
        def SEL(i, k):
            if sel: mf.append(dict(ty="L", i=i, k=k))
        def QK(i, s): mf.append(dict(ty="Q", i=i, s=s))
        def PV(i, k, t): mf.append(dict(ty="P", i=i, k=k, t=t))
        for s in range(8): QK(0, s)
        for s in range(8): QK(1, s)
        for t in range(ns): PV(0, 0, t)
        SEL(0, 0)
        for p in range(1, 7):
            lst = [(p - 1, 1, t) for t in range(ns)] + [(p, 0, t) for t in range(ns)]
            done = 0
            if pat:
                sq = sl = 0
                for ch in pat:
                    if ch == "Q": QK(p + 1, sq); sq += 1
                    elif ch == "P": PV(*lst[done]); done += 1
                    else: SEL(*((p - 1, 1) if sl == 0 else (p, 0))); sl += 1
                assert sq == 8 and done == len(lst)
                continue
            for s in range(8):
                QK(p + 1, s)
                want = (s + 1) * len(lst) // 8
                while done < want:
                    PV(*lst[done]); done += 1
                    if lst[done - 1][2] == min(1, ns - 1): SEL(*lst[done - 1][:2])
                if ns == 0 and s == 1: SEL(p - 1, 1)
                if ns == 0 and s == 5: SEL(p, 0)
        deferred = [(ks // 2, ks % 2, t) for t in range(ns, 4) for ks in range(16)]
        def defer(n):
            for _ in range(n):
                if deferred: PV(*deferred.pop(0))
        if ns == 0:
            d0, d1 = deferred[:16], deferred[16:32]
            deferred[:32] = d0[:14] + d1[:nf] + d0[14:15] + d1[nf:2*nf] + d0[15:] + d1[2*nf:]
            defer(12); SEL(6, 1); defer(2 + nf); SEL(7, 0); defer(1 + nf); SEL(7, 1); defer(64)
        else:
            for t in range(ns): PV(6, 1, t)
            SEL(6, 1); defer(nf)
            for t in range(ns): PV(7, 0, t)
            SEL(7, 0); defer(nf); SEL(7, 1)
            for t in range(ns): PV(7, 1, t)
            defer(64)
        NM = len(mf)
        assert NM == (144 if sel else 128)
        for m in mf:
            if m["ty"] == "Q":
                m["unit"] = ("K", m["i"]); m["tag"] = ("Q", m["i"], m["s"])
                m["deps"] = [(("f", m["i"] - 2, 15), 0)] if (m["s"] == 0 and m["i"] >= 2) else []
            elif m["ty"] == "L":
                m["tag"] = ("L", m["i"], m["k"]); m["deps"] = [(("c", m["i"], 4 * m["k"] + 3), 2)]
            else:
                m["unit"] = ("V", m["i"]); m["tag"] = ("P", m["i"], m["k"], m["t"])
                m["deps"] = [(("c", m["i"], 4 * m["k"] + 3), 2)]
        def reads(m, r):
            if m["ty"] == "Q": return [f"ds_read_b128 v[{r}:{r+3}], v{vKA+m['s']} offset:{m['i']*8192}"]
            ks = 2 * m["i"] + m["k"]
            return [f"ds_read_b64_tr_b16 v[{r}:{r+1}], v{vVA+m['t']} offset:{ks*4096}",
                    f"ds_read_b64_tr_b16 v[{r+2}:{r+3}], v{vVA+m['t']} offset:{ks*4096+2048}"]
        def mtext(m):
            if m["ty"] == "L":
                b = preg(m["i"], 4 * m["k"])
                return f"v_mfma_f32_16x16x32_bf16 v[{vSelC}:{vSelC+3}], v[{vSelA}:{vSelA+3}], v[{b}:{b+3}], " + ("0" if (m["i"], m["k"]) == (0, 0) else f"v[{vSelC}:{vSelC+3}]")
            r = m["slot"]
            if m["ty"] == "Q": d = vS + 16 * (m["i"] % 2); b = vQ + 4 * m["s"]; first = m["s"] == 0
            else: d = vO[m["t"]]; b = preg(m["i"], 4 * m["k"]); first = (m["i"], m["k"]) == (0, 0)
            return f"v_mfma_f32_32x32x16_bf16 v[{d}:{d+15}], v[{r}:{r+3}], v[{b}:{b+3}], " + ("0" if first else f"v[{d}:{d+15}]")
        q, qm = [], []
        def V(text, cost=4, tag=None, deps=(), kind="valu"): q.append(dict(text=text, cost=cost, tag=tag, deps=list(deps), kind=kind))
        def M(text, tag=None, deps=(), kind="lds"): qm.append(dict(text=text, cost=4, tag=tag, deps=list(deps), kind=kind))
        b = vS
        V(f"v_max3_f32 v{vM0}, v{b}, v{b+1}, v{b+2}", deps=[(("Q", 0, 7), 12)])
        V(f"v_max3_f32 v{vM1}, v{b+3}, v{b+4}, v{b+5}")
        for j in range(6, 16, 2):
            m = vM0 if (j // 2) % 2 == 1 else vM1
            V(f"v_max3_f32 v{m}, v{m}, v{b+j}, v{b+j+1}")
        V(f"v_max3_f32 v{vM0}, v{vM0}, v{vM1}, v{vMT}")
        V(f"v_mov_b32 v{vM1}, v{vM0}", tag="mv")
        V(f"v_permlane32_swap_b32 v{vM0}, v{vM1}", deps=[("mv", 2)])
        V(f"v_max_f32 v{vM0}, v{vM0}, v{vM1}")
        V(f"v_mul_f32 v{vNM}, {hex(f32bits(-CC))}, v{vM0}")
        def cvt(i):
            p, u = divmod(i, 8); ta = vT + 2 * (u % 4)
            return dict(text=f"v_cvt_pk_bf16_f32 v{preg(p, u)}, v{ta}, v{ta+1}", tag=("c", p, u), deps=[(("e", p, u), 1)])
        for i in range(64):
            p, u = divmod(i, 8)
            sa = vS + 16 * (p % 2) + 2 * u; ta = vT + 2 * (u % 4)
            f = [dict(text=f"v_fma_f32 v{ta}, v{sa}, v{vC}, v{vNM}", tag=("f", p, 2 * u), deps=[(("Q", p, 7), 12)] if u == 0 else []),
                 dict(text=f"v_fma_f32 v{ta+1}, v{sa+1}, v{vC}, v{vNM}", tag=("f", p, 2 * u + 1))]
            ee = [dict(text=f"v_exp_f32 v{ta}, v{ta}", cost=8, tag=("e0", p, u)), dict(text=f"v_exp_f32 v{ta+1}, v{ta+1}", cost=8, tag=("e", p, u))]
            a = [] if sel else [dict(text=f"v_mov_b32 v{vL0}, v{ta}" if i == 0 else f"v_add_f32 v{vL0}, v{vL0}, v{ta}", deps=[(("e0", p, u), 1)]),
                                dict(text=f"v_mov_b32 v{vL1}, v{ta+1}" if i == 0 else f"v_add_f32 v{vL1}, v{vL1}, v{ta+1}", deps=[(("e", p, u), 1)])]
            c = [cvt(i - 1)] if i else []
            lastc = [cvt(i)] if i == 63 else []
            for o in (f[:1] + c + f[1:] if (sel and u > 0) else c + f) + ee + a[:1] + lastc + a[1:]: V(**o)
        if sel:
            V(f"v_cmp_lt_f32 vcc, v{vThr}, v{vSelC}", deps=[(("L", 7, 1), 8)])
            V(f"v_rcp_f32 v{vInv}, v{vSelC}", cost=8, tag="rcp")
        else:
            V(f"v_add_f32 v{vL0}, v{vL0}, v{vL1}")
            V(f"v_mov_b32 v{vL1}, v{vL0}", tag="mv2")
            V(f"v_permlane32_swap_b32 v{vL0}, v{vL1}", deps=[("mv2", 2)])
            V(f"v_add_f32 v{vL0}, v{vL0}, v{vL1}")
            V(f"v_cmp_lt_f32 vcc, v{vThr}, v{vL0}")
            V(f"v_rcp_f32 v{vInv}, v{vL0}", cost=8, tag="rcp")
        for n in range(1, 4): V(f"v_xor_b32 v{vQA+n}, {32*n}, v{vOW}")
        V("s_cbranch_vccnz L_fb", kind="salu", tag="chk", deps=[("lastsite", 0)] if (grp == "A" and t6l) else [])
        lastP = {t: [m for m in mf if m["ty"] == "P" and m["t"] == t][-1]["tag"] for t in range(4)}
        late = lateA and grp == "A"
        def stores(h):
            base = vS + 16 * h
            for m in range(4):
                M(None, kind="waitl", tag=("or", h, m))
                M(f"buffer_store_dwordx4 v[{base+4*m}:{base+4*m+3}], v{vOG}, s[{SO}:{SO+3}], s{sStO+m} offen offset:{h*128} {stflag}".rstrip(), kind="vm")
        for t in range(4):
            ob = vO[t]
            for n in range(2):
                dd = [(lastP[t], 12), ("rcp", 1), ("chk", 0)] if n == 0 else []
                if pklast and t == 3 and (grp == "B" or pkA):
                    if n == 0: V(f"v_mov_b32 v{vInv-1}, v{vInv}", deps=[("rcp", 1), ("chk", 0)])
                    for j in range(4): V(f"v_pk_mul_f32 v[{ob+8*n+2*j}:{ob+8*n+2*j+1}], v[{vInv-1}:{vInv}], v[{ob+8*n+2*j}:{ob+8*n+2*j+1}]", deps=dd if j == 0 else [])
                else:
                    for j in range(8): V(f"v_mul_f32 v{ob+8*n+j}, v{vInv}, v{ob+8*n+j}", deps=dd if j == 0 else [])
                for j in range(4): V(f"v_cvt_pk_bf16_f32 v{ob+4*n+j}, v{ob+8*n+2*j}, v{ob+8*n+2*j+1}", tag=("pk", t, n, j))
                x = 2 * (t % 2) + n
                if t == 2 and n == 0: M(None, kind="waitl", tag=("or", 0, 3))
                M(f"ds_write_b128 v{vQA+x if x else vOW}, v[{ob+4*n}:{ob+4*n+3}]", tag=("ow", t, n), deps=[(("pk", t, n, 3), 0)])
            if t % 2 == 1:
                hf = t // 2; tb = vS + 16 * hf
                M(None, kind="waitl", tag=("ow", t, 1))
                for m in range(4): M(f"ds_read_b128 v[{tb+4*m}:{tb+4*m+3}], v{vOR} offset:{m*1024}", tag=("or", hf, m))
                if late and hf == 1: stores(0)
                if not (late and hf == 0): stores(hf)
        pos = {}; ni = [0]; t = [0]; lds = []; covered = [-1]; last_kind = [None]; wbusy = [0]
        def emit(text, cost, tag=None, kind="valu"):
            if kind == "lds" and last_kind[0] == "valu": cost += 8
            if kind in ("lds", "vm") and t[0] < wbusy[0]: t[0] = wbusy[0]
            if text.startswith("ds_write"): wbusy[0] = t[0] + WB
            e(text)
            if tag is not None: pos[tag] = ni[0]
            ni[0] += 1; t[0] += cost; last_kind[0] = kind
        def deps_ok(deps): return all(d in pos and ni[0] - pos[d] - 1 >= n for d, n in deps)
        def deps_emitted(deps): return all(d in pos for d, n in deps)
        def pad(deps):
            k = max(n - (ni[0] - pos[d] - 1) for d, n in deps)
            if k > 0: e(f"s_nop {k-1}"); ni[0] += k; t[0] += 4 * k; last_kind[0] = "salu"
        def lds_last(tag): return max(j for j, x in enumerate(lds) if x[0] == tag)
        def wait_lds(tag, greedy):
            last = lds_last(tag)
            if last <= covered[0]: return
            if greedy:
                while last + 1 < len(lds) and lds[last + 1][1] <= t[0] - LAT: last += 1
            n = len(lds) - 1 - last
            if n > 15: last = len(lds) - 1 - 15; n = 15
            t[0] = max(t[0], lds[last][1] + 100)
            emit(f"s_waitcnt lgkmcnt({n})", 4, kind="salu")
            covered[0] = last
        def site(name, skip):
            assert "chk" not in pos
            if barst: stamp(False, True)
            emit(f"s_cbranch_{skip} {name}", 10, kind="salu")
            e("s_barrier"); t[0] += 4
            e.label(name)
            if barst: stamp(False, True); sys.stderr.write(f"site {name} t={t[0]}\n")
        checked = [needl[0] if grp == "A" else 16]
        rp = [0]; lagdone = [0]; free = list(pool)
        def dep_far(m):
            for d, _ in m["deps"]:
                if d not in pos:
                    c = 0
                    for o in q:
                        if o["tag"] == d: break
                        c += o["cost"]
                    if c > post: return True
            return False
        def can_read(n_issued):
            while rp[0] < NM and mf[rp[0]]["ty"] == "L": rp[0] += 1
            if rp[0] >= NM or not free or rp[0] > n_issued + D: return False
            if t[0] < wbusy[0] and rp[0] > n_issued + 4: return False
            m = mf[rp[0]]
            if need[m["unit"]] > checked[0] and (rp[0] > n_issued + Dbar or dep_far(m)): return False
            return len(lds) - 1 - covered[0] + (1 if m["ty"] == "Q" else 2) <= 24
        def do_read():
            m = mf[rp[0]]
            if m["ty"] == "L": rp[0] += 1; return
            nd = need[m["unit"]]
            while nd > checked[0]:
                nx = min(x for x in needl if x > checked[0])
                bidx = needl.index(nx)
                assert bidx <= npre or lagdone[0] >= bidx - npre, (nx, "the followers' barrier site must come first")
                wait_lds(("Qf", 7), False)
                site(f"L_nb{nx}", "scc1")
                checked[0] = nx
            m["slot"] = free.pop(0)
            for r in reads(m, m["slot"]):
                emit(r, 4, kind="lds"); lds.append((("A", rp[0]), t[0]))
            rp[0] += 1
        def qm_ready(must=False):
            if not qm or not deps_ok(qm[0]["deps"]): return False
            o = qm[0]
            if o["kind"] == "waitl":
                if not any(x[0] == o["tag"] for x in lds): return False
                return must or lds[lds_last(o["tag"])][1] + 100 <= t[0] + 4 or lds_last(o["tag"]) <= covered[0]
            return must or t[0] >= wbusy[0]
        def emit_q(qq):
            o = qq.pop(0)
            if o["kind"] == "waitl": wait_lds(o["tag"], False)
            else:
                emit(o["text"], o["cost"], o["tag"], o["kind"])
                if o["kind"] == "lds": lds.append((o["tag"], t[0]))
        if grp == "A":
            for s in range(8):
                emit(f"ds_read_b128 v[{vQ+4*s}:{vQ+4*s+3}], v{vQA+(s%4)} offset:{(s//4)*4096}", 4, kind="lds"); lds.append((("Qf", s), t[0]))
                do_read()
        else:
            for s in range(4): lds.append((("Qf", 4 + s), 0))
            for s in range(8): do_read()
        pipe = 0; log = []
        for n, m in enumerate(mf):
            while True:
                if not deps_emitted(m["deps"]):
                    if rp[0] <= n and can_read(n - 1):
                        for _ in range(4):
                            if can_read(n - 1): do_read()
                    if not deps_ok(q[0]["deps"]):
                        assert deps_emitted(q[0]["deps"]), (m["tag"], q[0])
                        pad(q[0]["deps"])
                    emit_q(q); continue
                if q and deps_ok(q[0]["deps"]) and (t[0] + q[0]["cost"] <= pipe or not deps_ok(m["deps"])): emit_q(q); continue
                break
            if not deps_ok(m["deps"]): pad(m["deps"])
            while rp[0] <= n: do_read()
            if m["ty"] != "L": wait_lds(("A", n), True)
            t[0] = max(t[0], pipe)
            log.append((n, m["tag"], t[0]))
            pipe = t[0] + (16 if m["ty"] == "L" else 32)
            emit(mtext(m), 8, m["tag"], "mfma")
            if m["ty"] != "L": free.append(m["slot"])
            k = 0
            while can_read(n) and k < (1 if m["ty"] == "L" else (4 if rp[0] < n + 9 else 2)):
                k += 1 if mf[rp[0]]["ty"] == "Q" else 2
                do_read()
            while qm_ready() and t[0] + 4 <= pipe:
                isw = qm[0]["text"] and qm[0]["text"].startswith("ds_write")
                emit_q(qm)
                if isw: break
            if grp == "A" and n == early8 and checked[0] < 8:
                bidx = needl.index(8)
                assert needl[bidx - 1] == checked[0] and lagdone[0] >= bidx - npre
                site("L_nb8", "scc1"); checked[0] = 8
            if grp == "A":
                for j, x in enumerate(lagl + t5l[1:] + t6l[1:]):
                    if n == x: site(f"L_lg{j}", "scc0"); lagdone[0] += 1
                if t5l and n == t5l[0]:
                    assert checked[0] == 16
                    site("L_ld5", "scc1")
                if t6l and n == t6l[0]:
                    assert checked[0] == 16
                    site("L_ld6", "scc1"); pos["lastsite"] = ni[0] - 1
            if pairs and n in ((7, 23, 39, 55, 71, 87, 103, 119, 127) if NM == 128 else (7, 25, 43, 61, 79, 97, 115, 133, 143)):
                stamp(True, True); stamp(False, True); ni[0] += 2; t[0] += 8
            if m["tag"] in (("Q", 0, 7), ("P", 3, 0, 0), ("Q", 7, 7)) and not (barst and grp == "A"):
                if stamp(): ni[0] += 1; t[0] += 4
        stamp()
        while q or qm:
            if qm_ready(): emit_q(qm)
            elif q and deps_ok(q[0]["deps"]): emit_q(q)
            elif qm_ready(True): emit_q(qm)
            else: pad(q[0]["deps"]); emit_q(q)
        if verbose:
            for x in log[::(1 if verbose == 2 else 8)]: sys.stderr.write(f"{grp} {x}\n")
            sys.stderr.write(f"{grp} last mfma {log[-1]} model end t={t[0]}\n")
        stamp()
        if pairs: stamp(True, True); stamp(False, True)

    m1 = mark()
    stamp()
    body("B", nsB, selB, patB, nfB)
    e("s_branch L_fin" if (stamps or spin) else "s_endpgm")
    e.label("L_A")
    rewind((m1[0] - (1 if (stamps and not lite) else 0), m1[1] - 1))
    setup(selA)
    if prioA: e(f"s_setprio {prioA}")
    if not gate or gatecnt: e("s_waitcnt vmcnt(8)")
    stamp()
    e("s_barrier                               ; K tile 0")
    e(f"s_bitcmp1_b32 s{sW}, 1")
    e("s_cbranch_scc0 L_lead")
    for _ in range(npre): e("s_barrier")
    e.label("L_lead")
    e("s_waitcnt vmcnt(0)")
    stamp()
    body("A", nsA, selA, patA, nfA)
    e.label("L_fin")
    if barst: nst[0] = 24
    if stamps:
        e("s_waitcnt vmcnt(0)")
        stamp(False, True); stamp(True, True)
        e("s_waitcnt lgkmcnt(0)")
        n = nst[0]
        e.c(f"nstamps={n}" + (" pairs" if pairs else ""))
        e(f"s_lshl_b32 s{sT}, s2, 3")
        e(f"s_add_u32 s{sT}, s{sT}, s{sW}")
        e(f"s_mul_i32 s{sT}, s{sT}, {n*8}")
        e(f"s_add_u32 s12, s12, s{sT}")
        e("s_addc_u32 s13, s13, 0")
        e("v_mov_b32 v1, 0")
        for j in range(n):
            e(f"v_mov_b32 v2, s{sStamp+2*j}")
            e(f"v_mov_b32 v3, s{sStamp+2*j+1}")
            e(f"global_store_dwordx2 v1, v[2:3], s[12:13] offset:{8*j}")
            e("s_nop 1")
    if spin:
        e("s_waitcnt vmcnt(0)")
        if enc == 99: e("s_memrealtime s[100:101]")
        e("s_waitcnt lgkmcnt(0)")
        if enc >= 0:
            e("s_sub_u32 s100, s100, s96")
            e("s_lshl_b32 s100, s100, 2")
            if encw >= 0:
                e(f"s_lshr_b32 s98, s{sW}, 1")
                e(f"s_cmp_eq_u32 s98, {encw}")
                e("s_cselect_b32 s100, s100, 0")
            e(f"s_add_u32 s100, s100, {spin}")
        else: e(f"s_mov_b32 s100, {spin}")
        e.label("L_spin")
        e("s_sleep 4")
        e("s_memrealtime s[98:99]")
        e("s_waitcnt lgkmcnt(0)")
        e("s_sub_u32 s98, s98, s96")
        e("s_cmp_lt_u32 s98, s100")
        e("s_cbranch_scc1 L_spin")
    e.label("L_end")
    e("s_endpgm")
    e.label("L_fb")
    e("s_waitcnt lgkmcnt(0)")
    e("s_nop 15")
    e(f"v_mov_b32 v{vThr}, 0x7f800000")
    e("v_and_b32 v2, 31, v0")
    e("v_lshrrev_b32 v3, 5, v0")
    e("v_lshlrev_b32 v4, 8, v2")
    e("v_lshl_add_u32 v4, v3, 4, v4")
    for s in range(8): e(f"buffer_load_dwordx4 v[{vQ+4*s}:{vQ+4*s+3}], v4, s[{SQ}:{SQ+3}], s{sQoff} offen offset:{s*32}")
    e(f"s_mov_b32 s{sT}, 0")
    e("s_waitcnt vmcnt(0)")
    e.label("L_fbloop")
    for s in range(8): e(f"ds_read_b128 v[{208+4*s}:{208+4*s+3}], v{vKA+s}")
    e("s_waitcnt lgkmcnt(0)")
    for s in range(8):
        e(f"v_mfma_f32_32x32x16_bf16 v[{vS}:{vS+15}], v[{208+4*s}:{208+4*s+3}], v[{vQ+4*s}:{vQ+4*s+3}], " + ("0" if s == 0 else f"v[{vS}:{vS+15}]"))
    for s in range(8): e(f"v_add_u32 v{vKA+s}, 0x2000, v{vKA+s}")
    e("s_nop 7")
    for j in range(0, 16, 2): e(f"v_max3_f32 v{vMT}, v{vMT}, v{vS+j}, v{vS+j+1}")
    e(f"s_add_u32 s{sT}, s{sT}, 1")
    e(f"s_cmp_lt_u32 s{sT}, 8")
    e("s_cbranch_scc1 L_fbloop")
    for s in range(8): e(f"v_subrev_u32 v{vKA+s}, 0x10000, v{vKA+s}")
    if selB: sel_const()
    e("s_branch L_mainB")
    if codepf:
        e.c("pad so that the code prefetch (16 KB from the entry) stays inside .text")
        e.label("L_pad")
        e(f".fill (16384 + 256 - (L_pad - {KN})) / 4, 4, 0xbf810000")
    text = e.text()
    for x in hz.check(text.split("\n")): sys.stderr.write(x + "\n")
    return HEADER + text + FOOTER

if __name__ == "__main__":
    kw = {}
    out = sys.argv[1]
    for a in sys.argv[2:]:
        k, v = a.split("=", 1)
        if v in ("True", "False"): v = v == "True"
        elif v.lstrip("-").isdigit(): v = int(v)
        kw[k] = v
    open(out, "w").write(gen(**kw))
```

```python
import sys, math, struct
from gen1 import E, FOOTER, f32bits
import hz
CC = math.log2(math.e) / math.sqrt(128.0)
KN = "standalone__gqa_softmax__near_ridge_kernel"

HEADER = """; GQA attention forward: B=8, Hq=32, Hkv=4, Sq=Sk=256, D=128, bf16 in / bf16 out, fp32 accumulation.
; Kernarg: q, k, v, out, debug, ws (8-byte pointers at offsets 0, 8, 16, 24, 32, 40).
;
; One workgroup (8 waves) per (batch, q head); the 8 heads that share a KV head sit on workgroup ids that are equal
; mod 8 (L2 locality only).  K and V of the head live in LDS (64 KB each, XOR-swizzled, filled by LDS-DMA); the last
; 32 KB hold one 4 KB staging block per wave (Q on the way in, O on the way out).
; Every wave owns one 32-row q tile.  S^T = K.Q^T and O^T = V^T.P^T are computed with 32x32x16 MFMAs, so a lane holds
; one q row and P feeds the second MFMA without any shuffle.  Waves 0-3 run first (0,1 lead; 2,3 follow when their Q
; has arrived); waves 4-7 issue the K/V loads meanwhile and run their own tiles afterwards.
; Softmax: the exponent is taken relative to the row maximum of the first 32 keys.  After the row sums are known they
; are checked against 2^30; if any row of the tile exceeds that (the stand-in was too low), the tile is redone with
; the exact row maximum over all 256 keys (L_fb).  The row sum is >= 1 by construction, so nothing can underflow.
; @launch grid=(256,1,1) block=(512,1,1) lds=163840
.amdgcn_target "amdgcn-amd-amdhsa--gfx950"
.text
.globl %s
.p2align 8
.type %s,@function
%s:
""" % (KN, KN, KN)

def gen(stamps=False, allreal=False, lite=False, pairs=False, barst=False, spin=0, enc=-1, encw=-1, verbose=False, forcefb=False,
        stflag="sc1", prioA=1, prioB=0, needs="1,2,4,8,16", caps="4,7,8,8,16", npre=2, lagsites="8,34", t6="70,42",
        nsA=0, selA=False, patA="", nfA=6, nsB=2, selB=True, patB="QPQQPLQQQQPQPL", nfB=0,
        D=12, LAT=160, Dbar=5, post=150, WB=48, lateA=True, pklast=True, thr=2.0**30, codepf=True, gate=True, ldq="", ldkv="",
        uorder="kfirst", vrot=True, q1at=99, uni=0, t5="", pkA=True, gatecnt=0, early8=-1, stB1=None, stB0=None, hiB=-1, altA=0, jit=""):
    e = E()
    ints = lambda x: [int(y) for y in str(x).split(",")] if str(x) else []
    sW = 3
    SQ, SK, SV, SO = 16, 20, 24, 28
    sT, sT2, sQoff, sBuf, sW2, sT3, sVs = 32, 33, 34, 35, 36, 37, 38
    sStO, sMask = 92, 96
    sStamp = 40
    nst = [0]; npt = [0]
    def stamp(real=False, keep=False):
        if npt[0] == enc: e("s_memrealtime s[100:101]")
        npt[0] += 1
        if not stamps or (lite and not keep): return False
        r = sStamp + 2 * nst[0]; nst[0] += 1
        assert r + 1 < (90 if spin else 92)
        e(f"{'s_memrealtime' if (real or allreal) else 's_memtime'} s[{r}:{r+1}]")
        return True
    def mark(): return (nst[0], npt[0])
    def rewind(m): nst[0], npt[0] = m
    vThr, vDV = 6, 7
    vKA, vVA, vQA = 8, 16, 20
    vOW, vOR, vOG = 24, 26, 27
    vM0, vM1, vNM, vC, vL0, vL1, vMT, vInv = 28, 29, 30, 31, 32, 33, 34, 35
    vDQ = 36
    vT = 40
    vDK = vT
    vQ, vS, vP = 48, 80, 112
    vO = [176, 192, vQ, vQ + 16]
    POOL = [208 + 4 * i for i in range(12)]
    vSelA, vSelC = POOL[-2], POOL[-1]
    if uorder == "kfirst": units = [("K", i) for i in range(8)] + [("V", i) for i in range(8)]
    else: units = [(u[0], int(u[1])) for u in uorder.split(",")]
    need = {u: n + 1 for n, u in enumerate(units)}
    needl, capl, lagl, t6l, t5l = ints(needs), ints(caps), ints(lagsites), ints(t6), ints(t5)
    assert needl[0] == 1 and needl[-1] == 16 and len(capl) == len(needl) and len(lagl) == len(needl) - 1 - npre
    if vrot: assert uorder == "kfirst" and not [x for x in needl if 8 < x < 16]

    def srd(r, p, off):
        e(f"s_add_u32 s{r}, s{p}, s{off}")
        e(f"s_addc_u32 s{r+1}, s{p+1}, 0")
    def srd_tail(r):
        e(f"s_mov_b32 s{r+2}, 0x10000")
        e(f"s_mov_b32 s{r+3}, 0x20000")
    def q_patterns():
        e("v_and_b32 v3, 7, v0")
        e("v_xor_b32 v3, v2, v3")
        e("v_lshlrev_b32 v3, 4, v3")
        e("v_lshrrev_b32 v4, 3, v0")
        e(f"v_lshl_add_u32 v{vDQ}, v4, 8, v3")
        e(f"v_xor_b32 v3, 64, v{vDQ}")
        e(f"v_add_u32 v{vDQ+2}, 0x800, v{vDQ}")
        e(f"v_add_u32 v{vDQ+1}, 0x400, v3")
        e(f"v_add_u32 v{vDQ+3}, 0xc00, v3")
    def k_pattern0(dst):
        e("v_and_b32 v3, 15, v0")
        e("v_xor_b32 v4, v2, v3")
        e("v_lshlrev_b32 v4, 4, v4")
        e(f"v_lshl_add_u32 v{dst}, v2, 8, v4")
    def q_dma(sSrc):
        for m in range(4): e(f"buffer_load_dwordx4 v{vDQ+m}, s[{SQ}:{SQ+3}], s{sSrc} offen offset:{m*1024} {ldq} lds")
    def q_tile():
        q_dma(sQoff)
        e(f"s_add_u32 m0, s{sBuf}, 4096")
        e("s_nop 0")
        q_dma(sT3)

    e("s_cmp_ge_u32 s2, 256")
    e("s_cbranch_scc1 L_end")
    stamp(True, True); stamp(False, True)
    if spin: e("s_memrealtime s[90:91]")
    e("s_load_dwordx4 s[4:7], s[0:1], 0")
    e("s_load_dwordx4 s[8:11], s[0:1], 16")
    if stamps: e("s_load_dwordx2 s[12:13], s[0:1], 40")
    e("v_lshrrev_b32 v1, 6, v0")
    e("v_and_b32 v0, 63, v0")
    e("s_lshr_b32 s15, s2, 3")
    e(f"v_readfirstlane_b32 s{sW}, v1")
    if codepf:
        e.c("pull this kernel's code into L2 (4 lines of 128 B per workgroup)")
        e("s_getpc_b64 s[18:19]")
        e(f"s_lshl_b32 s{sT}, s15, 9")
        e(f"s_add_u32 s18, s18, s{sT}")
        e("s_addc_u32 s19, s19, 0")
        e("v_and_b32 v2, 3, v0")
        e("v_lshlrev_b32 v2, 7, v2")
        e("global_load_dword v1, v2, s[18:19]")
    e("s_and_b32 s14, s2, 7")
    e(f"s_lshr_b32 s{sT}, s15, 3")
    e("s_lshl_b32 s14, s14, 2")
    e(f"s_add_u32 s14, s14, s{sT}")
    e("s_and_b32 s15, s15, 7")
    e(f"s_lshl_b32 s{sT}, s14, 3")
    e(f"s_add_u32 s15, s15, s{sT}")
    e("s_lshl_b32 s14, s14, 16")
    e("s_lshl_b32 s15, s15, 16")
    e("v_lshrrev_b32 v2, 4, v0")
    e(f"s_lshl_b32 s{sQoff}, s{sW}, 13")
    def jitter(tag):
        if not jit: return
        for spec in jit.split(","):
            where, mask, amt = spec.split(":")
            if where != tag: continue
            lab = f"L_j{tag}_{len(e.l)}"
            e(f"s_lshr_b32 s98, {mask}, s{sW}")
            e("s_bitcmp1_b32 s98, 0")
            e(f"s_cbranch_scc0 {lab}")
            for _ in range(int(amt)): e("s_sleep 40")
            e.label(lab)
    jitter("start")
    m0 = mark()
    if uni:
        sA, sB2, sOf, SX, vX = sT2, sT3, sW2, SO, 44
        q_patterns()
        k_pattern0(vDK)
        for m in range(1, 4): e(f"v_xor_b32 v{vDK+m}, {64*m}, v{vDK}")
        e(f"s_cmp_ge_u32 s{sW}, {2+uni}")
        e("s_cbranch_scc1 L_B")
        e(f"s_add_u32 s{sBuf}, s{sQoff}, 0x20000   ; staging block")
        e(f"s_sub_u32 s{sA}, s{sQoff}, 0x4000")
        srd_tail(SX)
        e(f"s_movk_i32 s{sB2}, 0x1000")
        e(f"s_cmp_lt_u32 s{sW}, 2")
        e("s_cselect_b64 vcc, -1, 0")
        e(f"s_cselect_b32 s{sT}, s{sBuf}, s{sA}")
        e(f"s_cselect_b32 s{sA}, s{sQoff}, s{sA}")
        e(f"s_cselect_b32 s{sB2}, 128, s{sB2}")
        e(f"s_cselect_b32 s{sOf}, s15, s14")
        e(f"s_mov_b32 m0, s{sT}")
        for m in range(4): e(f"v_cndmask_b32 v{vX+m}, v{vDK+m}, v{vDQ+m}, vcc")
        e("s_waitcnt lgkmcnt(0)")
        stamp()
        e(f"s_cselect_b32 s{SX}, s4, s6")
        e(f"s_cselect_b32 s{SX+1}, s5, s7")
        srd(SX, SX, sOf)
        for m in range(4): e(f"buffer_load_dwordx4 v{vX+m}, s[{SX}:{SX+3}], s{sA} offen offset:{m*1024} lds")
        e(f"s_add_u32 m0, s{sT}, 4096")
        e(f"s_add_u32 s{sB2}, s{sB2}, s{sA}")
        for m in range(4): e(f"buffer_load_dwordx4 v{vX+m}, s[{SX}:{SX+3}], s{sB2} offen offset:{m*1024} lds")
        e(f"s_cmp_ge_u32 s{sW}, 4")
        e("s_cbranch_scc1 L_B")
        srd(SQ, 4, 15); srd_tail(SQ)
        e(f"s_cmp_lt_u32 s{sW}, 2")
        e("s_cbranch_scc1 L_lead0")
        e(f"s_add_u32 s{sT3}, s{sQoff}, 128")
        e(f"s_mov_b32 m0, s{sBuf}")
        if gate: e("s_waitcnt vmcnt(0)")
        q_tile()
        e.label("L_lead0")
        stamp()
        e("s_branch L_A")
    else:
        e(f"s_cmp_ge_u32 s{sW}, 4")
        e("s_cbranch_scc1 L_B")
        e(f"s_add_u32 s{sBuf}, s{sQoff}, 0x20000   ; staging block")
        e(f"s_add_u32 s{sT3}, s{sQoff}, 128")
        srd_tail(SQ)
        e(f"s_cmp_ge_u32 s{sW}, 2")
        e("s_cbranch_scc1 L_lag")
        q_patterns()
        e(f"s_mov_b32 m0, s{sBuf}")
        e("s_waitcnt lgkmcnt(0)")
        stamp()
        srd(SQ, 4, 15)
        q_tile()
        stamp()
        e("s_branch L_A")
        e.label("L_lag")
        rewind(m0)
        k_pattern0(vDK)
        for m in range(1, 4): e(f"v_xor_b32 v{vDK+m}, {64*m}, v{vDK}")
        srd_tail(SK)
        e(f"s_and_b32 s{sT2}, s{sW}, 1")
        e(f"s_lshl_b32 s{sT2}, s{sT2}, 12")
        e(f"s_mov_b32 m0, s{sT2}")
        e("s_waitcnt lgkmcnt(0)")
        stamp()
        srd(SK, 6, 14)
        for m in range(4): e(f"buffer_load_dwordx4 v{vDK+m}, s[{SK}:{SK+3}], s{sT2} offen offset:{m*1024} {ldkv} lds")
        srd(SQ, 4, 15)
        e(f"s_mov_b32 m0, s{sBuf}")
        q_patterns()
        if gate: e(f"s_waitcnt vmcnt({gatecnt})")
        q_tile()
        stamp()
        e("s_branch L_A")

    def sel_const():
        e.c("row-sum MFMA A operand: 1.0 where (k group parity) == (row group parity)")
        e("v_lshrrev_b32 v4, 4, v0")
        e("v_lshrrev_b32 v5, 2, v0")
        e("v_xor_b32 v4, v4, v5")
        e("v_and_b32 v4, 1, v4")
        e("v_sub_u32 v4, v4, 1")
        for j in range(4): e(f"v_and_b32 v{vSelA+j}, 0x3f803f80, v4")
    def setup(sel):
        srd(SO, 10, 15); srd_tail(SO)
        e("v_and_b32 v2, 31, v0")
        e("v_lshrrev_b32 v3, 5, v0")
        e.c("K fragment addresses")
        e("v_and_b32 v4, 15, v0")
        e("v_xor_b32 v4, v4, v3")
        e("v_lshlrev_b32 v4, 4, v4")
        e(f"v_lshl_add_u32 v{vKA}, v2, 8, v4")
        for s in range(1, 8): e(f"v_xor_b32 v{vKA+s}, {s*32}, v{vKA}")
        e.c("Q fragment addresses")
        e("v_bfe_u32 v4, v0, 1, 3")
        e("v_xor_b32 v4, v4, v3")
        e("v_lshlrev_b32 v4, 4, v4")
        e("v_lshl_add_u32 v4, v2, 7, v4")
        e(f"v_add_u32 v{vQA}, s{sBuf}, v4")
        for s in range(1, 4): e(f"v_xor_b32 v{vQA+s}, {s*32}, v{vQA}")
        e.c("V fragment addresses (transposing reads)")
        e("v_bfe_u32 v4, v0, 2, 2")
        e("v_lshl_add_u32 v5, v3, 2, v4")
        e("v_lshlrev_b32 v5, 8, v5")
        e("v_lshl_add_u32 v5, v4, 6, v5")
        e("v_bfe_u32 v6, v0, 4, 1")
        e("v_lshl_add_u32 v5, v6, 5, v5")
        e("v_and_b32 v6, 1, v0")
        e("v_lshl_add_u32 v5, v6, 4, v5")
        e("v_bfe_u32 v6, v0, 1, 1")
        e("v_lshl_add_u32 v5, v6, 3, v5")
        e(f"v_add_u32 v{vVA}, 0x10000, v5")
        for t in range(1, 4): e(f"v_xor_b32 v{vVA+t}, {t*64}, v{vVA}")
        e.c("O staging: write, read-back and global addresses")
        e("v_and_b32 v4, 7, v0")
        e("v_xor_b32 v4, v4, v3")
        e("v_lshlrev_b32 v4, 4, v4")
        e("v_lshl_add_u32 v4, v2, 7, v4")
        e(f"v_add_u32 v{vOW}, s{sBuf}, v4")
        e("v_lshrrev_b32 v4, 3, v0")
        e("v_and_b32 v5, 7, v0")
        e("v_xor_b32 v6, v4, v5")
        e("v_lshlrev_b32 v6, 4, v6")
        e("v_lshl_add_u32 v6, v4, 7, v6")
        e(f"v_add_u32 v{vOR}, s{sBuf}, v6")
        e("v_lshlrev_b32 v5, 4, v5")
        e("v_lshl_add_u32 v5, v4, 8, v5")
        e(f"v_add_u32 v{vOG}, s{sQoff}, v5")
        for m in range(4): e(f"s_mov_b32 s{sStO+m}, {m*2048}")
        e(f"v_mov_b32 v{vC}, {hex(f32bits(CC))}")
        e(f"v_mov_b32 v{vMT}, 0xff800000")
        e(f"v_mov_b32 v{vThr}, {hex(f32bits(-1.0 if forcefb else thr))}")
        if sel: sel_const(); e(f"s_mov_b64 s[{sMask}:{sMask+1}], -1")

    e.label("L_B")
    rewind(m0)
    if not uni: k_pattern0(vDK)
    e(f"s_and_b32 s{sT}, s{sW}, 1")
    e(f"s_lshl_b32 s{sT}, s{sT}, 7")
    e(f"v_xor_b32 v{vDK}, s{sT}, v{vDK}")
    e(f"v_xor_b32 v{vDK+1}, 64, v{vDK}")
    e(f"s_and_b32 s{sW2}, s{sW}, 3")
    e(f"s_lshl_b32 s{sBuf}, s{sW2}, 13")
    e(f"s_add_u32 s{sBuf}, s{sBuf}, 0x21000")
    e(f"s_lshl_b32 s{sW2}, s{sW2}, 11")
    srd_tail(SK)
    e("s_waitcnt lgkmcnt(0)")
    stamp()
    srd(SK, 6, 14)
    vm = ["x"] + [f"u{j}" for j in range(2, uni)]
    def unit(n):
        kind, i = units[n]
        if kind == "V" and vrot:
            if i == 0:
                e.c("V tiles in an order rotated by the member index of the KV group")
                e(f"s_lshr_b32 s{sVs}, s15, 3")
                e(f"s_and_b32 s{sVs}, s{sVs}, 0xe000")
                e(f"s_add_u32 s{sVs}, s{sVs}, s{sW2}")
            else:
                e(f"s_add_u32 s{sVs}, s{sVs}, 8192")
                e(f"s_and_b32 s{sVs}, s{sVs}, 0xffff")
            e(f"s_add_u32 m0, s{sVs}, 0x10000")
            e("s_nop 0")
            so = sVs
        else:
            e(f"s_add_u32 m0, s{sW2}, {(0 if kind == 'K' else 0x10000) + i*8192}")
            e(f"s_add_u32 s{sT}, s{sW2}, {i*8192}")
            so = sT
        r = SK if kind == "K" else SV
        va = [vDK, vDK + 1] if kind == "K" else [vDV, vDV]
        for m in range(2): e(f"buffer_load_dwordx4 v{va[m]}, s[{r}:{r+3}], s{so} offen offset:{m*1024} {ldkv} lds")
        vm.extend([f"u{n}"] * 2)
    def vmwait(tags):
        idx = [j for j, x in enumerate(vm) if x in tags]
        if idx: e(f"s_waitcnt vmcnt({len(vm)-1-max(idx)})")
    def q1():
        e(f"s_mov_b32 m0, s{sBuf}")
        e("s_nop 0")
        q_dma(sQoff); vm.extend(["q1"] * 4)
    issued = max(1, uni); q1done = False
    for bi, nd in enumerate(needl):
        assert max(capl[bi], uni) >= nd
        while issued < capl[bi]: unit(issued); issued += 1
        if bi == 0:
            stamp()
            srd(SV, 8, 14); srd_tail(SV); srd(SQ, 4, 15); srd_tail(SQ)
            e("v_lshlrev_b32 v5, 2, v2")
            e("v_and_b32 v3, 15, v0")
            e("v_xor_b32 v5, v5, v3")
            e("v_lshlrev_b32 v5, 4, v5")
            e(f"v_lshl_add_u32 v{vDV}, v2, 8, v5")
            if not uni: q_patterns()
            setup(selB)
        if bi == q1at:
            assert bi > npre + 1 or bi == len(needl) - 1
            q1(); q1done = True
        vmwait({f"u{j}" for j in range(nd)})
        e("s_barrier")
    stamp()
    if t5l: e("s_barrier")
    if t6l:
        assert not q1done
        e(f"s_bitcmp1_b32 s{sW}, 1")
        e("s_cbranch_scc0 L_t6a")
        e("s_barrier")
        e.label("L_t6a")
        q1()
        e(f"s_bitcmp1_b32 s{sW}, 1")
        e("s_cbranch_scc1 L_t6b")
        e("s_barrier")
        e.label("L_t6b")
    elif not q1done: q1()
    def q_read(hf):
        for s in range(4): e(f"ds_read_b128 v[{vQ+16*hf+4*s}:{vQ+16*hf+4*s+3}], v{vQA+s}")
    e(f"s_add_u32 s{sT3}, s{sQoff}, 128")
    jitter("B1")
    e("s_waitcnt vmcnt(0)")
    q_read(0)
    e("s_waitcnt lgkmcnt(0)")
    q_dma(sT3)
    e("s_waitcnt vmcnt(0)")
    q_read(1)
    jitter("B2")
    if prioB or hiB >= 0: e(f"s_setprio {2 if hiB >= 0 else prioB}")
    e.label("L_mainB")

    def body(grp, ns, sel, pat, nf):
        pool = POOL[:-2] if sel else POOL
        preg = lambda i, u: vP + 8 * i + u
        mf = []
        def SEL(i, k):
            if sel: mf.append(dict(ty="L", i=i, k=k))
        def QK(i, s): mf.append(dict(ty="Q", i=i, s=s))
        def PV(i, k, t): mf.append(dict(ty="P", i=i, k=k, t=t))
        for s in range(8): QK(0, s)
        for s in range(8): QK(1, s)
        for t in range(ns): PV(0, 0, t)
        SEL(0, 0)
        for p in range(1, 7):
            lst = [(p - 1, 1, t) for t in range(ns)] + [(p, 0, t) for t in range(ns)]
            done = 0
            if pat:
                sq = sl = 0
                for ch in pat:
                    if ch == "Q": QK(p + 1, sq); sq += 1
                    elif ch == "P": PV(*lst[done]); done += 1
                    else: SEL(*((p - 1, 1) if sl == 0 else (p, 0))); sl += 1
                assert sq == 8 and done == len(lst)
                continue
            for s in range(8):
                QK(p + 1, s)
                want = (s + 1) * len(lst) // 8
                while done < want:
                    PV(*lst[done]); done += 1
                    if lst[done - 1][2] == min(1, ns - 1): SEL(*lst[done - 1][:2])
                if ns == 0 and s == 1: SEL(p - 1, 1)
                if ns == 0 and s == 5: SEL(p, 0)
        deferred = [(ks // 2, ks % 2, t) for t in range(ns, 4) for ks in range(16)]
        def defer(n):
            for _ in range(n):
                if deferred: PV(*deferred.pop(0))
        if ns == 0 and altA and grp == "A":
            assert not sel
            dd = [deferred[16*t:16*t+16] for t in range(4)]
            o = [x for ks in range(16) for x in (dd[0][ks], dd[1][ks])]
            if altA == 1: o += [x for ks in range(16) for x in (dd[2][ks], dd[3][ks])]
            else: o += [x for ks in range(12) for x in (dd[2][ks], dd[3][ks])] + dd[2][12:] + dd[3][12:]
            for x in o: PV(*x)
        elif ns == 0:
            d0, d1 = deferred[:16], deferred[16:32]
            deferred[:32] = d0[:14] + d1[:nf] + d0[14:15] + d1[nf:2*nf] + d0[15:] + d1[2*nf:]
            defer(12); SEL(6, 1); defer(2 + nf); SEL(7, 0); defer(1 + nf); SEL(7, 1); defer(64)
        else:
            for t in range(ns): PV(6, 1, t)
            SEL(6, 1); defer(nf)
            for t in range(ns): PV(7, 0, t)
            SEL(7, 0); defer(nf); SEL(7, 1)
            for t in range(ns): PV(7, 1, t)
            defer(64)
        NM = len(mf)
        assert NM == (144 if sel else 128)
        for m in mf:
            if m["ty"] == "Q":
                m["unit"] = ("K", m["i"]); m["tag"] = ("Q", m["i"], m["s"])
                m["deps"] = [(("f", m["i"] - 2, 15), 0)] if (m["s"] == 0 and m["i"] >= 2) else []
            elif m["ty"] == "L":
                m["tag"] = ("L", m["i"], m["k"]); m["deps"] = [(("c", m["i"], 4 * m["k"] + 3), 2)]
            else:
                m["unit"] = ("V", m["i"]); m["tag"] = ("P", m["i"], m["k"], m["t"])
                m["deps"] = [(("c", m["i"], 4 * m["k"] + 3), 2)]
        def reads(m, r):
            if m["ty"] == "Q": return [f"ds_read_b128 v[{r}:{r+3}], v{vKA+m['s']} offset:{m['i']*8192}"]
            ks = 2 * m["i"] + m["k"]
            return [f"ds_read_b64_tr_b16 v[{r}:{r+1}], v{vVA+m['t']} offset:{ks*4096}",
                    f"ds_read_b64_tr_b16 v[{r+2}:{r+3}], v{vVA+m['t']} offset:{ks*4096+2048}"]
        def mtext(m):
            if m["ty"] == "L":
                b = preg(m["i"], 4 * m["k"])
                return f"v_mfma_f32_16x16x32_bf16 v[{vSelC}:{vSelC+3}], v[{vSelA}:{vSelA+3}], v[{b}:{b+3}], " + ("0" if (m["i"], m["k"]) == (0, 0) else f"v[{vSelC}:{vSelC+3}]")
            r = m["slot"]
            if m["ty"] == "Q": d = vS + 16 * (m["i"] % 2); b = vQ + 4 * m["s"]; first = m["s"] == 0
            else: d = vO[m["t"]]; b = preg(m["i"], 4 * m["k"]); first = (m["i"], m["k"]) == (0, 0)
            return f"v_mfma_f32_32x32x16_bf16 v[{d}:{d+15}], v[{r}:{r+3}], v[{b}:{b+3}], " + ("0" if first else f"v[{d}:{d+15}]")
        q, qm = [], []
        def V(text, cost=4, tag=None, deps=(), kind="valu"): q.append(dict(text=text, cost=cost, tag=tag, deps=list(deps), kind=kind))
        def M(text, tag=None, deps=(), kind="lds"): qm.append(dict(text=text, cost=4, tag=tag, deps=list(deps), kind=kind))
        b = vS
        V(f"v_max3_f32 v{vM0}, v{b}, v{b+1}, v{b+2}", deps=[(("Q", 0, 7), 12)])
        V(f"v_max3_f32 v{vM1}, v{b+3}, v{b+4}, v{b+5}")
        for j in range(6, 16, 2):
            m = vM0 if (j // 2) % 2 == 1 else vM1
            V(f"v_max3_f32 v{m}, v{m}, v{b+j}, v{b+j+1}")
        V(f"v_max3_f32 v{vM0}, v{vM0}, v{vM1}, v{vMT}")
        V(f"v_mov_b32 v{vM1}, v{vM0}", tag="mv")
        V(f"v_permlane32_swap_b32 v{vM0}, v{vM1}", deps=[("mv", 2)])
        V(f"v_max_f32 v{vM0}, v{vM0}, v{vM1}")
        V(f"v_mul_f32 v{vNM}, {hex(f32bits(-CC))}, v{vM0}")
        def cvt(i):
            p, u = divmod(i, 8); ta = vT + 2 * (u % 4)
            return dict(text=f"v_cvt_pk_bf16_f32 v{preg(p, u)}, v{ta}, v{ta+1}", tag=("c", p, u), deps=[(("e", p, u), 1)])
        for i in range(64):
            p, u = divmod(i, 8)
            sa = vS + 16 * (p % 2) + 2 * u; ta = vT + 2 * (u % 4)
            f = [dict(text=f"v_fma_f32 v{ta}, v{sa}, v{vC}, v{vNM}", tag=("f", p, 2 * u), deps=[(("Q", p, 7), 12)] if u == 0 else []),
                 dict(text=f"v_fma_f32 v{ta+1}, v{sa+1}, v{vC}, v{vNM}", tag=("f", p, 2 * u + 1))]
            ee = [dict(text=f"v_exp_f32 v{ta}, v{ta}", cost=8, tag=("e0", p, u)), dict(text=f"v_exp_f32 v{ta+1}, v{ta+1}", cost=8, tag=("e", p, u))]
            a = [] if sel else [dict(text=f"v_mov_b32 v{vL0}, v{ta}" if i == 0 else f"v_add_f32 v{vL0}, v{vL0}, v{ta}", deps=[(("e0", p, u), 1)]),
                                dict(text=f"v_mov_b32 v{vL1}, v{ta+1}" if i == 0 else f"v_add_f32 v{vL1}, v{vL1}, v{ta+1}", deps=[(("e", p, u), 1)])]
            c = [cvt(i - 1)] if i else []
            lastc = [cvt(i)] if i == 63 else []
            for o in (f[:1] + c + f[1:] if (sel and u > 0) else c + f) + ee + a[:1] + lastc + a[1:]: V(**o)
        if sel:
            V(f"v_cmp_nge_f32 vcc, v{vThr}, v{vSelC}", deps=[(("L", 7, 1), 8)])
            V(f"v_rcp_f32 v{vInv}, v{vSelC}", cost=8, tag="rcp")
        else:
            V(f"v_add_f32 v{vL0}, v{vL0}, v{vL1}")
            V(f"v_mov_b32 v{vL1}, v{vL0}", tag="mv2")
            V(f"v_permlane32_swap_b32 v{vL0}, v{vL1}", deps=[("mv2", 2)])
            V(f"v_add_f32 v{vL0}, v{vL0}, v{vL1}")
            V(f"v_cmp_lt_f32 vcc, v{vThr}, v{vL0}")
            V(f"v_rcp_f32 v{vInv}, v{vL0}", cost=8, tag="rcp")
        for n in range(1, 4): V(f"v_xor_b32 v{vQA+n}, {32*n}, v{vOW}")
        if sel: V(f"s_and_b64 vcc, vcc, s[{sMask}:{sMask+1}]", kind="salu", deps=[("lastsite", 0)] if (grp == "A" and t6l) else [])
        V("s_cbranch_vccnz L_fb", kind="salu", tag="chk", deps=[("lastsite", 0)] if (grp == "A" and t6l) else [])
        lastP = {t: [m for m in mf if m["ty"] == "P" and m["t"] == t][-1]["tag"] for t in range(4)}
        late = lateA and grp == "A"
        def stores(h):
            base = vS + 16 * h
            for m in range(4):
                M(None, kind="waitl", tag=("or", h, m))
                M(f"buffer_store_dwordx4 v[{base+4*m}:{base+4*m+3}], v{vOG}, s[{SO}:{SO+3}], s{sStO+m} offen offset:{h*128} {stB1 if (grp == 'B' and h == 1 and stB1 is not None) else (stB0 if (grp == 'B' and h == 0 and stB0 is not None) else stflag)}".rstrip(), kind="vm")
        for t in range(4):
            ob = vO[t]
            for n in range(2):
                dd = [(lastP[t], 12), ("rcp", 1), ("chk", 0)] if n == 0 else []
                if pklast and t == 3 and (grp == "B" or pkA):
                    if n == 0: V(f"v_mov_b32 v{vInv-1}, v{vInv}", deps=[("rcp", 1), ("chk", 0)])
                    for j in range(4): V(f"v_pk_mul_f32 v[{ob+8*n+2*j}:{ob+8*n+2*j+1}], v[{vInv-1}:{vInv}], v[{ob+8*n+2*j}:{ob+8*n+2*j+1}]", deps=dd if j == 0 else [])
                else:
                    for j in range(8): V(f"v_mul_f32 v{ob+8*n+j}, v{vInv}, v{ob+8*n+j}", deps=dd if j == 0 else [])
                for j in range(4): V(f"v_cvt_pk_bf16_f32 v{ob+4*n+j}, v{ob+8*n+2*j}, v{ob+8*n+2*j+1}", tag=("pk", t, n, j))
                x = 2 * (t % 2) + n
                if t == 2 and n == 0: M(None, kind="waitl", tag=("or", 0, 3))
                M(f"ds_write_b128 v{vQA+x if x else vOW}, v[{ob+4*n}:{ob+4*n+3}]", tag=("ow", t, n), deps=[(("pk", t, n, 3), 0)])
            if t % 2 == 1:
                hf = t // 2; tb = vS + 16 * hf
                M(None, kind="waitl", tag=("ow", t, 1))
                for m in range(4): M(f"ds_read_b128 v[{tb+4*m}:{tb+4*m+3}], v{vOR} offset:{m*1024}", tag=("or", hf, m))
                if late and hf == 1: stores(0)
                if not (late and hf == 0): stores(hf)
        pos = {}; ni = [0]; t = [0]; lds = []; covered = [-1]; last_kind = [None]; wbusy = [0]
        def emit(text, cost, tag=None, kind="valu"):
            if kind == "lds" and last_kind[0] == "valu": cost += 8
            if kind in ("lds", "vm") and t[0] < wbusy[0]: t[0] = wbusy[0]
            if text.startswith("ds_write"): wbusy[0] = t[0] + WB
            e(text)
            if tag is not None: pos[tag] = ni[0]
            ni[0] += 1; t[0] += cost; last_kind[0] = kind
        def deps_ok(deps): return all(d in pos and ni[0] - pos[d] - 1 >= n for d, n in deps)
        def deps_emitted(deps): return all(d in pos for d, n in deps)
        def pad(deps):
            k = max(n - (ni[0] - pos[d] - 1) for d, n in deps)
            if k > 0: e(f"s_nop {k-1}"); ni[0] += k; t[0] += 4 * k; last_kind[0] = "salu"
        def lds_last(tag): return max(j for j, x in enumerate(lds) if x[0] == tag)
        def wait_lds(tag, greedy):
            last = lds_last(tag)
            if last <= covered[0]: return
            if greedy:
                while last + 1 < len(lds) and lds[last + 1][1] <= t[0] - LAT: last += 1
            n = len(lds) - 1 - last
            if n > 15: last = len(lds) - 1 - 15; n = 15
            t[0] = max(t[0], lds[last][1] + 100)
            emit(f"s_waitcnt lgkmcnt({n})", 4, kind="salu")
            covered[0] = last
        def site(name, skip):
            assert "chk" not in pos
            if barst: stamp(False, True)
            emit(f"s_cbranch_{skip} {name}", 10, kind="salu")
            e("s_barrier"); t[0] += 4
            e.label(name)
            if barst: stamp(False, True); sys.stderr.write(f"site {name} t={t[0]}\n")
        checked = [needl[0] if grp == "A" else 16]
        rp = [0]; lagdone = [0]; free = list(pool)
        def dep_far(m):
            for d, _ in m["deps"]:
                if d not in pos:
                    c = 0
                    for o in q:
                        if o["tag"] == d: break
                        c += o["cost"]
                    if c > post: return True
            return False
        def can_read(n_issued):
            while rp[0] < NM and mf[rp[0]]["ty"] == "L": rp[0] += 1
            if rp[0] >= NM or not free or rp[0] > n_issued + D: return False
            if t[0] < wbusy[0] and rp[0] > n_issued + 4: return False
            m = mf[rp[0]]
            if need[m["unit"]] > checked[0] and (rp[0] > n_issued + Dbar or dep_far(m)): return False
            return len(lds) - 1 - covered[0] + (1 if m["ty"] == "Q" else 2) <= 24
        def do_read():
            m = mf[rp[0]]
            if m["ty"] == "L": rp[0] += 1; return
            nd = need[m["unit"]]
            while nd > checked[0]:
                nx = min(x for x in needl if x > checked[0])
                bidx = needl.index(nx)
                assert bidx <= npre or lagdone[0] >= bidx - npre, (nx, "the followers' barrier site must come first")
                wait_lds(("Qf", 7), False)
                site(f"L_nb{nx}", "scc1")
                checked[0] = nx
            m["slot"] = free.pop(0)
            for r in reads(m, m["slot"]):
                emit(r, 4, kind="lds"); lds.append((("A", rp[0]), t[0]))
            rp[0] += 1
        def qm_ready(must=False):
            if not qm or not deps_ok(qm[0]["deps"]): return False
            o = qm[0]
            if o["kind"] == "waitl":
                if not any(x[0] == o["tag"] for x in lds): return False
                return must or lds[lds_last(o["tag"])][1] + 100 <= t[0] + 4 or lds_last(o["tag"]) <= covered[0]
            return must or t[0] >= wbusy[0]
        def emit_q(qq):
            o = qq.pop(0)
            if o["kind"] == "waitl": wait_lds(o["tag"], False)
            else:
                emit(o["text"], o["cost"], o["tag"], o["kind"])
                if o["kind"] == "lds": lds.append((o["tag"], t[0]))
        if grp == "A":
            for s in range(8):
                emit(f"ds_read_b128 v[{vQ+4*s}:{vQ+4*s+3}], v{vQA+(s%4)} offset:{(s//4)*4096}", 4, kind="lds"); lds.append((("Qf", s), t[0]))
                do_read()
        else:
            for s in range(4): lds.append((("Qf", 4 + s), 0))
            for s in range(8): do_read()
        pipe = 0; log = []
        for n, m in enumerate(mf):
            while True:
                if not deps_emitted(m["deps"]):
                    if rp[0] <= n and can_read(n - 1):
                        for _ in range(4):
                            if can_read(n - 1): do_read()
                    if not deps_ok(q[0]["deps"]):
                        assert deps_emitted(q[0]["deps"]), (m["tag"], q[0])
                        pad(q[0]["deps"])
                    emit_q(q); continue
                if q and deps_ok(q[0]["deps"]) and (t[0] + q[0]["cost"] <= pipe or not deps_ok(m["deps"])): emit_q(q); continue
                break
            if not deps_ok(m["deps"]): pad(m["deps"])
            while rp[0] <= n: do_read()
            if m["ty"] != "L": wait_lds(("A", n), True)
            t[0] = max(t[0], pipe)
            log.append((n, m["tag"], t[0]))
            pipe = t[0] + (16 if m["ty"] == "L" else 32)
            emit(mtext(m), 8, m["tag"], "mfma")
            if m["ty"] != "L": free.append(m["slot"])
            k = 0
            while can_read(n) and k < (1 if m["ty"] == "L" else (4 if rp[0] < n + 9 else 2)):
                k += 1 if mf[rp[0]]["ty"] == "Q" else 2
                do_read()
            while qm_ready() and t[0] + 4 <= pipe:
                isw = qm[0]["text"] and qm[0]["text"].startswith("ds_write")
                emit_q(qm)
                if isw: break
            if grp == "B" and n == hiB: emit(f"s_setprio {prioB}", 4, kind="salu")
            if grp == "A" and n == early8 and checked[0] < 8:
                bidx = needl.index(8)
                assert needl[bidx - 1] == checked[0] and lagdone[0] >= bidx - npre
                site("L_nb8", "scc1"); checked[0] = 8
            if grp == "A":
                for j, x in enumerate(lagl + t5l[1:] + t6l[1:]):
                    if n == x: site(f"L_lg{j}", "scc0"); lagdone[0] += 1
                if t5l and n == t5l[0]:
                    assert checked[0] == 16
                    site("L_ld5", "scc1")
                if t6l and n == t6l[0]:
                    assert checked[0] == 16
                    site("L_ld6", "scc1"); pos["lastsite"] = ni[0] - 1
            if pairs and n in ((7, 23, 39, 55, 71, 87, 103, 119, 127) if NM == 128 else (7, 25, 43, 61, 79, 97, 115, 133, 143)):
                stamp(True, True); stamp(False, True); ni[0] += 2; t[0] += 8
            if m["tag"] in (("Q", 0, 7), ("P", 3, 0, 0), ("Q", 7, 7)) and not (barst and grp == "A"):
                if stamp(): ni[0] += 1; t[0] += 4
        stamp()
        while q or qm:
            if qm_ready(): emit_q(qm)
            elif q and deps_ok(q[0]["deps"]): emit_q(q)
            elif qm_ready(True): emit_q(qm)
            else: pad(q[0]["deps"]); emit_q(q)
        if verbose:
            for x in log[::(1 if verbose == 2 else 8)]: sys.stderr.write(f"{grp} {x}\n")
            sys.stderr.write(f"{grp} last mfma {log[-1]} model end t={t[0]}\n")
        stamp()
        if pairs: stamp(True, True); stamp(False, True)

    m1 = mark()
    stamp()
    body("B", nsB, selB, patB, nfB)
    e("s_branch L_fin" if (stamps or spin) else "s_endpgm")
    e.label("L_A")
    rewind((m1[0] - (1 if (stamps and not lite) else 0), m1[1] - 1))
    setup(selA)
    if prioA: e(f"s_setprio {prioA}")
    if not gate or gatecnt: e("s_waitcnt vmcnt(8)")
    stamp()
    jitter("A0")
    e("s_barrier                               ; K tile 0")
    e(f"s_bitcmp1_b32 s{sW}, 1")
    e("s_cbranch_scc0 L_lead")
    for _ in range(npre): e("s_barrier")
    e.label("L_lead")
    e("s_waitcnt vmcnt(0)")
    stamp()
    body("A", nsA, selA, patA, nfA)
    e.label("L_fin")
    if barst: nst[0] = 24
    if stamps:
        e("s_waitcnt vmcnt(0)")
        stamp(False, True); stamp(True, True)
        e("s_waitcnt lgkmcnt(0)")
        n = nst[0]
        e.c(f"nstamps={n}" + (" pairs" if pairs else ""))
        e(f"s_lshl_b32 s{sT}, s2, 3")
        e(f"s_add_u32 s{sT}, s{sT}, s{sW}")
        e(f"s_mul_i32 s{sT}, s{sT}, {n*8}")
        e(f"s_add_u32 s12, s12, s{sT}")
        e("s_addc_u32 s13, s13, 0")
        e("v_mov_b32 v1, 0")
        for j in range(n):
            e(f"v_mov_b32 v2, s{sStamp+2*j}")
            e(f"v_mov_b32 v3, s{sStamp+2*j+1}")
            e(f"global_store_dwordx2 v1, v[2:3], s[12:13] offset:{8*j}")
            e("s_nop 1")
    if spin:
        e("s_waitcnt vmcnt(0)")
        if enc == 99: e("s_memrealtime s[100:101]")
        e("s_waitcnt lgkmcnt(0)")
        if enc >= 0:
            e("s_sub_u32 s100, s100, s90")
            e("s_lshl_b32 s100, s100, 2")
            if encw >= 0:
                e(f"s_lshr_b32 s98, s{sW}, 1")
                e(f"s_cmp_eq_u32 s98, {encw}")
                e("s_cselect_b32 s100, s100, 0")
            e(f"s_add_u32 s100, s100, {spin}")
        else: e(f"s_mov_b32 s100, {spin}")
        e.label("L_spin")
        e("s_sleep 4")
        e("s_memrealtime s[98:99]")
        e("s_waitcnt lgkmcnt(0)")
        e("s_sub_u32 s98, s98, s90")
        e("s_cmp_lt_u32 s98, s100")
        e("s_cbranch_scc1 L_spin")
    e.label("L_end")
    e("s_endpgm")
    e.label("L_fb")
    e("s_waitcnt lgkmcnt(0)")
    e("s_nop 15")
    e(f"v_mov_b32 v{vThr}, 0x7f800000")
    e(f"s_mov_b64 s[{sMask}:{sMask+1}], 0")
    e("v_and_b32 v2, 31, v0")
    e("v_lshrrev_b32 v3, 5, v0")
    e("v_lshlrev_b32 v4, 8, v2")
    e("v_lshl_add_u32 v4, v3, 4, v4")
    for s in range(8): e(f"buffer_load_dwordx4 v[{vQ+4*s}:{vQ+4*s+3}], v4, s[{SQ}:{SQ+3}], s{sQoff} offen offset:{s*32}")
    e(f"s_mov_b32 s{sT}, 0")
    e("s_waitcnt vmcnt(0)")
    e.label("L_fbloop")
    for s in range(8): e(f"ds_read_b128 v[{208+4*s}:{208+4*s+3}], v{vKA+s}")
    e("s_waitcnt lgkmcnt(0)")
    for s in range(8):
        e(f"v_mfma_f32_32x32x16_bf16 v[{vS}:{vS+15}], v[{208+4*s}:{208+4*s+3}], v[{vQ+4*s}:{vQ+4*s+3}], " + ("0" if s == 0 else f"v[{vS}:{vS+15}]"))
    for s in range(8): e(f"v_add_u32 v{vKA+s}, 0x2000, v{vKA+s}")
    e("s_nop 7")
    for j in range(0, 16, 2): e(f"v_max3_f32 v{vMT}, v{vMT}, v{vS+j}, v{vS+j+1}")
    e(f"s_add_u32 s{sT}, s{sT}, 1")
    e(f"s_cmp_lt_u32 s{sT}, 8")
    e("s_cbranch_scc1 L_fbloop")
    for s in range(8): e(f"v_subrev_u32 v{vKA+s}, 0x10000, v{vKA+s}")
    if selB: sel_const()
    e("s_branch L_mainB")
    if codepf:
        e.c("pad so that the code prefetch (16 KB from the entry) stays inside .text")
        e.label("L_pad")
        e(f".fill (16384 + 256 - (L_pad - {KN})) / 4, 4, 0xbf810000")
    text = e.text()
    for x in hz.check(text.split("\n")): sys.stderr.write(x + "\n")
    return HEADER + text + FOOTER

if __name__ == "__main__":
    kw = {}
    out = sys.argv[1]
    for a in sys.argv[2:]:
        k, v = a.split("=", 1)
        if v in ("True", "False"): v = v == "True"
        elif v.lstrip("-").isdigit(): v = int(v)
        kw[k] = v
    open(out, "w").write(gen(**kw))
```

```python
import sys, math, struct
from gen1 import E, FOOTER, f32bits
import hz
CC = math.log2(math.e) / math.sqrt(128.0)
KN = "standalone__gqa_softmax__near_ridge_kernel"

HEADER = """; GQA attention forward: B=8, Hq=32, Hkv=4, Sq=Sk=256, D=128, bf16 in / bf16 out, fp32 accumulation.
; Kernarg: q, k, v, out, debug, ws (8-byte pointers at offsets 0, 8, 16, 24, 32, 40).
;
; One workgroup (8 waves) per (batch, q head); the 8 heads that share a KV head sit on workgroup ids that are equal
; mod 8 (L2 locality only).  K and V of the head live in LDS (64 KB each, XOR-swizzled, filled by LDS-DMA); the last
; 32 KB hold one 4 KB staging block per wave (Q on the way in, O on the way out).
; Every wave owns one 32-row q tile.  S^T = K.Q^T and O^T = V^T.P^T are computed with 32x32x16 MFMAs, so a lane holds
; one q row and P feeds the second MFMA without any shuffle.  Waves 0-3 run first (0,1 lead; 2,3 follow when their Q
; has arrived); waves 4-7 issue the K/V loads meanwhile and run their own tiles afterwards.
; Softmax: the exponent is taken relative to the row maximum of the first 32 keys.  After the row sums are known they
; are checked against 2^30; if any row of the tile exceeds that (the stand-in was too low), the tile is redone with
; the exact row maximum over all 256 keys (L_fb).  The row sum is >= 1 by construction, so nothing can underflow.
; Synchronisation: six workgroup barriers hand K / V / staging space over (K0 | K1 | K2-3 | K4-7 | V | order of the
; last Q loads).  Waves 0,1 and waves 2,3 meet them at different places of the same code (SCC selects the pair).
; Waves 0-3: QK + softmax of all key tiles first, then PV by 32-column blocks.  Waves 4-7: PV of columns 0-63 streamed
; with QK, columns 64-127 afterwards; their row sums come from a 16x16x32 MFMA with a 0/1 selector as A operand.
; Output goes through the staging block so that every store instruction writes whole 128-byte lines.
; @launch grid=(256,1,1) block=(512,1,1) lds=163840
.amdgcn_target "amdgcn-amd-amdhsa--gfx950"
.text
.globl %s
.p2align 8
.type %s,@function
%s:
""" % (KN, KN, KN)

def gen(stamps=False, allreal=False, lite=False, pairs=False, barst=False, spin=0, enc=-1, encw=-1, verbose=False, forcefb=False,
        stflag="sc1", prioA=1, prioB=0, needs="1,2,4,8,16", caps="4,7,8,8,16", npre=2, lagsites="8,34", t6="70,42",
        nsA=0, selA=False, patA="", nfA=6, nsB=2, selB=True, patB="QPQQPLQQQQPQPL", nfB=0,
        D=12, LAT=160, Dbar=5, post=150, WB=48, lateA=True, pklast=True, thr=2.0**30, codepf=True, gate=True, ldq="", ldkv="",
        uorder="kfirst", vrot=True, q1at=99, uni=0, t5="", pkA=True, gatecnt=0, early8=-1, stB1=None, stB0=None, hiB=-1, altA=0, jit="", ramp="", vtouch=0, nofma=False):
    e = E()
    ints = lambda x: [int(y) for y in str(x).split(",")] if str(x) else []
    sW = 3
    SQ, SK, SV, SO = 16, 20, 24, 28
    sT, sT2, sQoff, sBuf, sW2, sT3, sVs = 32, 33, 34, 35, 36, 37, 38
    sStO, sMask = 92, 96
    sStamp = 40
    nst = [0]; npt = [0]
    def stamp(real=False, keep=False):
        if npt[0] == enc: e("s_memrealtime s[100:101]")
        npt[0] += 1
        if not stamps or (lite and not keep): return False
        r = sStamp + 2 * nst[0]; nst[0] += 1
        assert r + 1 < (90 if spin else 92)
        e(f"{'s_memrealtime' if (real or allreal) else 's_memtime'} s[{r}:{r+1}]")
        return True
    def mark(): return (nst[0], npt[0])
    def rewind(m): nst[0], npt[0] = m
    vThr, vDV = 6, 7
    vKA, vVA, vQA = 8, 16, 20
    vOW, vOR, vOG = 24, 26, 27
    vM0, vM1, vNM, vC, vL0, vL1, vMT, vInv = 28, 29, 30, 31, 32, 33, 34, 35
    vDQ = 36
    vT = 40
    vDK = vT
    vQ, vS, vP = 48, 80, 112
    vO = [176, 192, vQ, vQ + 16]
    POOL = [208 + 4 * i for i in range(12)]
    vSelA, vSelC = POOL[-2], POOL[-1]
    if uorder == "kfirst": units = [("K", i) for i in range(8)] + [("V", i) for i in range(8)]
    else: units = [(u[0], int(u[1])) for u in uorder.split(",")]
    need = {u: n + 1 for n, u in enumerate(units)}
    needl, capl, lagl, t6l, t5l = ints(needs), ints(caps), ints(lagsites), ints(t6), ints(t5)
    assert needl[0] == 1 and needl[-1] == 16 and len(capl) == len(needl) and len(lagl) == len(needl) - 1 - npre
    if vrot: assert uorder == "kfirst" and not [x for x in needl if 8 < x < 16]

    def srd(r, p, off):
        e(f"s_add_u32 s{r}, s{p}, s{off}")
        e(f"s_addc_u32 s{r+1}, s{p+1}, 0")
    def srd_tail(r):
        e(f"s_mov_b32 s{r+2}, 0x10000")
        e(f"s_mov_b32 s{r+3}, 0x20000")
    def q_patterns():
        e("v_and_b32 v3, 7, v0")
        e("v_xor_b32 v3, v2, v3")
        e("v_lshlrev_b32 v3, 4, v3")
        e("v_lshrrev_b32 v4, 3, v0")
        e(f"v_lshl_add_u32 v{vDQ}, v4, 8, v3")
        e(f"v_xor_b32 v3, 64, v{vDQ}")
        e(f"v_add_u32 v{vDQ+2}, 0x800, v{vDQ}")
        e(f"v_add_u32 v{vDQ+1}, 0x400, v3")
        e(f"v_add_u32 v{vDQ+3}, 0xc00, v3")
    def k_pattern0(dst):
        e("v_and_b32 v3, 15, v0")
        e("v_xor_b32 v4, v2, v3")
        e("v_lshlrev_b32 v4, 4, v4")
        e(f"v_lshl_add_u32 v{dst}, v2, 8, v4")
    def q_dma(sSrc):
        for m in range(4): e(f"buffer_load_dwordx4 v{vDQ+m}, s[{SQ}:{SQ+3}], s{sSrc} offen offset:{m*1024} {ldq} lds")
    def q_tile():
        q_dma(sQoff)
        e(f"s_add_u32 m0, s{sBuf}, 4096")
        e("s_nop 0")
        q_dma(sT3)

    e("s_cmp_ge_u32 s2, 256")
    e("s_cbranch_scc1 L_end")
    stamp(True, True); stamp(False, True)
    if spin: e("s_memrealtime s[90:91]")
    e("s_load_dwordx4 s[4:7], s[0:1], 0")
    e("s_load_dwordx4 s[8:11], s[0:1], 16")
    if stamps: e("s_load_dwordx2 s[12:13], s[0:1], 40")
    e("v_lshrrev_b32 v1, 6, v0")
    e("v_and_b32 v0, 63, v0")
    e("s_lshr_b32 s15, s2, 3")
    e(f"v_readfirstlane_b32 s{sW}, v1")
    if codepf:
        e.c("pull this kernel's code into L2 (4 lines of 128 B per workgroup)")
        e("s_getpc_b64 s[18:19]")
        e(f"s_lshl_b32 s{sT}, s15, 9")
        e(f"s_add_u32 s18, s18, s{sT}")
        e("s_addc_u32 s19, s19, 0")
        e("v_and_b32 v2, 3, v0")
        e("v_lshlrev_b32 v2, 7, v2")
        e("global_load_dword v1, v2, s[18:19]")
    e("s_and_b32 s14, s2, 7")
    e(f"s_lshr_b32 s{sT}, s15, 3")
    e("s_lshl_b32 s14, s14, 2")
    e(f"s_add_u32 s14, s14, s{sT}")
    e("s_and_b32 s15, s15, 7")
    e(f"s_lshl_b32 s{sT}, s14, 3")
    e(f"s_add_u32 s15, s15, s{sT}")
    e("s_lshl_b32 s14, s14, 16")
    e("s_lshl_b32 s15, s15, 16")
    e("v_lshrrev_b32 v2, 4, v0")
    e(f"s_lshl_b32 s{sQoff}, s{sW}, 13")
    def jitter(tag):
        if not jit: return
        for spec in jit.split(","):
            where, mask, amt = spec.split(":")
            if where != tag: continue
            lab = f"L_j{tag}_{len(e.l)}"
            e(f"s_lshr_b32 s98, {mask}, s{sW}")
            e("s_bitcmp1_b32 s98, 0")
            e(f"s_cbranch_scc0 {lab}")
            for _ in range(int(amt)): e("s_sleep 40")
            e.label(lab)
    jitter("start")
    m0 = mark()
    if uni:
        sA, sB2, sOf, SX, vX = sT2, sT3, sW2, SO, 44
        q_patterns()
        k_pattern0(vDK)
        for m in range(1, 4): e(f"v_xor_b32 v{vDK+m}, {64*m}, v{vDK}")
        e(f"s_cmp_ge_u32 s{sW}, {2+uni}")
        e("s_cbranch_scc1 L_B")
        e(f"s_add_u32 s{sBuf}, s{sQoff}, 0x20000   ; staging block")
        e(f"s_sub_u32 s{sA}, s{sQoff}, 0x4000")
        srd_tail(SX)
        e(f"s_movk_i32 s{sB2}, 0x1000")
        e(f"s_cmp_lt_u32 s{sW}, 2")
        e("s_cselect_b64 vcc, -1, 0")
        e(f"s_cselect_b32 s{sT}, s{sBuf}, s{sA}")
        e(f"s_cselect_b32 s{sA}, s{sQoff}, s{sA}")
        e(f"s_cselect_b32 s{sB2}, 128, s{sB2}")
        e(f"s_cselect_b32 s{sOf}, s15, s14")
        e(f"s_mov_b32 m0, s{sT}")
        for m in range(4): e(f"v_cndmask_b32 v{vX+m}, v{vDK+m}, v{vDQ+m}, vcc")
        e("s_waitcnt lgkmcnt(0)")
        stamp()
        e(f"s_cselect_b32 s{SX}, s4, s6")
        e(f"s_cselect_b32 s{SX+1}, s5, s7")
        srd(SX, SX, sOf)
        for m in range(4): e(f"buffer_load_dwordx4 v{vX+m}, s[{SX}:{SX+3}], s{sA} offen offset:{m*1024} lds")
        e(f"s_add_u32 m0, s{sT}, 4096")
        e(f"s_add_u32 s{sB2}, s{sB2}, s{sA}")
        for m in range(4): e(f"buffer_load_dwordx4 v{vX+m}, s[{SX}:{SX+3}], s{sB2} offen offset:{m*1024} lds")
        e(f"s_cmp_ge_u32 s{sW}, 4")
        e("s_cbranch_scc1 L_B")
        srd(SQ, 4, 15); srd_tail(SQ)
        e(f"s_cmp_lt_u32 s{sW}, 2")
        e("s_cbranch_scc1 L_lead0")
        e(f"s_add_u32 s{sT3}, s{sQoff}, 128")
        e(f"s_mov_b32 m0, s{sBuf}")
        if gate: e("s_waitcnt vmcnt(0)")
        q_tile()
        e.label("L_lead0")
        stamp()
        e("s_branch L_A")
    else:
        e(f"s_cmp_ge_u32 s{sW}, 4")
        e("s_cbranch_scc1 L_B")
        e(f"s_add_u32 s{sBuf}, s{sQoff}, 0x20000   ; staging block")
        e(f"s_add_u32 s{sT3}, s{sQoff}, 128")
        srd_tail(SQ)
        e(f"s_cmp_ge_u32 s{sW}, 2")
        e("s_cbranch_scc1 L_lag")
        q_patterns()
        e(f"s_mov_b32 m0, s{sBuf}")
        e("s_waitcnt lgkmcnt(0)")
        stamp()
        srd(SQ, 4, 15)
        q_tile()
        stamp()
        e("s_branch L_A")
        e.c("---------------- waves 2,3: K tile 0, then their q tile")
        e.label("L_lag")
        rewind(m0)
        k_pattern0(vDK)
        for m in range(1, 4): e(f"v_xor_b32 v{vDK+m}, {64*m}, v{vDK}")
        srd_tail(SK)
        e(f"s_and_b32 s{sT2}, s{sW}, 1")
        e(f"s_lshl_b32 s{sT2}, s{sT2}, 12")
        e(f"s_mov_b32 m0, s{sT2}")
        e("s_waitcnt lgkmcnt(0)")
        stamp()
        srd(SK, 6, 14)
        for m in range(4): e(f"buffer_load_dwordx4 v{vDK+m}, s[{SK}:{SK+3}], s{sT2} offen offset:{m*1024} {ldkv} lds")
        srd(SQ, 4, 15)
        e(f"s_mov_b32 m0, s{sBuf}")
        q_patterns()
        if gate: e(f"s_waitcnt vmcnt({gatecnt})")
        q_tile()
        stamp()
        e("s_branch L_A")

    def sel_const():
        e.c("row-sum MFMA A operand: 1.0 where (k group parity) == (row group parity)")
        e("v_lshrrev_b32 v4, 4, v0")
        e("v_lshrrev_b32 v5, 2, v0")
        e("v_xor_b32 v4, v4, v5")
        e("v_and_b32 v4, 1, v4")
        e("v_sub_u32 v4, v4, 1")
        for j in range(4): e(f"v_and_b32 v{vSelA+j}, 0x3f803f80, v4")
    def setup(sel):
        srd(SO, 10, 15); srd_tail(SO)
        e("v_and_b32 v2, 31, v0")
        e("v_lshrrev_b32 v3, 5, v0")
        e.c("K fragment addresses")
        e("v_and_b32 v4, 15, v0")
        e("v_xor_b32 v4, v4, v3")
        e("v_lshlrev_b32 v4, 4, v4")
        e(f"v_lshl_add_u32 v{vKA}, v2, 8, v4")
        for s in range(1, 8): e(f"v_xor_b32 v{vKA+s}, {s*32}, v{vKA}")
        e.c("Q fragment addresses")
        e("v_bfe_u32 v4, v0, 1, 3")
        e("v_xor_b32 v4, v4, v3")
        e("v_lshlrev_b32 v4, 4, v4")
        e("v_lshl_add_u32 v4, v2, 7, v4")
        e(f"v_add_u32 v{vQA}, s{sBuf}, v4")
        for s in range(1, 4): e(f"v_xor_b32 v{vQA+s}, {s*32}, v{vQA}")
        e.c("V fragment addresses (transposing reads)")
        e("v_bfe_u32 v4, v0, 2, 2")
        e("v_lshl_add_u32 v5, v3, 2, v4")
        e("v_lshlrev_b32 v5, 8, v5")
        e("v_lshl_add_u32 v5, v4, 6, v5")
        e("v_bfe_u32 v6, v0, 4, 1")
        e("v_lshl_add_u32 v5, v6, 5, v5")
        e("v_and_b32 v6, 1, v0")
        e("v_lshl_add_u32 v5, v6, 4, v5")
        e("v_bfe_u32 v6, v0, 1, 1")
        e("v_lshl_add_u32 v5, v6, 3, v5")
        e(f"v_add_u32 v{vVA}, 0x10000, v5")
        for t in range(1, 4): e(f"v_xor_b32 v{vVA+t}, {t*64}, v{vVA}")
        e.c("O staging: write, read-back and global addresses")
        e("v_and_b32 v4, 7, v0")
        e("v_xor_b32 v4, v4, v3")
        e("v_lshlrev_b32 v4, 4, v4")
        e("v_lshl_add_u32 v4, v2, 7, v4")
        e(f"v_add_u32 v{vOW}, s{sBuf}, v4")
        e("v_lshrrev_b32 v4, 3, v0")
        e("v_and_b32 v5, 7, v0")
        e("v_xor_b32 v6, v4, v5")
        e("v_lshlrev_b32 v6, 4, v6")
        e("v_lshl_add_u32 v6, v4, 7, v6")
        e(f"v_add_u32 v{vOR}, s{sBuf}, v6")
        e("v_lshlrev_b32 v5, 4, v5")
        e("v_lshl_add_u32 v5, v4, 8, v5")
        e(f"v_add_u32 v{vOG}, s{sQoff}, v5")
        for m in range(4): e(f"s_mov_b32 s{sStO+m}, {m*2048}")
        e(f"v_mov_b32 v{vC}, {hex(f32bits(CC))}")
        e(f"v_mov_b32 v{vMT}, 0xff800000")
        e(f"v_mov_b32 v{vThr}, {hex(f32bits(-1.0 if forcefb else float(thr)))}")
        if sel: sel_const(); e(f"s_mov_b64 s[{sMask}:{sMask+1}], -1")

    e.c("---------------- waves 4-7: K / V loads, then their own q tile")
    e.label("L_B")
    rewind(m0)
    if not uni: k_pattern0(vDK)
    e(f"s_and_b32 s{sT}, s{sW}, 1")
    e(f"s_lshl_b32 s{sT}, s{sT}, 7")
    e(f"v_xor_b32 v{vDK}, s{sT}, v{vDK}")
    e(f"v_xor_b32 v{vDK+1}, 64, v{vDK}")
    e(f"s_and_b32 s{sW2}, s{sW}, 3")
    e(f"s_lshl_b32 s{sBuf}, s{sW2}, 13")
    e(f"s_add_u32 s{sBuf}, s{sBuf}, 0x21000")
    e(f"s_lshl_b32 s{sW2}, s{sW2}, 11")
    srd_tail(SK)
    e("s_waitcnt lgkmcnt(0)")
    stamp()
    srd(SK, 6, 14)
    vm = ["x"] + [f"u{j}" for j in range(2, uni)]
    vready = [False]
    def v_setup():
        if vready[0]: return
        vready[0] = True
        srd(SV, 8, 14); srd_tail(SV)
        e("v_lshlrev_b32 v5, 2, v2")
        e("v_and_b32 v3, 15, v0")
        e("v_xor_b32 v5, v5, v3")
        e("v_lshlrev_b32 v5, 4, v5")
        e(f"v_lshl_add_u32 v{vDV}, v2, 8, v5")
    def unit(n):
        kind, i = units[n]
        if kind == "V": v_setup()
        if kind == "V" and vrot:
            if i == 0:
                e.c("V tiles in an order rotated by the member index of the KV group")
                e(f"s_lshr_b32 s{sVs}, s15, 3")
                e(f"s_and_b32 s{sVs}, s{sVs}, 0xe000")
                e(f"s_add_u32 s{sVs}, s{sVs}, s{sW2}")
            else:
                e(f"s_add_u32 s{sVs}, s{sVs}, 8192")
                e(f"s_and_b32 s{sVs}, s{sVs}, 0xffff")
            e(f"s_add_u32 m0, s{sVs}, 0x10000")
            e("s_nop 0")
            so = sVs
        else:
            e(f"s_add_u32 m0, s{sW2}, {(0 if kind == 'K' else 0x10000) + i*8192}")
            e(f"s_add_u32 s{sT}, s{sW2}, {i*8192}")
            so = sT
        r = SK if kind == "K" else SV
        va = [vDK, vDK + 1] if kind == "K" else [vDV, vDV]
        for m in range(2): e(f"buffer_load_dwordx4 v{va[m]}, s[{r}:{r+3}], s{so} offen offset:{m*1024} {ldkv} lds")
        vm.extend([f"u{n}"] * 2)
    def vmwait(tags):
        idx = [j for j, x in enumerate(vm) if x in tags]
        if idx: e(f"s_waitcnt vmcnt({len(vm)-1-max(idx)})")
    def q1():
        e(f"s_mov_b32 m0, s{sBuf}")
        e("s_nop 0")
        q_dma(sQoff); vm.extend(["q1"] * 4)
    issued = max(1, uni); q1done = False
    for bi, nd in enumerate(needl):
        assert max(capl[bi], uni) >= nd
        while issued < capl[bi]: unit(issued); issued += 1
        if bi == 0:
            stamp()
            v_setup(); srd(SQ, 4, 15); srd_tail(SQ)
            if not uni: q_patterns()
            setup(selB)
        if bi == q1at:
            assert bi > npre + 1 or bi == len(needl) - 1
            q1(); q1done = True
        vmwait({f"u{j}" for j in range(nd)})
        e("s_barrier")
    stamp()
    if t5l: e("s_barrier")
    if t6l:
        assert not q1done
        e(f"s_bitcmp1_b32 s{sW}, 1")
        e("s_cbranch_scc0 L_t6a")
        e("s_barrier")
        e.label("L_t6a")
        q1()
        e(f"s_bitcmp1_b32 s{sW}, 1")
        e("s_cbranch_scc1 L_t6b")
        e("s_barrier")
        e.label("L_t6b")
    elif not q1done: q1()
    def q_read(hf):
        for s in range(4): e(f"ds_read_b128 v[{vQ+16*hf+4*s}:{vQ+16*hf+4*s+3}], v{vQA+s}")
    e(f"s_add_u32 s{sT3}, s{sQoff}, 128")
    jitter("B1")
    e("s_waitcnt vmcnt(0)")
    q_read(0)
    e("s_waitcnt lgkmcnt(0)")
    q_dma(sT3)
    e("s_waitcnt vmcnt(0)")
    q_read(1)
    jitter("B2")
    if prioB or hiB >= 0: e(f"s_setprio {2 if hiB >= 0 else prioB}")
    e.c("---------------- tile body without barriers (waves 4-7, and every redo after L_fb)")
    e.label("L_mainB")

    def body(grp, ns, sel, pat, nf):
        pool = POOL[:-2] if sel else POOL
        preg = lambda i, u: vP + 8 * i + u
        mf = []
        def SEL(i, k):
            if sel: mf.append(dict(ty="L", i=i, k=k))
        def QK(i, s): mf.append(dict(ty="Q", i=i, s=s))
        def PV(i, k, t): mf.append(dict(ty="P", i=i, k=k, t=t))
        for s in range(8): QK(0, s)
        for s in range(8): QK(1, s)
        if ramp and grp == "A":
            assert ns == 0 and not sel
            rl = ints(ramp); nxt = [0, 0]
            def take(limit):
                t_ = 0 if nxt[0] <= nxt[1] else 1
                if nxt[t_] >= limit: return False
                PV(nxt[t_] // 2, nxt[t_] % 2, t_); nxt[t_] += 1; return True
            for p in range(1, 7):
                done = 0
                for s in range(8):
                    QK(p + 1, s)
                    while done < (s + 1) * rl[p] // 8 and take(2 * p + (1 if s >= 4 else 0)): done += 1
            while take(14): pass
            rest = [(ks // 2, ks % 2, 2) for ks in range(16)]
            k = max(0, rl[7])
            for x in rest[:k]: PV(*x)
            while take(15): pass
            for x in rest[k:2*k]: PV(*x)
            while take(16): pass
            for x in rest[2*k:]: PV(*x)
            for ks in range(16): PV(ks // 2, ks % 2, 3)
        else:
            for t in range(ns): PV(0, 0, t)
            SEL(0, 0)
            for p in range(1, 7):
                lst = [(p - 1, 1, t) for t in range(ns)] + [(p, 0, t) for t in range(ns)]
                done = 0
                if pat:
                    sq = sl = 0
                    for ch in pat:
                        if ch == "Q": QK(p + 1, sq); sq += 1
                        elif ch == "P": PV(*lst[done]); done += 1
                        else: SEL(*((p - 1, 1) if sl == 0 else (p, 0))); sl += 1
                    assert sq == 8 and done == len(lst)
                    continue
                for s in range(8):
                    QK(p + 1, s)
                    want = (s + 1) * len(lst) // 8
                    while done < want:
                        PV(*lst[done]); done += 1
                        if lst[done - 1][2] == min(1, ns - 1): SEL(*lst[done - 1][:2])
                    if ns == 0 and s == 1: SEL(p - 1, 1)
                    if ns == 0 and s == 5: SEL(p, 0)
            deferred = [(ks // 2, ks % 2, t) for t in range(ns, 4) for ks in range(16)]
            def defer(n):
                for _ in range(n):
                    if deferred: PV(*deferred.pop(0))
            if ns == 0 and altA and grp == "A":
                assert not sel
                dd = [deferred[16*t:16*t+16] for t in range(4)]
                o = [x for ks in range(16) for x in (dd[0][ks], dd[1][ks])]
                if altA == 1: o += [x for ks in range(16) for x in (dd[2][ks], dd[3][ks])]
                else: o += [x for ks in range(12) for x in (dd[2][ks], dd[3][ks])] + dd[2][12:] + dd[3][12:]
                for x in o: PV(*x)
            elif ns == 0:
                d0, d1 = deferred[:16], deferred[16:32]
                deferred[:32] = d0[:14] + d1[:nf] + d0[14:15] + d1[nf:2*nf] + d0[15:] + d1[2*nf:]
                defer(12); SEL(6, 1); defer(2 + nf); SEL(7, 0); defer(1 + nf); SEL(7, 1); defer(64)
            else:
                for t in range(ns): PV(6, 1, t)
                SEL(6, 1); defer(nf)
                for t in range(ns): PV(7, 0, t)
                SEL(7, 0); defer(nf); SEL(7, 1)
                for t in range(ns): PV(7, 1, t)
                defer(64)
        NM = len(mf)
        assert NM == (144 if sel else 128)
        for m in mf:
            if m["ty"] == "Q":
                m["unit"] = ("K", m["i"]); m["tag"] = ("Q", m["i"], m["s"])
                m["deps"] = [(("f", m["i"] - 2, 15), 0)] if (m["s"] == 0 and m["i"] >= 2) else []
            elif m["ty"] == "L":
                m["tag"] = ("L", m["i"], m["k"]); m["deps"] = [(("c", m["i"], 4 * m["k"] + 3), 2)]
            else:
                m["unit"] = ("V", m["i"]); m["tag"] = ("P", m["i"], m["k"], m["t"])
                m["deps"] = [(("c", m["i"], 4 * m["k"] + 3), 2)]
        def reads(m, r):
            if m["ty"] == "Q": return [f"ds_read_b128 v[{r}:{r+3}], v{vKA+m['s']} offset:{m['i']*8192}"]
            ks = 2 * m["i"] + m["k"]
            return [f"ds_read_b64_tr_b16 v[{r}:{r+1}], v{vVA+m['t']} offset:{ks*4096}",
                    f"ds_read_b64_tr_b16 v[{r+2}:{r+3}], v{vVA+m['t']} offset:{ks*4096+2048}"]
        def mtext(m):
            if m["ty"] == "L":
                b = preg(m["i"], 4 * m["k"])
                return f"v_mfma_f32_16x16x32_bf16 v[{vSelC}:{vSelC+3}], v[{vSelA}:{vSelA+3}], v[{b}:{b+3}], " + ("0" if (m["i"], m["k"]) == (0, 0) else f"v[{vSelC}:{vSelC+3}]")
            r = m["slot"]
            if m["ty"] == "Q": d = vS + 16 * (m["i"] % 2); b = vQ + 4 * m["s"]; first = m["s"] == 0
            else: d = vO[m["t"]]; b = preg(m["i"], 4 * m["k"]); first = (m["i"], m["k"]) == (0, 0)
            return f"v_mfma_f32_32x32x16_bf16 v[{d}:{d+15}], v[{r}:{r+3}], v[{b}:{b+3}], " + ("0" if first else f"v[{d}:{d+15}]")
        q, qm = [], []
        def V(text, cost=4, tag=None, deps=(), kind="valu"): q.append(dict(text=text, cost=cost, tag=tag, deps=list(deps), kind=kind))
        def M(text, tag=None, deps=(), kind="lds"): qm.append(dict(text=text, cost=4, tag=tag, deps=list(deps), kind=kind))
        b = vS
        V(f"v_max3_f32 v{vM0}, v{b}, v{b+1}, v{b+2}", deps=[(("Q", 0, 7), 12)])
        V(f"v_max3_f32 v{vM1}, v{b+3}, v{b+4}, v{b+5}")
        for j in range(6, 16, 2):
            m = vM0 if (j // 2) % 2 == 1 else vM1
            V(f"v_max3_f32 v{m}, v{m}, v{b+j}, v{b+j+1}")
        V(f"v_max3_f32 v{vM0}, v{vM0}, v{vM1}, v{vMT}")
        V(f"v_mov_b32 v{vM1}, v{vM0}", tag="mv")
        V(f"v_permlane32_swap_b32 v{vM0}, v{vM1}", deps=[("mv", 2)])
        V(f"v_max_f32 v{vM0}, v{vM0}, v{vM1}")
        V(f"v_mul_f32 v{vNM}, {hex(f32bits(-CC))}, v{vM0}")
        alias = {}
        def cvt(i):
            p, u = divmod(i, 8); ta = vT + 2 * (u % 4)
            return dict(text=f"v_cvt_pk_bf16_f32 v{preg(p, u)}, v{ta}, v{ta+1}", tag=("c", p, u), deps=[(("e", p, u), 1)])
        for i in range(64):
            p, u = divmod(i, 8)
            sa = vS + 16 * (p % 2) + 2 * u; ta = vT + 2 * (u % 4)
            f = [dict(text=f"v_fma_f32 v{ta}, v{sa}, v{vC}, v{vNM}", tag=("f", p, 2 * u), deps=[(("Q", p, 7), 12)] if u == 0 else []),
                 dict(text=f"v_fma_f32 v{ta+1}, v{sa+1}, v{vC}, v{vNM}", tag=("f", p, 2 * u + 1))]
            ee = [dict(text=f"v_exp_f32 v{ta}, v{ta}", cost=8, tag=("e0", p, u)), dict(text=f"v_exp_f32 v{ta+1}, v{ta+1}", cost=8, tag=("e", p, u))]
            if nofma and grp == "B" and p >= 1:
                ee[0]["text"] = f"v_exp_f32 v{ta}, v{sa}"; ee[1]["text"] = f"v_exp_f32 v{ta+1}, v{sa+1}"
                ee[0]["deps"] = f[0].get("deps", []); ftag = f[1]["tag"]; f = []
                alias[ftag] = ("e", p, u)
            a = [] if sel else [dict(text=f"v_mov_b32 v{vL0}, v{ta}" if i == 0 else f"v_add_f32 v{vL0}, v{vL0}, v{ta}", deps=[(("e0", p, u), 1)]),
                                dict(text=f"v_mov_b32 v{vL1}, v{ta+1}" if i == 0 else f"v_add_f32 v{vL1}, v{vL1}, v{ta+1}", deps=[(("e", p, u), 1)])]
            c = [cvt(i - 1)] if i else []
            lastc = [cvt(i)] if i == 63 else []
            for o in (f[:1] + c + f[1:] if (sel and u > 0) else c + f) + ee + a[:1] + lastc + a[1:]: V(**o)
        if sel:
            V(f"v_cmp_nge_f32 vcc, v{vThr}, v{vSelC}", deps=[(("L", 7, 1), 8)])
            V(f"v_rcp_f32 v{vInv}, v{vSelC}", cost=8, tag="rcp")
        else:
            V(f"v_add_f32 v{vL0}, v{vL0}, v{vL1}")
            V(f"v_mov_b32 v{vL1}, v{vL0}", tag="mv2")
            V(f"v_permlane32_swap_b32 v{vL0}, v{vL1}", deps=[("mv2", 2)])
            V(f"v_add_f32 v{vL0}, v{vL0}, v{vL1}")
            V(f"v_cmp_lt_f32 vcc, v{vThr}, v{vL0}")
            V(f"v_rcp_f32 v{vInv}, v{vL0}", cost=8, tag="rcp")
        for n in range(1, 4): V(f"v_xor_b32 v{vQA+n}, {32*n}, v{vOW}")
        if sel: V(f"s_and_b64 vcc, vcc, s[{sMask}:{sMask+1}]", kind="salu", deps=[("lastsite", 0)] if (grp == "A" and t6l) else [])
        V("s_cbranch_vccnz L_fb", kind="salu", tag="chk", deps=[("lastsite", 0)] if (grp == "A" and t6l) else [])
        lastP = {t: [m for m in mf if m["ty"] == "P" and m["t"] == t][-1]["tag"] for t in range(4)}
        late = lateA and grp == "A"
        def stores(h):
            base = vS + 16 * h
            for m in range(4):
                M(None, kind="waitl", tag=("or", h, m))
                M(f"buffer_store_dwordx4 v[{base+4*m}:{base+4*m+3}], v{vOG}, s[{SO}:{SO+3}], s{sStO+m} offen offset:{h*128} {stB1 if (grp == 'B' and h == 1 and stB1 is not None) else (stB0 if (grp == 'B' and h == 0 and stB0 is not None) else stflag)}".rstrip(), kind="vm")
        for t in range(4):
            ob = vO[t]
            for n in range(2):
                dd = [(lastP[t], 12), ("rcp", 1), ("chk", 0)] if n == 0 else []
                if pklast and t == 3 and (grp == "B" or pkA):
                    if n == 0: V(f"v_mov_b32 v{vInv-1}, v{vInv}", deps=[("rcp", 1), ("chk", 0)])
                    for j in range(4): V(f"v_pk_mul_f32 v[{ob+8*n+2*j}:{ob+8*n+2*j+1}], v[{vInv-1}:{vInv}], v[{ob+8*n+2*j}:{ob+8*n+2*j+1}]", deps=dd if j == 0 else [])
                else:
                    for j in range(8): V(f"v_mul_f32 v{ob+8*n+j}, v{vInv}, v{ob+8*n+j}", deps=dd if j == 0 else [])
                for j in range(4): V(f"v_cvt_pk_bf16_f32 v{ob+4*n+j}, v{ob+8*n+2*j}, v{ob+8*n+2*j+1}", tag=("pk", t, n, j))
                x = 2 * (t % 2) + n
                if t == 2 and n == 0: M(None, kind="waitl", tag=("or", 0, 3))
                M(f"ds_write_b128 v{vQA+x if x else vOW}, v[{ob+4*n}:{ob+4*n+3}]", tag=("ow", t, n), deps=[(("pk", t, n, 3), 0)])
            if t % 2 == 1:
                hf = t // 2; tb = vS + 16 * hf
                M(None, kind="waitl", tag=("ow", t, 1))
                for m in range(4): M(f"ds_read_b128 v[{tb+4*m}:{tb+4*m+3}], v{vOR} offset:{m*1024}", tag=("or", hf, m))
                if late and hf == 1: stores(0)
                if not (late and hf == 0): stores(hf)
        for m in mf: m["deps"] = [(alias.get(d, d), n_) for d, n_ in m["deps"]]
        pos = {}; ni = [0]; t = [0]; lds = []; covered = [-1]; last_kind = [None]; wbusy = [0]
        def emit(text, cost, tag=None, kind="valu"):
            if kind == "lds" and last_kind[0] == "valu": cost += 8
            if kind in ("lds", "vm") and t[0] < wbusy[0]: t[0] = wbusy[0]
            if text.startswith("ds_write"): wbusy[0] = t[0] + WB
            e(text)
            if tag is not None: pos[tag] = ni[0]
            ni[0] += 1; t[0] += cost; last_kind[0] = kind
        def deps_ok(deps): return all(d in pos and ni[0] - pos[d] - 1 >= n for d, n in deps)
        def deps_emitted(deps): return all(d in pos for d, n in deps)
        def pad(deps):
            k = max(n - (ni[0] - pos[d] - 1) for d, n in deps)
            if k > 0: e(f"s_nop {k-1}"); ni[0] += k; t[0] += 4 * k; last_kind[0] = "salu"
        def lds_last(tag): return max(j for j, x in enumerate(lds) if x[0] == tag)
        def wait_lds(tag, greedy):
            last = lds_last(tag)
            if last <= covered[0]: return
            if greedy:
                while last + 1 < len(lds) and lds[last + 1][1] <= t[0] - LAT: last += 1
            n = len(lds) - 1 - last
            if n > 15: last = len(lds) - 1 - 15; n = 15
            t[0] = max(t[0], lds[last][1] + 100)
            emit(f"s_waitcnt lgkmcnt({n})", 4, kind="salu")
            covered[0] = last
        def site(name, skip):
            assert "chk" not in pos
            if barst: stamp(False, True)
            emit(f"s_cbranch_{skip} {name}", 10, kind="salu")
            e("s_barrier"); t[0] += 4
            e.label(name)
            if barst: stamp(False, True); sys.stderr.write(f"site {name} t={t[0]}\n")
        checked = [needl[0] if grp == "A" else 16]
        rp = [0]; lagdone = [0]; free = list(pool)
        def dep_far(m):
            for d, _ in m["deps"]:
                if d not in pos:
                    c = 0
                    for o in q:
                        if o["tag"] == d: break
                        c += o["cost"]
                    if c > post: return True
            return False
        def can_read(n_issued):
            while rp[0] < NM and mf[rp[0]]["ty"] == "L": rp[0] += 1
            if rp[0] >= NM or not free or rp[0] > n_issued + D: return False
            if t[0] < wbusy[0] and rp[0] > n_issued + 4: return False
            m = mf[rp[0]]
            if need[m["unit"]] > checked[0] and (rp[0] > n_issued + Dbar or dep_far(m)): return False
            return len(lds) - 1 - covered[0] + (1 if m["ty"] == "Q" else 2) <= 24
        def do_read():
            m = mf[rp[0]]
            if m["ty"] == "L": rp[0] += 1; return
            nd = need[m["unit"]]
            while nd > checked[0]:
                nx = min(x for x in needl if x > checked[0])
                bidx = needl.index(nx)
                assert bidx <= npre or lagdone[0] >= bidx - npre, (nx, "the followers' barrier site must come first")
                wait_lds(("Qf", 7), False)
                site(f"L_nb{nx}", "scc1")
                checked[0] = nx
            m["slot"] = free.pop(0)
            for r in reads(m, m["slot"]):
                emit(r, 4, kind="lds"); lds.append((("A", rp[0]), t[0]))
            rp[0] += 1
        def qm_ready(must=False):
            if not qm or not deps_ok(qm[0]["deps"]): return False
            o = qm[0]
            if o["kind"] == "waitl":
                if not any(x[0] == o["tag"] for x in lds): return False
                return must or lds[lds_last(o["tag"])][1] + 100 <= t[0] + 4 or lds_last(o["tag"]) <= covered[0]
            return must or t[0] >= wbusy[0]
        def emit_q(qq):
            o = qq.pop(0)
            if o["kind"] == "waitl": wait_lds(o["tag"], False)
            else:
                emit(o["text"], o["cost"], o["tag"], o["kind"])
                if o["kind"] == "lds": lds.append((o["tag"], t[0]))
        if grp == "A":
            for s in range(8):
                emit(f"ds_read_b128 v[{vQ+4*s}:{vQ+4*s+3}], v{vQA+(s%4)} offset:{(s//4)*4096}", 4, kind="lds"); lds.append((("Qf", s), t[0]))
                do_read()
        else:
            for s in range(4): lds.append((("Qf", 4 + s), 0))
            for s in range(8): do_read()
        pipe = 0; log = []
        for n, m in enumerate(mf):
            while True:
                if not deps_emitted(m["deps"]):
                    if rp[0] <= n and can_read(n - 1):
                        for _ in range(4):
                            if can_read(n - 1): do_read()
                    if not deps_ok(q[0]["deps"]):
                        assert deps_emitted(q[0]["deps"]), (m["tag"], q[0])
                        pad(q[0]["deps"])
                    emit_q(q); continue
                if q and deps_ok(q[0]["deps"]) and (t[0] + q[0]["cost"] <= pipe or not deps_ok(m["deps"])): emit_q(q); continue
                break
            if not deps_ok(m["deps"]): pad(m["deps"])
            while rp[0] <= n: do_read()
            if m["ty"] != "L": wait_lds(("A", n), True)
            t[0] = max(t[0], pipe)
            log.append((n, m["tag"], t[0]))
            pipe = t[0] + (16 if m["ty"] == "L" else 32)
            emit(mtext(m), 8, m["tag"], "mfma")
            if m["ty"] != "L": free.append(m["slot"])
            k = 0
            while can_read(n) and k < (1 if m["ty"] == "L" else (4 if rp[0] < n + 9 else 2)):
                k += 1 if mf[rp[0]]["ty"] == "Q" else 2
                do_read()
            while qm_ready() and t[0] + 4 <= pipe:
                isw = qm[0]["text"] and qm[0]["text"].startswith("ds_write")
                emit_q(qm)
                if isw: break
            if grp == "B" and n == hiB: emit(f"s_setprio {prioB}", 4, kind="salu")
            if grp == "A" and n == early8 and checked[0] < 8:
                bidx = needl.index(8)
                assert needl[bidx - 1] == checked[0] and lagdone[0] >= bidx - npre
                site("L_nb8", "scc1"); checked[0] = 8
            if grp == "A":
                for j, x in enumerate(lagl + t5l[1:] + t6l[1:]):
                    if n == x: site(f"L_lg{j}", "scc0"); lagdone[0] += 1
                if t5l and n == t5l[0]:
                    assert checked[0] == 16
                    site("L_ld5", "scc1")
                if t6l and n == t6l[0]:
                    assert checked[0] == 16
                    site("L_ld6", "scc1"); pos["lastsite"] = ni[0] - 1
            if pairs and n in ((7, 23, 39, 55, 71, 87, 103, 119, 127) if NM == 128 else (7, 25, 43, 61, 79, 97, 115, 133, 143)):
                stamp(True, True); stamp(False, True); ni[0] += 2; t[0] += 8
            if m["tag"] in (("Q", 0, 7), ("P", 3, 0, 0), ("Q", 7, 7)) and not (barst and grp == "A"):
                if stamp(): ni[0] += 1; t[0] += 4
        stamp()
        while q or qm:
            if qm_ready(): emit_q(qm)
            elif q and deps_ok(q[0]["deps"]): emit_q(q)
            elif qm_ready(True): emit_q(qm)
            else: pad(q[0]["deps"]); emit_q(q)
        if verbose:
            for x in log[::(1 if verbose == 2 else 8)]: sys.stderr.write(f"{grp} {x}\n")
            sys.stderr.write(f"{grp} last mfma {log[-1]} model end t={t[0]}\n")
        stamp()
        if pairs: stamp(True, True); stamp(False, True)

    m1 = mark()
    stamp()
    body("B", nsB, selB, patB, nfB)
    e("s_branch L_fin" if (stamps or spin) else "s_endpgm")
    e.c("---------------- waves 0-3")
    e.label("L_A")
    rewind((m1[0] - (1 if (stamps and not lite) else 0), m1[1] - 1))
    setup(selA)
    if prioA: e(f"s_setprio {prioA}")
    if not gate or gatecnt: e("s_waitcnt vmcnt(8)")
    stamp()
    jitter("A0")
    e("s_barrier                               ; K tile 0")
    e(f"s_bitcmp1_b32 s{sW}, 1")
    e("s_cbranch_scc0 L_lead")
    for _ in range(npre): e("s_barrier")
    e.label("L_lead")
    e("s_waitcnt vmcnt(0)")
    stamp()
    body("A", nsA, selA, patA, nfA)
    e.label("L_fin")
    if barst: nst[0] = 24
    if stamps:
        e("s_waitcnt vmcnt(0)")
        stamp(False, True); stamp(True, True)
        e("s_waitcnt lgkmcnt(0)")
        n = nst[0]
        e.c(f"nstamps={n}" + (" pairs" if pairs else ""))
        e(f"s_lshl_b32 s{sT}, s2, 3")
        e(f"s_add_u32 s{sT}, s{sT}, s{sW}")
        e(f"s_mul_i32 s{sT}, s{sT}, {n*8}")
        e(f"s_add_u32 s12, s12, s{sT}")
        e("s_addc_u32 s13, s13, 0")
        e("v_mov_b32 v1, 0")
        for j in range(n):
            e(f"v_mov_b32 v2, s{sStamp+2*j}")
            e(f"v_mov_b32 v3, s{sStamp+2*j+1}")
            e(f"global_store_dwordx2 v1, v[2:3], s[12:13] offset:{8*j}")
            e("s_nop 1")
    if spin:
        e("s_waitcnt vmcnt(0)")
        if enc == 99: e("s_memrealtime s[100:101]")
        e("s_waitcnt lgkmcnt(0)")
        if enc >= 0:
            e("s_sub_u32 s100, s100, s90")
            e("s_lshl_b32 s100, s100, 2")
            if encw >= 0:
                e(f"s_lshr_b32 s98, s{sW}, 1")
                e(f"s_cmp_eq_u32 s98, {encw}")
                e("s_cselect_b32 s100, s100, 0")
            e(f"s_add_u32 s100, s100, {spin}")
        else: e(f"s_mov_b32 s100, {spin}")
        e.label("L_spin")
        e("s_sleep 4")
        e("s_memrealtime s[98:99]")
        e("s_waitcnt lgkmcnt(0)")
        e("s_sub_u32 s98, s98, s90")
        e("s_cmp_lt_u32 s98, s100")
        e("s_cbranch_scc1 L_spin")
    e.label("L_end")
    e("s_endpgm")
    e.c("---------------- a row sum left the safe range: exact row maximum over all keys, then redo the tile with it")
    e.label("L_fb")
    e("s_waitcnt lgkmcnt(0)")
    e("s_nop 15")
    e(f"v_mov_b32 v{vThr}, 0x7f800000")
    e(f"s_mov_b64 s[{sMask}:{sMask+1}], 0")
    e("v_and_b32 v2, 31, v0")
    e("v_lshrrev_b32 v3, 5, v0")
    e("v_lshlrev_b32 v4, 8, v2")
    e("v_lshl_add_u32 v4, v3, 4, v4")
    for s in range(8): e(f"buffer_load_dwordx4 v[{vQ+4*s}:{vQ+4*s+3}], v4, s[{SQ}:{SQ+3}], s{sQoff} offen offset:{s*32}")
    e(f"s_mov_b32 s{sT}, 0")
    e("s_waitcnt vmcnt(0)")
    e.label("L_fbloop")
    for s in range(8): e(f"ds_read_b128 v[{208+4*s}:{208+4*s+3}], v{vKA+s}")
    e("s_waitcnt lgkmcnt(0)")
    for s in range(8):
        e(f"v_mfma_f32_32x32x16_bf16 v[{vS}:{vS+15}], v[{208+4*s}:{208+4*s+3}], v[{vQ+4*s}:{vQ+4*s+3}], " + ("0" if s == 0 else f"v[{vS}:{vS+15}]"))
    for s in range(8): e(f"v_add_u32 v{vKA+s}, 0x2000, v{vKA+s}")
    e("s_nop 7")
    for j in range(0, 16, 2): e(f"v_max3_f32 v{vMT}, v{vMT}, v{vS+j}, v{vS+j+1}")
    e(f"s_add_u32 s{sT}, s{sT}, 1")
    e(f"s_cmp_lt_u32 s{sT}, 8")
    e("s_cbranch_scc1 L_fbloop")
    for s in range(8): e(f"v_subrev_u32 v{vKA+s}, 0x10000, v{vKA+s}")
    if selB: sel_const()
    e("s_branch L_mainB")
    if codepf:
        e.c("pad so that the code prefetch (16 KB from the entry) stays inside .text")
        e.label("L_pad")
        e(f".fill (16384 + 256 - (L_pad - {KN})) / 4, 4, 0xbf810000")
    text = e.text()
    for x in hz.check(text.split("\n")): sys.stderr.write(x + "\n")
    return HEADER + text + FOOTER

if __name__ == "__main__":
    kw = {}
    out = sys.argv[1]
    for a in sys.argv[2:]:
        k, v = a.split("=", 1)
        if v in ("True", "False"): v = v == "True"
        elif v.lstrip("-").isdigit(): v = int(v)
        kw[k] = v
    open(out, "w").write(gen(**kw))
```

```python
import sys, math, struct
from gen1 import E, FOOTER, f32bits
import hz
CC = math.log2(math.e) / math.sqrt(128.0)
KN = "standalone__gqa_softmax__near_ridge_kernel"

HEADER = """; GQA attention forward: B=8, Hq=32, Hkv=4, Sq=Sk=256, D=128, bf16 in / bf16 out, fp32 accumulation.
; Kernarg: q, k, v, out, debug, ws (8-byte pointers at offsets 0, 8, 16, 24, 32, 40).
;
; One workgroup (8 waves) per (batch, q head); the 8 heads that share a KV head sit on workgroup ids that are equal
; mod 8 (L2 locality only).  K and V of the head live in LDS (64 KB each, XOR-swizzled, filled by LDS-DMA); the last
; 32 KB hold one 4 KB staging block per wave (Q on the way in, O on the way out).
; Every wave owns one 32-row q tile.  S^T = K.Q^T and O^T = V^T.P^T are computed with 32x32x16 MFMAs, so a lane holds
; one q row and P feeds the second MFMA without any shuffle.  Waves 0-3 run first (0,1 lead; 2,3 follow when their Q
; has arrived); waves 4-7 issue the K/V loads meanwhile and run their own tiles afterwards.
; Softmax: the exponent is taken relative to the row maximum of the first 32 keys.  After the row sums are known they
; are checked against 2^30; if any row of the tile exceeds that (the stand-in was too low), the tile is redone with
; the exact row maximum over all 256 keys (L_fb).  The row sum is >= 1 by construction, so nothing can underflow.
; Synchronisation: six workgroup barriers hand K / V / staging space over (K0 | K1 | K2-3 | K4-7 | V | order of the
; last Q loads).  Waves 0,1 and waves 2,3 meet them at different places of the same code (SCC selects the pair).
; Waves 0-3: QK + softmax of all key tiles first, then PV by 32-column blocks.  Waves 4-7: PV of columns 0-63 streamed
; with QK, columns 64-127 afterwards; their row sums come from a 16x16x32 MFMA with a 0/1 selector as A operand.
; Output goes through the staging block so that every store instruction writes whole 128-byte lines.
; @launch grid=(256,1,1) block=(512,1,1) lds=163840
.amdgcn_target "amdgcn-amd-amdhsa--gfx950"
.text
.globl %s
.p2align 8
.type %s,@function
%s:
""" % (KN, KN, KN)

def gen(stamps=False, allreal=False, lite=False, pairs=False, barst=False, spin=0, enc=-1, encw=-1, verbose=False, forcefb=False,
        stflag="sc1", prioA=1, prioB=0, needs="1,2,4,8,16", caps="4,7,8,8,16", npre=2, lagsites="8,34", t6="70,42",
        nsA=0, selA=False, patA="", nfA=6, nsB=2, selB=True, patB="QPQQPLQQQQPQPL", nfB=0,
        D=12, LAT=160, Dbar=5, post=150, WB=48, lateA=True, pklast=True, thr=2.0**30, codepf=True, gate=True, ldq="", ldkv="",
        uorder="kfirst", vrot=True, q1at=99, uni=0, t5="", pkA=True, gatecnt=0, early8=-1, stB1=None, stB0=None, hiB=-1, altA=0, jit="", ramp="", vtouch=0, nofma=False, k6=False, compact=0):
    e = E()
    ints = lambda x: [int(y) for y in str(x).split(",")] if str(x) else []
    sW = 3
    SQ, SK, SV, SO = 16, 20, 24, 28
    sT, sT2, sQoff, sBuf, sW2, sT3, sVs = 32, 33, 34, 35, 36, 37, 38
    sStO, sMask = 92, 96
    sStamp = 40
    nst = [0]; npt = [0]
    def stamp(real=False, keep=False):
        if npt[0] == enc: e("s_memrealtime s[100:101]")
        npt[0] += 1
        if not stamps or (lite and not keep): return False
        r = sStamp + 2 * nst[0]; nst[0] += 1
        assert r + 1 < (90 if spin else 92)
        e(f"{'s_memrealtime' if (real or allreal) else 's_memtime'} s[{r}:{r+1}]")
        return True
    def mark(): return (nst[0], npt[0])
    def rewind(m): nst[0], npt[0] = m
    vThr, vDV = 6, 7
    vKA, vVA, vQA = 8, 16, 20
    vOW, vOR, vOG = 24, 26, 27
    vM0, vM1, vNM, vC, vL0, vL1, vMT, vInv = 28, 29, 30, 31, 32, 33, 34, 35
    vDQ = 36
    vT = 40
    vDK = vT
    vQ, vS, vP = 48, 80, 112
    vO = [176, 192, vQ, vQ + 16]
    POOL = [208 + 4 * i for i in range(12)]
    vSelA, vSelC = POOL[-2], POOL[-1]
    if uorder == "kfirst": units = [("K", i) for i in range(8)] + [("V", i) for i in range(8)]
    else: units = [(u[0], int(u[1])) for u in uorder.split(",")]
    need = {u: n + 1 for n, u in enumerate(units)}
    needl, capl, lagl, t6l, t5l = ints(needs), ints(caps), ints(lagsites), ints(t6), ints(t5)
    assert needl[0] == 1 and needl[-1] == 16 and len(capl) == len(needl) and len(lagl) == len(needl) - 1 - npre
    if vrot: assert uorder == "kfirst" and not [x for x in needl if 8 < x < 16]

    def srd(r, p, off):
        e(f"s_add_u32 s{r}, s{p}, s{off}")
        e(f"s_addc_u32 s{r+1}, s{p+1}, 0")
    def srd_tail(r):
        e(f"s_mov_b32 s{r+2}, 0x10000")
        e(f"s_mov_b32 s{r+3}, 0x20000")
    def q_patterns():
        e("v_and_b32 v3, 7, v0")
        e("v_xor_b32 v3, v2, v3")
        e("v_lshlrev_b32 v3, 4, v3")
        e("v_lshrrev_b32 v4, 3, v0")
        e(f"v_lshl_add_u32 v{vDQ}, v4, 8, v3")
        e(f"v_xor_b32 v3, 64, v{vDQ}")
        e(f"v_add_u32 v{vDQ+2}, 0x800, v{vDQ}")
        e(f"v_add_u32 v{vDQ+1}, 0x400, v3")
        e(f"v_add_u32 v{vDQ+3}, 0xc00, v3")
    def k_pattern0(dst):
        e("v_and_b32 v3, 15, v0")
        e("v_xor_b32 v4, v2, v3")
        e("v_lshlrev_b32 v4, 4, v4")
        e(f"v_lshl_add_u32 v{dst}, v2, 8, v4")
    def q_dma(sSrc):
        for m in range(4): e(f"buffer_load_dwordx4 v{vDQ+m}, s[{SQ}:{SQ+3}], s{sSrc} offen offset:{m*1024} {ldq} lds")
    def q_tile():
        q_dma(sQoff)
        e(f"s_add_u32 m0, s{sBuf}, 4096")
        e("s_nop 0")
        q_dma(sT3)

    e("s_cmp_ge_u32 s2, 256")
    e("s_cbranch_scc1 L_end")
    stamp(True, True); stamp(False, True)
    if spin: e("s_memrealtime s[90:91]")
    e("s_load_dwordx4 s[4:7], s[0:1], 0")
    e("s_load_dwordx4 s[8:11], s[0:1], 16")
    if stamps: e("s_load_dwordx2 s[12:13], s[0:1], 40")
    e("v_lshrrev_b32 v1, 6, v0")
    e("v_and_b32 v0, 63, v0")
    def code_prefetch():
        e.c("pull this kernel's code into L2 (4 lines of 128 B per workgroup)")
        e(f"s_getpc_b64 s[{SO}:{SO+1}]")
        e.label(f"L_pc{len(e.l)}")
        lab = e.l[-1][:-1]
        e(f"s_lshr_b32 s{sT}, s2, 3")
        e(f"s_lshl_b32 s{sT}, s{sT}, 9")
        if compact: e(f"s_sub_u32 s{sT}, s{sT}, {lab}-{KN}")
        e(f"s_ashr_i32 s{sVs}, s{sT}, 31")
        e(f"s_add_u32 s{SO}, s{SO}, s{sT}")
        e(f"s_addc_u32 s{SO+1}, s{SO+1}, s{sVs}")
        e("v_lshlrev_b32 v5, 3, v0")
        e(f"global_load_dword v1, v5, s[{SO}:{SO+1}]")
    if compact:
        e("s_and_b32 s14, s2, 7")
        e(f"v_readfirstlane_b32 s{sW}, v1")
        if compact == 2 and codepf: code_prefetch()
        e(f"s_lshr_b32 s{sT}, s2, 6")
        e(f"s_lshl2_add_u32 s14, s14, s{sT}")
        e("s_bfe_u32 s15, s2, 0x30003")
        e("s_lshl3_add_u32 s15, s14, s15")
        e("s_lshl_b32 s14, s14, 16")
        e("s_lshl_b32 s15, s15, 16")
    else:
        e("s_lshr_b32 s15, s2, 3")
        e(f"v_readfirstlane_b32 s{sW}, v1")
        if codepf:
            e.c("pull this kernel's code into L2 (4 lines of 128 B per workgroup)")
            e("s_getpc_b64 s[18:19]")
            e(f"s_lshl_b32 s{sT}, s15, 9")
            e(f"s_add_u32 s18, s18, s{sT}")
            e("s_addc_u32 s19, s19, 0")
            e("v_and_b32 v2, 3, v0")
            e("v_lshlrev_b32 v2, 7, v2")
            e("global_load_dword v1, v2, s[18:19]")
        e("s_and_b32 s14, s2, 7")
        e(f"s_lshr_b32 s{sT}, s15, 3")
        e("s_lshl_b32 s14, s14, 2")
        e(f"s_add_u32 s14, s14, s{sT}")
        e("s_and_b32 s15, s15, 7")
        e(f"s_lshl_b32 s{sT}, s14, 3")
        e(f"s_add_u32 s15, s15, s{sT}")
        e("s_lshl_b32 s14, s14, 16")
        e("s_lshl_b32 s15, s15, 16")
    e("v_lshrrev_b32 v2, 4, v0")
    e(f"s_lshl_b32 s{sQoff}, s{sW}, 13")
    def jitter(tag):
        if not jit: return
        for spec in jit.split(","):
            where, mask, amt = spec.split(":")
            if where != tag: continue
            lab = f"L_j{tag}_{len(e.l)}"
            e(f"s_lshr_b32 s98, {mask}, s{sW}")
            e("s_bitcmp1_b32 s98, 0")
            e(f"s_cbranch_scc0 {lab}")
            for _ in range(int(amt)): e("s_sleep 40")
            e.label(lab)
    jitter("start")
    m0 = mark()
    if uni:
        sA, sB2, sOf, SX, vX = sT2, sT3, sW2, SO, 44
        q_patterns()
        k_pattern0(vDK)
        for m in range(1, 4): e(f"v_xor_b32 v{vDK+m}, {64*m}, v{vDK}")
        e(f"s_cmp_ge_u32 s{sW}, {2+uni}")
        e("s_cbranch_scc1 L_B")
        e(f"s_add_u32 s{sBuf}, s{sQoff}, 0x20000   ; staging block")
        e(f"s_sub_u32 s{sA}, s{sQoff}, 0x4000")
        srd_tail(SX)
        e(f"s_movk_i32 s{sB2}, 0x1000")
        e(f"s_cmp_lt_u32 s{sW}, 2")
        e("s_cselect_b64 vcc, -1, 0")
        e(f"s_cselect_b32 s{sT}, s{sBuf}, s{sA}")
        e(f"s_cselect_b32 s{sA}, s{sQoff}, s{sA}")
        e(f"s_cselect_b32 s{sB2}, 128, s{sB2}")
        e(f"s_cselect_b32 s{sOf}, s15, s14")
        e(f"s_mov_b32 m0, s{sT}")
        for m in range(4): e(f"v_cndmask_b32 v{vX+m}, v{vDK+m}, v{vDQ+m}, vcc")
        e("s_waitcnt lgkmcnt(0)")
        stamp()
        e(f"s_cselect_b32 s{SX}, s4, s6")
        e(f"s_cselect_b32 s{SX+1}, s5, s7")
        srd(SX, SX, sOf)
        for m in range(4): e(f"buffer_load_dwordx4 v{vX+m}, s[{SX}:{SX+3}], s{sA} offen offset:{m*1024} lds")
        e(f"s_add_u32 m0, s{sT}, 4096")
        e(f"s_add_u32 s{sB2}, s{sB2}, s{sA}")
        for m in range(4): e(f"buffer_load_dwordx4 v{vX+m}, s[{SX}:{SX+3}], s{sB2} offen offset:{m*1024} lds")
        e(f"s_cmp_ge_u32 s{sW}, 4")
        e("s_cbranch_scc1 L_B")
        srd(SQ, 4, 15); srd_tail(SQ)
        e(f"s_cmp_lt_u32 s{sW}, 2")
        e("s_cbranch_scc1 L_lead0")
        e(f"s_add_u32 s{sT3}, s{sQoff}, 128")
        e(f"s_mov_b32 m0, s{sBuf}")
        if gate: e("s_waitcnt vmcnt(0)")
        q_tile()
        e.label("L_lead0")
        stamp()
        e("s_branch L_A")
    else:
        if not k6:
            e(f"s_cmp_ge_u32 s{sW}, 4")
            e("s_cbranch_scc1 L_B")
        e(f"s_add_u32 s{sBuf}, s{sQoff}, 0x20000   ; staging block")
        e(f"s_add_u32 s{sT3}, s{sQoff}, 128")
        srd_tail(SQ)
        e(f"s_cmp_ge_u32 s{sW}, 2")
        e("s_cbranch_scc1 L_lag")
        q_patterns()
        e(f"s_mov_b32 m0, s{sBuf}")
        e("s_waitcnt lgkmcnt(0)")
        stamp()
        srd(SQ, 4, 15)
        q_tile()
        stamp()
        e("s_branch L_A")
        e.c("---------------- waves 2,3: K tile 0, then their q tile")
        e.label("L_lag")
        rewind(m0)
        k_pattern0(vDK)
        for m in range(1, 4): e(f"v_xor_b32 v{vDK+m}, {64*m}, v{vDK}")
        srd_tail(SK)
        e(f"s_sub_u32 s{sT2}, s{sW}, 2")
        e(f"s_lshl_b32 s{sT2}, s{sT2}, 12")
        e(f"s_mov_b32 m0, s{sT2}")
        e("s_waitcnt lgkmcnt(0)")
        stamp()
        srd(SK, 6, 14)
        for m in range(4): e(f"buffer_load_dwordx4 v{vDK+m}, s[{SK}:{SK+3}], s{sT2} offen offset:{m*1024} {ldkv} lds")
        if compact == 1 and codepf: code_prefetch()
        if k6:
            e(f"s_cmp_ge_u32 s{sW}, 4")
            e("s_cbranch_scc1 L_B")
        srd(SQ, 4, 15)
        e(f"s_mov_b32 m0, s{sBuf}")
        q_patterns()
        if gate: e(f"s_waitcnt vmcnt({gatecnt})")
        q_tile()
        stamp()
        e("s_branch L_A")

    def sel_const():
        e.c("row-sum MFMA A operand: 1.0 where (k group parity) == (row group parity)")
        e("v_lshrrev_b32 v4, 4, v0")
        e("v_lshrrev_b32 v5, 2, v0")
        e("v_xor_b32 v4, v4, v5")
        e("v_and_b32 v4, 1, v4")
        e("v_sub_u32 v4, v4, 1")
        for j in range(4): e(f"v_and_b32 v{vSelA+j}, 0x3f803f80, v4")
    def setup(sel):
        srd(SO, 10, 15); srd_tail(SO)
        e("v_and_b32 v2, 31, v0")
        e("v_lshrrev_b32 v3, 5, v0")
        e.c("K fragment addresses")
        e("v_and_b32 v4, 15, v0")
        e("v_xor_b32 v4, v4, v3")
        e("v_lshlrev_b32 v4, 4, v4")
        e(f"v_lshl_add_u32 v{vKA}, v2, 8, v4")
        for s in range(1, 8): e(f"v_xor_b32 v{vKA+s}, {s*32}, v{vKA}")
        e.c("Q fragment addresses")
        e("v_bfe_u32 v4, v0, 1, 3")
        e("v_xor_b32 v4, v4, v3")
        e("v_lshlrev_b32 v4, 4, v4")
        e("v_lshl_add_u32 v4, v2, 7, v4")
        e(f"v_add_u32 v{vQA}, s{sBuf}, v4")
        for s in range(1, 4): e(f"v_xor_b32 v{vQA+s}, {s*32}, v{vQA}")
        e.c("V fragment addresses (transposing reads)")
        e("v_bfe_u32 v4, v0, 2, 2")
        e("v_lshl_add_u32 v5, v3, 2, v4")
        e("v_lshlrev_b32 v5, 8, v5")
        e("v_lshl_add_u32 v5, v4, 6, v5")
        e("v_bfe_u32 v6, v0, 4, 1")
        e("v_lshl_add_u32 v5, v6, 5, v5")
        e("v_and_b32 v6, 1, v0")
        e("v_lshl_add_u32 v5, v6, 4, v5")
        e("v_bfe_u32 v6, v0, 1, 1")
        e("v_lshl_add_u32 v5, v6, 3, v5")
        e(f"v_add_u32 v{vVA}, 0x10000, v5")
        for t in range(1, 4): e(f"v_xor_b32 v{vVA+t}, {t*64}, v{vVA}")
        e.c("O staging: write, read-back and global addresses")
        e("v_and_b32 v4, 7, v0")
        e("v_xor_b32 v4, v4, v3")
        e("v_lshlrev_b32 v4, 4, v4")
        e("v_lshl_add_u32 v4, v2, 7, v4")
        e(f"v_add_u32 v{vOW}, s{sBuf}, v4")
        e("v_lshrrev_b32 v4, 3, v0")
        e("v_and_b32 v5, 7, v0")
        e("v_xor_b32 v6, v4, v5")
        e("v_lshlrev_b32 v6, 4, v6")
        e("v_lshl_add_u32 v6, v4, 7, v6")
        e(f"v_add_u32 v{vOR}, s{sBuf}, v6")
        e("v_lshlrev_b32 v5, 4, v5")
        e("v_lshl_add_u32 v5, v4, 8, v5")
        e(f"v_add_u32 v{vOG}, s{sQoff}, v5")
        for m in range(4): e(f"s_mov_b32 s{sStO+m}, {m*2048}")
        e(f"v_mov_b32 v{vC}, {hex(f32bits(CC))}")
        e(f"v_mov_b32 v{vMT}, 0xff800000")
        e(f"v_mov_b32 v{vThr}, {hex(f32bits(-1.0 if forcefb else float(thr)))}")
        if sel: sel_const(); e(f"s_mov_b64 s[{sMask}:{sMask+1}], -1")

    e.c("---------------- waves 4-7: K / V loads, then their own q tile")
    e.label("L_B")
    rewind(m0)
    if not uni and not k6: k_pattern0(vDK)
    e(f"s_and_b32 s{sT}, s{sW}, 1")
    e(f"s_lshl_b32 s{sT}, s{sT}, 7")
    e(f"v_xor_b32 v{vDK}, s{sT}, v{vDK}")
    e(f"v_xor_b32 v{vDK+1}, 64, v{vDK}")
    e(f"s_and_b32 s{sW2}, s{sW}, 3")
    e(f"s_lshl_b32 s{sBuf}, s{sW2}, 13")
    e(f"s_add_u32 s{sBuf}, s{sBuf}, 0x21000")
    e(f"s_lshl_b32 s{sW2}, s{sW2}, 11")
    if k6: npt[0] += 1; nst[0] += 1 if (stamps and not lite) else 0
    else:
        srd_tail(SK)
        e("s_waitcnt lgkmcnt(0)")
        stamp()
        srd(SK, 6, 14)
    vm = ["x"] + [f"u{j}" for j in range(2, uni)] + (["u1"] if k6 else [])
    vready = [False]
    def v_setup():
        if vready[0]: return
        vready[0] = True
        srd(SV, 8, 14); srd_tail(SV)
        e("v_lshlrev_b32 v5, 2, v2")
        e("v_and_b32 v3, 15, v0")
        e("v_xor_b32 v5, v5, v3")
        e("v_lshlrev_b32 v5, 4, v5")
        e(f"v_lshl_add_u32 v{vDV}, v2, 8, v5")
    def unit(n):
        kind, i = units[n]
        if kind == "V": v_setup()
        if kind == "V" and vrot:
            if i == 0:
                e.c("V tiles in an order rotated by the member index of the KV group")
                e(f"s_lshr_b32 s{sVs}, s15, 3")
                e(f"s_and_b32 s{sVs}, s{sVs}, 0xe000")
                e(f"s_add_u32 s{sVs}, s{sVs}, s{sW2}")
            else:
                e(f"s_add_u32 s{sVs}, s{sVs}, 8192")
                e(f"s_and_b32 s{sVs}, s{sVs}, 0xffff")
            e(f"s_add_u32 m0, s{sVs}, 0x10000")
            e("s_nop 0")
            so = sVs
        else:
            e(f"s_add_u32 m0, s{sW2}, {(0 if kind == 'K' else 0x10000) + i*8192}")
            e(f"s_add_u32 s{sT}, s{sW2}, {i*8192}")
            so = sT
        r = SK if kind == "K" else SV
        va = [vDK, vDK + 1] if kind == "K" else [vDV, vDV]
        for m in range(2): e(f"buffer_load_dwordx4 v{va[m]}, s[{r}:{r+3}], s{so} offen offset:{m*1024} {ldkv} lds")
        vm.extend([f"u{n}"] * 2)
    def vmwait(tags):
        idx = [j for j, x in enumerate(vm) if x in tags]
        if idx: e(f"s_waitcnt vmcnt({len(vm)-1-max(idx)})")
    def q1():
        e(f"s_mov_b32 m0, s{sBuf}")
        e("s_nop 0")
        q_dma(sQoff); vm.extend(["q1"] * 4)
    issued = 3 if k6 else max(1, uni); q1done = False
    for bi, nd in enumerate(needl):
        assert max(capl[bi], issued) >= nd
        while issued < capl[bi]: unit(issued); issued += 1
        if bi == 0:
            stamp()
            v_setup(); srd(SQ, 4, 15); srd_tail(SQ)
            if not uni: q_patterns()
            setup(selB)
        if bi == q1at:
            assert bi > npre + 1 or bi == len(needl) - 1
            q1(); q1done = True
        vmwait({f"u{j}" for j in range(nd)})
        e("s_barrier")
    stamp()
    if t5l: e("s_barrier")
    if t6l:
        assert not q1done
        e(f"s_bitcmp1_b32 s{sW}, 1")
        e("s_cbranch_scc0 L_t6a")
        e("s_barrier")
        e.label("L_t6a")
        q1()
        e(f"s_bitcmp1_b32 s{sW}, 1")
        e("s_cbranch_scc1 L_t6b")
        e("s_barrier")
        e.label("L_t6b")
    elif not q1done: q1()
    def q_read(hf):
        for s in range(4): e(f"ds_read_b128 v[{vQ+16*hf+4*s}:{vQ+16*hf+4*s+3}], v{vQA+s}")
    e(f"s_add_u32 s{sT3}, s{sQoff}, 128")
    jitter("B1")
    e("s_waitcnt vmcnt(0)")
    q_read(0)
    e("s_waitcnt lgkmcnt(0)")
    q_dma(sT3)
    e("s_waitcnt vmcnt(0)")
    q_read(1)
    jitter("B2")
    if prioB or hiB >= 0: e(f"s_setprio {2 if hiB >= 0 else prioB}")
    e.c("---------------- tile body without barriers (waves 4-7, and every redo after L_fb)")
    e.label("L_mainB")

    def body(grp, ns, sel, pat, nf):
        pool = POOL[:-2] if sel else POOL
        preg = lambda i, u: vP + 8 * i + u
        mf = []
        def SEL(i, k):
            if sel: mf.append(dict(ty="L", i=i, k=k))
        def QK(i, s): mf.append(dict(ty="Q", i=i, s=s))
        def PV(i, k, t): mf.append(dict(ty="P", i=i, k=k, t=t))
        for s in range(8): QK(0, s)
        for s in range(8): QK(1, s)
        if ramp and grp == "A":
            assert ns == 0 and not sel
            rl = ints(ramp); nxt = [0, 0]
            def take(limit):
                t_ = 0 if nxt[0] <= nxt[1] else 1
                if nxt[t_] >= limit: return False
                PV(nxt[t_] // 2, nxt[t_] % 2, t_); nxt[t_] += 1; return True
            for p in range(1, 7):
                done = 0
                for s in range(8):
                    QK(p + 1, s)
                    while done < (s + 1) * rl[p] // 8 and take(2 * p + (1 if s >= 4 else 0)): done += 1
            while take(14): pass
            rest = [(ks // 2, ks % 2, 2) for ks in range(16)]
            k = max(0, rl[7])
            for x in rest[:k]: PV(*x)
            while take(15): pass
            for x in rest[k:2*k]: PV(*x)
            while take(16): pass
            for x in rest[2*k:]: PV(*x)
            for ks in range(16): PV(ks // 2, ks % 2, 3)
        else:
            for t in range(ns): PV(0, 0, t)
            SEL(0, 0)
            for p in range(1, 7):
                lst = [(p - 1, 1, t) for t in range(ns)] + [(p, 0, t) for t in range(ns)]
                done = 0
                if pat:
                    sq = sl = 0
                    for ch in pat:
                        if ch == "Q": QK(p + 1, sq); sq += 1
                        elif ch == "P": PV(*lst[done]); done += 1
                        else: SEL(*((p - 1, 1) if sl == 0 else (p, 0))); sl += 1
                    assert sq == 8 and done == len(lst)
                    continue
                for s in range(8):
                    QK(p + 1, s)
                    want = (s + 1) * len(lst) // 8
                    while done < want:
                        PV(*lst[done]); done += 1
                        if lst[done - 1][2] == min(1, ns - 1): SEL(*lst[done - 1][:2])
                    if ns == 0 and s == 1: SEL(p - 1, 1)
                    if ns == 0 and s == 5: SEL(p, 0)
            deferred = [(ks // 2, ks % 2, t) for t in range(ns, 4) for ks in range(16)]
            def defer(n):
                for _ in range(n):
                    if deferred: PV(*deferred.pop(0))
            if ns == 0 and altA and grp == "A":
                assert not sel
                dd = [deferred[16*t:16*t+16] for t in range(4)]
                o = [x for ks in range(16) for x in (dd[0][ks], dd[1][ks])]
                if altA == 1: o += [x for ks in range(16) for x in (dd[2][ks], dd[3][ks])]
                else: o += [x for ks in range(12) for x in (dd[2][ks], dd[3][ks])] + dd[2][12:] + dd[3][12:]
                for x in o: PV(*x)
            elif ns == 0:
                d0, d1 = deferred[:16], deferred[16:32]
                deferred[:32] = d0[:14] + d1[:nf] + d0[14:15] + d1[nf:2*nf] + d0[15:] + d1[2*nf:]
                defer(12); SEL(6, 1); defer(2 + nf); SEL(7, 0); defer(1 + nf); SEL(7, 1); defer(64)
            else:
                for t in range(ns): PV(6, 1, t)
                SEL(6, 1); defer(nf)
                for t in range(ns): PV(7, 0, t)
                SEL(7, 0); defer(nf); SEL(7, 1)
                for t in range(ns): PV(7, 1, t)
                defer(64)
        NM = len(mf)
        assert NM == (144 if sel else 128)
        for m in mf:
            if m["ty"] == "Q":
                m["unit"] = ("K", m["i"]); m["tag"] = ("Q", m["i"], m["s"])
                m["deps"] = [(("f", m["i"] - 2, 15), 0)] if (m["s"] == 0 and m["i"] >= 2) else []
            elif m["ty"] == "L":
                m["tag"] = ("L", m["i"], m["k"]); m["deps"] = [(("c", m["i"], 4 * m["k"] + 3), 2)]
            else:
                m["unit"] = ("V", m["i"]); m["tag"] = ("P", m["i"], m["k"], m["t"])
                m["deps"] = [(("c", m["i"], 4 * m["k"] + 3), 2)]
        def reads(m, r):
            if m["ty"] == "Q": return [f"ds_read_b128 v[{r}:{r+3}], v{vKA+m['s']} offset:{m['i']*8192}"]
            ks = 2 * m["i"] + m["k"]
            return [f"ds_read_b64_tr_b16 v[{r}:{r+1}], v{vVA+m['t']} offset:{ks*4096}",
                    f"ds_read_b64_tr_b16 v[{r+2}:{r+3}], v{vVA+m['t']} offset:{ks*4096+2048}"]
        def mtext(m):
            if m["ty"] == "L":
                b = preg(m["i"], 4 * m["k"])
                return f"v_mfma_f32_16x16x32_bf16 v[{vSelC}:{vSelC+3}], v[{vSelA}:{vSelA+3}], v[{b}:{b+3}], " + ("0" if (m["i"], m["k"]) == (0, 0) else f"v[{vSelC}:{vSelC+3}]")
            r = m["slot"]
            if m["ty"] == "Q": d = vS + 16 * (m["i"] % 2); b = vQ + 4 * m["s"]; first = m["s"] == 0
            else: d = vO[m["t"]]; b = preg(m["i"], 4 * m["k"]); first = (m["i"], m["k"]) == (0, 0)
            return f"v_mfma_f32_32x32x16_bf16 v[{d}:{d+15}], v[{r}:{r+3}], v[{b}:{b+3}], " + ("0" if first else f"v[{d}:{d+15}]")
        q, qm = [], []
        def V(text, cost=4, tag=None, deps=(), kind="valu"): q.append(dict(text=text, cost=cost, tag=tag, deps=list(deps), kind=kind))
        def M(text, tag=None, deps=(), kind="lds"): qm.append(dict(text=text, cost=4, tag=tag, deps=list(deps), kind=kind))
        b = vS
        V(f"v_max3_f32 v{vM0}, v{b}, v{b+1}, v{b+2}", deps=[(("Q", 0, 7), 12)])
        V(f"v_max3_f32 v{vM1}, v{b+3}, v{b+4}, v{b+5}")
        for j in range(6, 16, 2):
            m = vM0 if (j // 2) % 2 == 1 else vM1
            V(f"v_max3_f32 v{m}, v{m}, v{b+j}, v{b+j+1}")
        V(f"v_max3_f32 v{vM0}, v{vM0}, v{vM1}, v{vMT}")
        V(f"v_mov_b32 v{vM1}, v{vM0}", tag="mv")
        V(f"v_permlane32_swap_b32 v{vM0}, v{vM1}", deps=[("mv", 2)])
        V(f"v_max_f32 v{vM0}, v{vM0}, v{vM1}")
        V(f"v_mul_f32 v{vNM}, {hex(f32bits(-CC))}, v{vM0}")
        alias = {}
        def cvt(i):
            p, u = divmod(i, 8); ta = vT + 2 * (u % 4)
            return dict(text=f"v_cvt_pk_bf16_f32 v{preg(p, u)}, v{ta}, v{ta+1}", tag=("c", p, u), deps=[(("e", p, u), 1)])
        for i in range(64):
            p, u = divmod(i, 8)
            sa = vS + 16 * (p % 2) + 2 * u; ta = vT + 2 * (u % 4)
            f = [dict(text=f"v_fma_f32 v{ta}, v{sa}, v{vC}, v{vNM}", tag=("f", p, 2 * u), deps=[(("Q", p, 7), 12)] if u == 0 else []),
                 dict(text=f"v_fma_f32 v{ta+1}, v{sa+1}, v{vC}, v{vNM}", tag=("f", p, 2 * u + 1))]
            ee = [dict(text=f"v_exp_f32 v{ta}, v{ta}", cost=8, tag=("e0", p, u)), dict(text=f"v_exp_f32 v{ta+1}, v{ta+1}", cost=8, tag=("e", p, u))]
            if nofma and grp == "B" and p >= 1:
                ee[0]["text"] = f"v_exp_f32 v{ta}, v{sa}"; ee[1]["text"] = f"v_exp_f32 v{ta+1}, v{sa+1}"
                ee[0]["deps"] = f[0].get("deps", []); ftag = f[1]["tag"]; f = []
                alias[ftag] = ("e", p, u)
            a = [] if sel else [dict(text=f"v_mov_b32 v{vL0}, v{ta}" if i == 0 else f"v_add_f32 v{vL0}, v{vL0}, v{ta}", deps=[(("e0", p, u), 1)]),
                                dict(text=f"v_mov_b32 v{vL1}, v{ta+1}" if i == 0 else f"v_add_f32 v{vL1}, v{vL1}, v{ta+1}", deps=[(("e", p, u), 1)])]
            c = [cvt(i - 1)] if i else []
            lastc = [cvt(i)] if i == 63 else []
            for o in (f[:1] + c + f[1:] if (sel and u > 0) else c + f) + ee + a[:1] + lastc + a[1:]: V(**o)
        if sel:
            V(f"v_cmp_nge_f32 vcc, v{vThr}, v{vSelC}", deps=[(("L", 7, 1), 8)])
            V(f"v_rcp_f32 v{vInv}, v{vSelC}", cost=8, tag="rcp")
        else:
            V(f"v_add_f32 v{vL0}, v{vL0}, v{vL1}")
            V(f"v_mov_b32 v{vL1}, v{vL0}", tag="mv2")
            V(f"v_permlane32_swap_b32 v{vL0}, v{vL1}", deps=[("mv2", 2)])
            V(f"v_add_f32 v{vL0}, v{vL0}, v{vL1}")
            V(f"v_cmp_lt_f32 vcc, v{vThr}, v{vL0}")
            V(f"v_rcp_f32 v{vInv}, v{vL0}", cost=8, tag="rcp")
        for n in range(1, 4): V(f"v_xor_b32 v{vQA+n}, {32*n}, v{vOW}")
        if sel: V(f"s_and_b64 vcc, vcc, s[{sMask}:{sMask+1}]", kind="salu", deps=[("lastsite", 0)] if (grp == "A" and t6l) else [])
        V("s_cbranch_vccnz L_fb", kind="salu", tag="chk", deps=[("lastsite", 0)] if (grp == "A" and t6l) else [])
        lastP = {t: [m for m in mf if m["ty"] == "P" and m["t"] == t][-1]["tag"] for t in range(4)}
        late = lateA and grp == "A"
        def stores(h):
            base = vS + 16 * h
            for m in range(4):
                M(None, kind="waitl", tag=("or", h, m))
                M(f"buffer_store_dwordx4 v[{base+4*m}:{base+4*m+3}], v{vOG}, s[{SO}:{SO+3}], s{sStO+m} offen offset:{h*128} {stB1 if (grp == 'B' and h == 1 and stB1 is not None) else (stB0 if (grp == 'B' and h == 0 and stB0 is not None) else stflag)}".rstrip(), kind="vm")
        for t in range(4):
            ob = vO[t]
            for n in range(2):
                dd = [(lastP[t], 12), ("rcp", 1), ("chk", 0)] if n == 0 else []
                if pklast and t == 3 and (grp == "B" or pkA):
                    if n == 0: V(f"v_mov_b32 v{vInv-1}, v{vInv}", deps=[("rcp", 1), ("chk", 0)])
                    for j in range(4): V(f"v_pk_mul_f32 v[{ob+8*n+2*j}:{ob+8*n+2*j+1}], v[{vInv-1}:{vInv}], v[{ob+8*n+2*j}:{ob+8*n+2*j+1}]", deps=dd if j == 0 else [])
                else:
                    for j in range(8): V(f"v_mul_f32 v{ob+8*n+j}, v{vInv}, v{ob+8*n+j}", deps=dd if j == 0 else [])
                for j in range(4): V(f"v_cvt_pk_bf16_f32 v{ob+4*n+j}, v{ob+8*n+2*j}, v{ob+8*n+2*j+1}", tag=("pk", t, n, j))
                x = 2 * (t % 2) + n
                if t == 2 and n == 0: M(None, kind="waitl", tag=("or", 0, 3))
                M(f"ds_write_b128 v{vQA+x if x else vOW}, v[{ob+4*n}:{ob+4*n+3}]", tag=("ow", t, n), deps=[(("pk", t, n, 3), 0)])
            if t % 2 == 1:
                hf = t // 2; tb = vS + 16 * hf
                M(None, kind="waitl", tag=("ow", t, 1))
                for m in range(4): M(f"ds_read_b128 v[{tb+4*m}:{tb+4*m+3}], v{vOR} offset:{m*1024}", tag=("or", hf, m))
                if late and hf == 1: stores(0)
                if not (late and hf == 0): stores(hf)
        for m in mf: m["deps"] = [(alias.get(d, d), n_) for d, n_ in m["deps"]]
        pos = {}; ni = [0]; t = [0]; lds = []; covered = [-1]; last_kind = [None]; wbusy = [0]
        def emit(text, cost, tag=None, kind="valu"):
            if kind == "lds" and last_kind[0] == "valu": cost += 8
            if kind in ("lds", "vm") and t[0] < wbusy[0]: t[0] = wbusy[0]
            if text.startswith("ds_write"): wbusy[0] = t[0] + WB
            e(text)
            if tag is not None: pos[tag] = ni[0]
            ni[0] += 1; t[0] += cost; last_kind[0] = kind
        def deps_ok(deps): return all(d in pos and ni[0] - pos[d] - 1 >= n for d, n in deps)
        def deps_emitted(deps): return all(d in pos for d, n in deps)
        def pad(deps):
            k = max(n - (ni[0] - pos[d] - 1) for d, n in deps)
            if k > 0: e(f"s_nop {k-1}"); ni[0] += k; t[0] += 4 * k; last_kind[0] = "salu"
        def lds_last(tag): return max(j for j, x in enumerate(lds) if x[0] == tag)
        def wait_lds(tag, greedy):
            last = lds_last(tag)
            if last <= covered[0]: return
            if greedy:
                while last + 1 < len(lds) and lds[last + 1][1] <= t[0] - LAT: last += 1
            n = len(lds) - 1 - last
            if n > 15: last = len(lds) - 1 - 15; n = 15
            t[0] = max(t[0], lds[last][1] + 100)
            emit(f"s_waitcnt lgkmcnt({n})", 4, kind="salu")
            covered[0] = last
        def site(name, skip):
            assert "chk" not in pos
            if barst: stamp(False, True)
            emit(f"s_cbranch_{skip} {name}", 10, kind="salu")
            e("s_barrier"); t[0] += 4
            e.label(name)
            if barst: stamp(False, True); sys.stderr.write(f"site {name} t={t[0]}\n")
        checked = [needl[0] if grp == "A" else 16]
        rp = [0]; lagdone = [0]; free = list(pool)
        def dep_far(m):
            for d, _ in m["deps"]:
                if d not in pos:
                    c = 0
                    for o in q:
                        if o["tag"] == d: break
                        c += o["cost"]
                    if c > post: return True
            return False
        def can_read(n_issued):
            while rp[0] < NM and mf[rp[0]]["ty"] == "L": rp[0] += 1
            if rp[0] >= NM or not free or rp[0] > n_issued + D: return False
            if t[0] < wbusy[0] and rp[0] > n_issued + 4: return False
            m = mf[rp[0]]
            if need[m["unit"]] > checked[0] and (rp[0] > n_issued + Dbar or dep_far(m)): return False
            return len(lds) - 1 - covered[0] + (1 if m["ty"] == "Q" else 2) <= 24
        def do_read():
            m = mf[rp[0]]
            if m["ty"] == "L": rp[0] += 1; return
            nd = need[m["unit"]]
            while nd > checked[0]:
                nx = min(x for x in needl if x > checked[0])
                bidx = needl.index(nx)
                assert bidx <= npre or lagdone[0] >= bidx - npre, (nx, "the followers' barrier site must come first")
                wait_lds(("Qf", 7), False)
                site(f"L_nb{nx}", "scc1")
                checked[0] = nx
            m["slot"] = free.pop(0)
            for r in reads(m, m["slot"]):
                emit(r, 4, kind="lds"); lds.append((("A", rp[0]), t[0]))
            rp[0] += 1
        def qm_ready(must=False):
            if not qm or not deps_ok(qm[0]["deps"]): return False
            o = qm[0]
            if o["kind"] == "waitl":
                if not any(x[0] == o["tag"] for x in lds): return False
                return must or lds[lds_last(o["tag"])][1] + 100 <= t[0] + 4 or lds_last(o["tag"]) <= covered[0]
            return must or t[0] >= wbusy[0]
        def emit_q(qq):
            o = qq.pop(0)
            if o["kind"] == "waitl": wait_lds(o["tag"], False)
            else:
                emit(o["text"], o["cost"], o["tag"], o["kind"])
                if o["kind"] == "lds": lds.append((o["tag"], t[0]))
        if grp == "A":
            for s in range(8):
                emit(f"ds_read_b128 v[{vQ+4*s}:{vQ+4*s+3}], v{vQA+(s%4)} offset:{(s//4)*4096}", 4, kind="lds"); lds.append((("Qf", s), t[0]))
                do_read()
        else:
            for s in range(4): lds.append((("Qf", 4 + s), 0))
            for s in range(8): do_read()
        pipe = 0; log = []
        for n, m in enumerate(mf):
            while True:
                if not deps_emitted(m["deps"]):
                    if rp[0] <= n and can_read(n - 1):
                        for _ in range(4):
                            if can_read(n - 1): do_read()
                    if not deps_ok(q[0]["deps"]):
                        assert deps_emitted(q[0]["deps"]), (m["tag"], q[0])
                        pad(q[0]["deps"])
                    emit_q(q); continue
                if q and deps_ok(q[0]["deps"]) and (t[0] + q[0]["cost"] <= pipe or not deps_ok(m["deps"])): emit_q(q); continue
                break
            if not deps_ok(m["deps"]): pad(m["deps"])
            while rp[0] <= n: do_read()
            if m["ty"] != "L": wait_lds(("A", n), True)
            t[0] = max(t[0], pipe)
            log.append((n, m["tag"], t[0]))
            pipe = t[0] + (16 if m["ty"] == "L" else 32)
            emit(mtext(m), 8, m["tag"], "mfma")
            if m["ty"] != "L": free.append(m["slot"])
            k = 0
            while can_read(n) and k < (1 if m["ty"] == "L" else (4 if rp[0] < n + 9 else 2)):
                k += 1 if mf[rp[0]]["ty"] == "Q" else 2
                do_read()
            while qm_ready() and t[0] + 4 <= pipe:
                isw = qm[0]["text"] and qm[0]["text"].startswith("ds_write")
                emit_q(qm)
                if isw: break
            if grp == "B" and n == hiB: emit(f"s_setprio {prioB}", 4, kind="salu")
            if grp == "A" and n == early8 and checked[0] < 8:
                bidx = needl.index(8)
                assert needl[bidx - 1] == checked[0] and lagdone[0] >= bidx - npre
                site("L_nb8", "scc1"); checked[0] = 8
            if grp == "A":
                for j, x in enumerate(lagl + t5l[1:] + t6l[1:]):
                    if n == x: site(f"L_lg{j}", "scc0"); lagdone[0] += 1
                if t5l and n == t5l[0]:
                    assert checked[0] == 16
                    site("L_ld5", "scc1")
                if t6l and n == t6l[0]:
                    assert checked[0] == 16
                    site("L_ld6", "scc1"); pos["lastsite"] = ni[0] - 1
            if pairs and n in ((7, 23, 39, 55, 71, 87, 103, 119, 127) if NM == 128 else (7, 25, 43, 61, 79, 97, 115, 133, 143)):
                stamp(True, True); stamp(False, True); ni[0] += 2; t[0] += 8
            if m["tag"] in (("Q", 0, 7), ("P", 3, 0, 0), ("Q", 7, 7)) and not (barst and grp == "A"):
                if stamp(): ni[0] += 1; t[0] += 4
        stamp()
        while q or qm:
            if qm_ready(): emit_q(qm)
            elif q and deps_ok(q[0]["deps"]): emit_q(q)
            elif qm_ready(True): emit_q(qm)
            else: pad(q[0]["deps"]); emit_q(q)
        if verbose:
            for x in log[::(1 if verbose == 2 else 8)]: sys.stderr.write(f"{grp} {x}\n")
            sys.stderr.write(f"{grp} last mfma {log[-1]} model end t={t[0]}\n")
        stamp()
        if pairs: stamp(True, True); stamp(False, True)

    m1 = mark()
    stamp()
    body("B", nsB, selB, patB, nfB)
    e("s_branch L_fin" if (stamps or spin) else "s_endpgm")
    e.c("---------------- waves 0-3")
    e.label("L_A")
    rewind((m1[0] - (1 if (stamps and not lite) else 0), m1[1] - 1))
    setup(selA)
    if prioA: e(f"s_setprio {prioA}")
    if not gate or gatecnt: e("s_waitcnt vmcnt(8)")
    stamp()
    jitter("A0")
    e("s_barrier                               ; K tile 0")
    e(f"s_bitcmp1_b32 s{sW}, 1")
    e("s_cbranch_scc0 L_lead")
    for _ in range(npre): e("s_barrier")
    e.label("L_lead")
    e("s_waitcnt vmcnt(0)")
    stamp()
    body("A", nsA, selA, patA, nfA)
    e.label("L_fin")
    if barst: nst[0] = 24
    if stamps:
        e("s_waitcnt vmcnt(0)")
        stamp(False, True); stamp(True, True)
        e("s_waitcnt lgkmcnt(0)")
        n = nst[0]
        e.c(f"nstamps={n}" + (" pairs" if pairs else ""))
        e(f"s_lshl_b32 s{sT}, s2, 3")
        e(f"s_add_u32 s{sT}, s{sT}, s{sW}")
        e(f"s_mul_i32 s{sT}, s{sT}, {n*8}")
        e(f"s_add_u32 s12, s12, s{sT}")
        e("s_addc_u32 s13, s13, 0")
        e("v_mov_b32 v1, 0")
        for j in range(n):
            e(f"v_mov_b32 v2, s{sStamp+2*j}")
            e(f"v_mov_b32 v3, s{sStamp+2*j+1}")
            e(f"global_store_dwordx2 v1, v[2:3], s[12:13] offset:{8*j}")
            e("s_nop 1")
    if spin:
        e("s_waitcnt vmcnt(0)")
        if enc == 99: e("s_memrealtime s[100:101]")
        e("s_waitcnt lgkmcnt(0)")
        if enc >= 0:
            e("s_sub_u32 s100, s100, s90")
            e("s_lshl_b32 s100, s100, 2")
            if encw >= 0:
                e(f"s_lshr_b32 s98, s{sW}, 1")
                e(f"s_cmp_eq_u32 s98, {encw}")
                e("s_cselect_b32 s100, s100, 0")
            e(f"s_add_u32 s100, s100, {spin}")
        else: e(f"s_mov_b32 s100, {spin}")
        e.label("L_spin")
        e("s_sleep 4")
        e("s_memrealtime s[98:99]")
        e("s_waitcnt lgkmcnt(0)")
        e("s_sub_u32 s98, s98, s90")
        e("s_cmp_lt_u32 s98, s100")
        e("s_cbranch_scc1 L_spin")
    e.label("L_end")
    e("s_endpgm")
    e.c("---------------- a row sum left the safe range: exact row maximum over all keys, then redo the tile with it")
    e.label("L_fb")
    e("s_waitcnt lgkmcnt(0)")
    e("s_nop 15")
    e(f"v_mov_b32 v{vThr}, 0x7f800000")
    e(f"s_mov_b64 s[{sMask}:{sMask+1}], 0")
    e("v_and_b32 v2, 31, v0")
    e("v_lshrrev_b32 v3, 5, v0")
    e("v_lshlrev_b32 v4, 8, v2")
    e("v_lshl_add_u32 v4, v3, 4, v4")
    for s in range(8): e(f"buffer_load_dwordx4 v[{vQ+4*s}:{vQ+4*s+3}], v4, s[{SQ}:{SQ+3}], s{sQoff} offen offset:{s*32}")
    e(f"s_mov_b32 s{sT}, 0")
    e("s_waitcnt vmcnt(0)")
    e.label("L_fbloop")
    for s in range(8): e(f"ds_read_b128 v[{208+4*s}:{208+4*s+3}], v{vKA+s}")
    e("s_waitcnt lgkmcnt(0)")
    for s in range(8):
        e(f"v_mfma_f32_32x32x16_bf16 v[{vS}:{vS+15}], v[{208+4*s}:{208+4*s+3}], v[{vQ+4*s}:{vQ+4*s+3}], " + ("0" if s == 0 else f"v[{vS}:{vS+15}]"))
    for s in range(8): e(f"v_add_u32 v{vKA+s}, 0x2000, v{vKA+s}")
    e("s_nop 7")
    for j in range(0, 16, 2): e(f"v_max3_f32 v{vMT}, v{vMT}, v{vS+j}, v{vS+j+1}")
    e(f"s_add_u32 s{sT}, s{sT}, 1")
    e(f"s_cmp_lt_u32 s{sT}, 8")
    e("s_cbranch_scc1 L_fbloop")
    for s in range(8): e(f"v_subrev_u32 v{vKA+s}, 0x10000, v{vKA+s}")
    if selB: sel_const()
    e("s_branch L_mainB")
    if codepf:
        e.c("pad so that the code prefetch (16 KB from the entry) stays inside .text")
        e.label("L_pad")
        e(f".fill (16384 + 256 - (L_pad - {KN})) / 4, 4, 0xbf810000")
    text = e.text()
    for x in hz.check(text.split("\n")): sys.stderr.write(x + "\n")
    return HEADER + text + FOOTER

if __name__ == "__main__":
    kw = {}
    out = sys.argv[1]
    for a in sys.argv[2:]:
        k, v = a.split("=", 1)
        if v in ("True", "False"): v = v == "True"
        elif v.lstrip("-").isdigit(): v = int(v)
        kw[k] = v
    open(out, "w").write(gen(**kw))
```

```python
import sys, math, struct
from gen1 import E, FOOTER, f32bits
import hz
CC = math.log2(math.e) / math.sqrt(128.0)
KN = "standalone__gqa_softmax__near_ridge_kernel"

HEADER = """; GQA attention forward: B=8, Hq=32, Hkv=4, Sq=Sk=256, D=128, bf16 in / bf16 out, fp32 accumulation.
; Kernarg: q, k, v, out, debug, ws (8-byte pointers at offsets 0, 8, 16, 24, 32, 40).
;
; One workgroup (8 waves) per (batch, q head); the 8 heads that share a KV head sit on workgroup ids that are equal
; mod 8 (L2 locality only).  K and V of the head live in LDS (64 KB each, XOR-swizzled, filled by LDS-DMA); the last
; 32 KB hold one 4 KB staging block per wave (Q on the way in, O on the way out).
; Every wave owns one 32-row q tile.  S^T = K.Q^T and O^T = V^T.P^T are computed with 32x32x16 MFMAs, so a lane holds
; one q row and P feeds the second MFMA without any shuffle.  Waves 0-3 run first (0,1 lead; 2,3 follow when their Q
; has arrived); waves 4-7 issue the K/V loads meanwhile and run their own tiles afterwards.
; Softmax: the exponent is taken relative to the row maximum of the first 32 keys.  After the row sums are known they
; are checked against 2^30; if any row of the tile exceeds that (the stand-in was too low), the tile is redone with
; the exact row maximum over all 256 keys (L_fb).  The row sum is >= 1 by construction, so nothing can underflow.
; Synchronisation: six workgroup barriers hand K / V / staging space over (K0 | K1 | K2-3 | K4-7 | V | order of the
; last Q loads).  Waves 0,1 and waves 2,3 meet them at different places of the same code (SCC selects the pair).
; Waves 0-3: QK + softmax of all key tiles first, then PV by 32-column blocks.  Waves 4-7: PV of columns 0-63 streamed
; with QK, columns 64-127 afterwards; their row sums come from a 16x16x32 MFMA with a 0/1 selector as A operand.
; Output goes through the staging block so that every store instruction writes whole 128-byte lines.
; @launch grid=(256,1,1) block=(512,1,1) lds=163840
.amdgcn_target "amdgcn-amd-amdhsa--gfx950"
.text
.globl %s
.p2align 8
.type %s,@function
%s:
""" % (KN, KN, KN)

def gen(stamps=False, allreal=False, lite=False, pairs=False, barst=False, spin=0, enc=-1, encw=-1, verbose=False, forcefb=False,
        stflag="sc1", prioA=1, prioB=0, needs="1,2,4,8,16", caps="4,7,8,8,16", npre=2, lagsites="8,34", t6="70,42",
        nsA=0, selA=False, patA="", nfA=6, nsB=2, selB=True, patB="QPQQPLQQQQPQPL", nfB=0,
        D=12, LAT=160, Dbar=5, post=150, WB=48, lateA=True, pklast=True, thr=2.0**30, codepf=True, gate=True, ldq="", ldkv="",
        uorder="kfirst", vrot=True, q1at=99, uni=0, t5="", pkA=True, gatecnt=0, early8=-1, stB1=None, stB0=None, hiB=-1, altA=0, jit="", ramp="", vtouch=0, nofma=False, k6=False, compact=0, wgd=0, wgd2=0, midsites="", npre1=1):
    e = E()
    ints = lambda x: [int(y) for y in str(x).split(",")] if str(x) else []
    sW = 3
    SQ, SK, SV, SO = 16, 20, 24, 28
    sT, sT2, sQoff, sBuf, sW2, sT3, sVs = 32, 33, 34, 35, 36, 37, 38
    sStO, sMask = 92, 96
    sStamp = 40
    nst = [0]; npt = [0]
    def stamp(real=False, keep=False):
        if npt[0] == enc: e("s_memrealtime s[100:101]")
        npt[0] += 1
        if not stamps or (lite and not keep): return False
        r = sStamp + 2 * nst[0]; nst[0] += 1
        assert r + 1 < (90 if spin else 92)
        e(f"{'s_memrealtime' if (real or allreal) else 's_memtime'} s[{r}:{r+1}]")
        return True
    def mark(): return (nst[0], npt[0])
    def rewind(m): nst[0], npt[0] = m
    vThr, vDV = 6, 7
    vKA, vVA, vQA = 8, 16, 20
    vOW, vOR, vOG = 24, 26, 27
    vM0, vM1, vNM, vC, vL0, vL1, vMT, vInv = 28, 29, 30, 31, 32, 33, 34, 35
    vDQ = 36
    vT = 40
    vDK = vT
    vQ, vS, vP = 48, 80, 112
    vO = [176, 192, vQ, vQ + 16]
    POOL = [208 + 4 * i for i in range(12)]
    vSelA, vSelC = POOL[-2], POOL[-1]
    if uorder == "kfirst": units = [("K", i) for i in range(8)] + [("V", i) for i in range(8)]
    else: units = [(u[0], int(u[1])) for u in uorder.split(",")]
    need = {u: n + 1 for n, u in enumerate(units)}
    needl, capl, lagl, t6l, t5l = ints(needs), ints(caps), ints(lagsites), ints(t6), ints(t5)
    midl = ints(midsites)
    if midl: assert len(midl) == len(needl) - 1 - npre1 + (1 if t6l else 0) and not t5l and not selA and k6
    assert needl[0] == 1 and needl[-1] == 16 and len(capl) == len(needl) and len(lagl) == len(needl) - 1 - npre
    if vrot: assert uorder == "kfirst" and not [x for x in needl if 8 < x < 16]

    def srd(r, p, off):
        e(f"s_add_u32 s{r}, s{p}, s{off}")
        e(f"s_addc_u32 s{r+1}, s{p+1}, 0")
    def srd_tail(r):
        e(f"s_mov_b32 s{r+2}, 0x10000")
        e(f"s_mov_b32 s{r+3}, 0x20000")
    def q_patterns():
        e("v_and_b32 v3, 7, v0")
        e("v_xor_b32 v3, v2, v3")
        e("v_lshlrev_b32 v3, 4, v3")
        e("v_lshrrev_b32 v4, 3, v0")
        e(f"v_lshl_add_u32 v{vDQ}, v4, 8, v3")
        e(f"v_xor_b32 v3, 64, v{vDQ}")
        e(f"v_add_u32 v{vDQ+2}, 0x800, v{vDQ}")
        e(f"v_add_u32 v{vDQ+1}, 0x400, v3")
        e(f"v_add_u32 v{vDQ+3}, 0xc00, v3")
    def k_pattern0(dst):
        e("v_and_b32 v3, 15, v0")
        e("v_xor_b32 v4, v2, v3")
        e("v_lshlrev_b32 v4, 4, v4")
        e(f"v_lshl_add_u32 v{dst}, v2, 8, v4")
    def q_dma(sSrc):
        for m in range(4): e(f"buffer_load_dwordx4 v{vDQ+m}, s[{SQ}:{SQ+3}], s{sSrc} offen offset:{m*1024} {ldq} lds")
    def q_tile():
        q_dma(sQoff)
        e(f"s_add_u32 m0, s{sBuf}, 4096")
        e("s_nop 0")
        q_dma(sT3)

    e("s_cmp_ge_u32 s2, 256")
    e("s_cbranch_scc1 L_end")
    stamp(True, True); stamp(False, True)
    if spin: e("s_memrealtime s[90:91]")
    e("s_load_dwordx4 s[4:7], s[0:1], 0")
    e("s_load_dwordx4 s[8:11], s[0:1], 16")
    if stamps: e("s_load_dwordx2 s[12:13], s[0:1], 40")
    e("v_lshrrev_b32 v1, 6, v0")
    e("v_and_b32 v0, 63, v0")
    def code_prefetch():
        e.c("pull this kernel's code into L2 (4 lines of 128 B per workgroup)")
        e(f"s_getpc_b64 s[{SO}:{SO+1}]")
        e.label(f"L_pc{len(e.l)}")
        lab = e.l[-1][:-1]
        e(f"s_lshr_b32 s{sT}, s2, 3")
        e(f"s_lshl_b32 s{sT}, s{sT}, 9")
        if compact: e(f"s_sub_u32 s{sT}, s{sT}, {lab}-{KN}")
        e(f"s_ashr_i32 s{sVs}, s{sT}, 31")
        e(f"s_add_u32 s{SO}, s{SO}, s{sT}")
        e(f"s_addc_u32 s{SO+1}, s{SO+1}, s{sVs}")
        e("v_lshlrev_b32 v5, 3, v0")
        e(f"global_load_dword v1, v5, s[{SO}:{SO+1}]")
    if compact:
        e("s_and_b32 s14, s2, 7")
        e(f"v_readfirstlane_b32 s{sW}, v1")
        if compact == 2 and codepf: code_prefetch()
        e(f"s_lshr_b32 s{sT}, s2, 6")
        e(f"s_lshl2_add_u32 s14, s14, s{sT}")
        e("s_bfe_u32 s15, s2, 0x30003")
        e("s_lshl3_add_u32 s15, s14, s15")
        e("s_lshl_b32 s14, s14, 16")
        e("s_lshl_b32 s15, s15, 16")
    else:
        e("s_lshr_b32 s15, s2, 3")
        e(f"v_readfirstlane_b32 s{sW}, v1")
        if codepf:
            e.c("pull this kernel's code into L2 (4 lines of 128 B per workgroup)")
            e("s_getpc_b64 s[18:19]")
            e(f"s_lshl_b32 s{sT}, s15, 9")
            e(f"s_add_u32 s18, s18, s{sT}")
            e("s_addc_u32 s19, s19, 0")
            e("v_and_b32 v2, 3, v0")
            e("v_lshlrev_b32 v2, 7, v2")
            e("global_load_dword v1, v2, s[18:19]")
        e("s_and_b32 s14, s2, 7")
        e(f"s_lshr_b32 s{sT}, s15, 3")
        e("s_lshl_b32 s14, s14, 2")
        e(f"s_add_u32 s14, s14, s{sT}")
        e("s_and_b32 s15, s15, 7")
        e(f"s_lshl_b32 s{sT}, s14, 3")
        e(f"s_add_u32 s15, s15, s{sT}")
        e("s_lshl_b32 s14, s14, 16")
        e("s_lshl_b32 s15, s15, 16")
    e("v_lshrrev_b32 v2, 4, v0")
    e(f"s_lshl_b32 s{sQoff}, s{sW}, 13")
    def jitter(tag):
        if not jit: return
        for spec in jit.split(","):
            where, mask, amt = spec.split(":")
            if where != tag: continue
            lab = f"L_j{tag}_{len(e.l)}"
            e(f"s_lshr_b32 s98, {mask}, s{sW}")
            e("s_bitcmp1_b32 s98, 0")
            e(f"s_cbranch_scc0 {lab}")
            for _ in range(int(amt)): e("s_sleep 40")
            e.label(lab)
    jitter("start")
    if wgd:
        e("s_bitcmp1_b32 s2, 3")
        e("s_cbranch_scc0 L_wgd")
        e(f"s_sleep {wgd}")
        e.label("L_wgd")
    if wgd2:
        e("s_bitcmp1_b32 s2, 4")
        e("s_cbranch_scc0 L_wgd2")
        e(f"s_sleep {wgd2}")
        e.label("L_wgd2")
    m0 = mark()
    if uni:
        sA, sB2, sOf, SX, vX = sT2, sT3, sW2, SO, 44
        q_patterns()
        k_pattern0(vDK)
        for m in range(1, 4): e(f"v_xor_b32 v{vDK+m}, {64*m}, v{vDK}")
        e(f"s_cmp_ge_u32 s{sW}, {2+uni}")
        e("s_cbranch_scc1 L_B")
        e(f"s_add_u32 s{sBuf}, s{sQoff}, 0x20000   ; staging block")
        e(f"s_sub_u32 s{sA}, s{sQoff}, 0x4000")
        srd_tail(SX)
        e(f"s_movk_i32 s{sB2}, 0x1000")
        e(f"s_cmp_lt_u32 s{sW}, 2")
        e("s_cselect_b64 vcc, -1, 0")
        e(f"s_cselect_b32 s{sT}, s{sBuf}, s{sA}")
        e(f"s_cselect_b32 s{sA}, s{sQoff}, s{sA}")
        e(f"s_cselect_b32 s{sB2}, 128, s{sB2}")
        e(f"s_cselect_b32 s{sOf}, s15, s14")
        e(f"s_mov_b32 m0, s{sT}")
        for m in range(4): e(f"v_cndmask_b32 v{vX+m}, v{vDK+m}, v{vDQ+m}, vcc")
        e("s_waitcnt lgkmcnt(0)")
        stamp()
        e(f"s_cselect_b32 s{SX}, s4, s6")
        e(f"s_cselect_b32 s{SX+1}, s5, s7")
        srd(SX, SX, sOf)
        for m in range(4): e(f"buffer_load_dwordx4 v{vX+m}, s[{SX}:{SX+3}], s{sA} offen offset:{m*1024} lds")
        e(f"s_add_u32 m0, s{sT}, 4096")
        e(f"s_add_u32 s{sB2}, s{sB2}, s{sA}")
        for m in range(4): e(f"buffer_load_dwordx4 v{vX+m}, s[{SX}:{SX+3}], s{sB2} offen offset:{m*1024} lds")
        e(f"s_cmp_ge_u32 s{sW}, 4")
        e("s_cbranch_scc1 L_B")
        srd(SQ, 4, 15); srd_tail(SQ)
        e(f"s_cmp_lt_u32 s{sW}, 2")
        e("s_cbranch_scc1 L_lead0")
        e(f"s_add_u32 s{sT3}, s{sQoff}, 128")
        e(f"s_mov_b32 m0, s{sBuf}")
        if gate: e("s_waitcnt vmcnt(0)")
        q_tile()
        e.label("L_lead0")
        stamp()
        e("s_branch L_A")
    else:
        if not k6:
            e(f"s_cmp_ge_u32 s{sW}, 4")
            e("s_cbranch_scc1 L_B")
        e(f"s_add_u32 s{sBuf}, s{sQoff}, 0x20000   ; staging block")
        e(f"s_add_u32 s{sT3}, s{sQoff}, 128")
        srd_tail(SQ)
        e(f"s_cmp_ge_u32 s{sW}, 2")
        e("s_cbranch_scc1 L_lag")
        if midl:
            e(f"s_cmp_eq_u32 s{sW}, 1")
            e("s_cbranch_scc1 L_mid")
        q_patterns()
        e(f"s_mov_b32 m0, s{sBuf}")
        e("s_waitcnt lgkmcnt(0)")
        stamp()
        srd(SQ, 4, 15)
        q_tile()
        stamp()
        e("s_branch L_A")
        e.c("---------------- waves 2,3: K tile 0, then their q tile")
        e.label("L_lag")
        rewind(m0)
        k_pattern0(vDK)
        for m in range(1, 4): e(f"v_xor_b32 v{vDK+m}, {64*m}, v{vDK}")
        srd_tail(SK)
        e(f"s_sub_u32 s{sT2}, s{sW}, 2")
        e(f"s_lshl_b32 s{sT2}, s{sT2}, 12")
        e(f"s_mov_b32 m0, s{sT2}")
        e("s_waitcnt lgkmcnt(0)")
        stamp()
        srd(SK, 6, 14)
        for m in range(4): e(f"buffer_load_dwordx4 v{vDK+m}, s[{SK}:{SK+3}], s{sT2} offen offset:{m*1024} {ldkv} lds")
        if compact == 1 and codepf: code_prefetch()
        if k6:
            e(f"s_cmp_ge_u32 s{sW}, 4")
            e("s_cbranch_scc1 L_B")
        if midl:
            e(f"s_waitcnt vmcnt({gatecnt})")
            e.label("L_mid")
            e("s_waitcnt lgkmcnt(0)")
        srd(SQ, 4, 15)
        e(f"s_mov_b32 m0, s{sBuf}")
        q_patterns()
        if gate and not midl: e(f"s_waitcnt vmcnt({gatecnt})")
        q_tile()
        stamp()
        e("s_branch L_A")

    def sel_const():
        e.c("row-sum MFMA A operand: 1.0 where (k group parity) == (row group parity)")
        e("v_lshrrev_b32 v4, 4, v0")
        e("v_lshrrev_b32 v5, 2, v0")
        e("v_xor_b32 v4, v4, v5")
        e("v_and_b32 v4, 1, v4")
        e("v_sub_u32 v4, v4, 1")
        for j in range(4): e(f"v_and_b32 v{vSelA+j}, 0x3f803f80, v4")
    def setup(sel):
        srd(SO, 10, 15); srd_tail(SO)
        e("v_and_b32 v2, 31, v0")
        e("v_lshrrev_b32 v3, 5, v0")
        e.c("K fragment addresses")
        e("v_and_b32 v4, 15, v0")
        e("v_xor_b32 v4, v4, v3")
        e("v_lshlrev_b32 v4, 4, v4")
        e(f"v_lshl_add_u32 v{vKA}, v2, 8, v4")
        for s in range(1, 8): e(f"v_xor_b32 v{vKA+s}, {s*32}, v{vKA}")
        e.c("Q fragment addresses")
        e("v_bfe_u32 v4, v0, 1, 3")
        e("v_xor_b32 v4, v4, v3")
        e("v_lshlrev_b32 v4, 4, v4")
        e("v_lshl_add_u32 v4, v2, 7, v4")
        e(f"v_add_u32 v{vQA}, s{sBuf}, v4")
        for s in range(1, 4): e(f"v_xor_b32 v{vQA+s}, {s*32}, v{vQA}")
        e.c("V fragment addresses (transposing reads)")
        e("v_bfe_u32 v4, v0, 2, 2")
        e("v_lshl_add_u32 v5, v3, 2, v4")
        e("v_lshlrev_b32 v5, 8, v5")
        e("v_lshl_add_u32 v5, v4, 6, v5")
        e("v_bfe_u32 v6, v0, 4, 1")
        e("v_lshl_add_u32 v5, v6, 5, v5")
        e("v_and_b32 v6, 1, v0")
        e("v_lshl_add_u32 v5, v6, 4, v5")
        e("v_bfe_u32 v6, v0, 1, 1")
        e("v_lshl_add_u32 v5, v6, 3, v5")
        e(f"v_add_u32 v{vVA}, 0x10000, v5")
        for t in range(1, 4): e(f"v_xor_b32 v{vVA+t}, {t*64}, v{vVA}")
        e.c("O staging: write, read-back and global addresses")
        e("v_and_b32 v4, 7, v0")
        e("v_xor_b32 v4, v4, v3")
        e("v_lshlrev_b32 v4, 4, v4")
        e("v_lshl_add_u32 v4, v2, 7, v4")
        e(f"v_add_u32 v{vOW}, s{sBuf}, v4")
        e("v_lshrrev_b32 v4, 3, v0")
        e("v_and_b32 v5, 7, v0")
        e("v_xor_b32 v6, v4, v5")
        e("v_lshlrev_b32 v6, 4, v6")
        e("v_lshl_add_u32 v6, v4, 7, v6")
        e(f"v_add_u32 v{vOR}, s{sBuf}, v6")
        e("v_lshlrev_b32 v5, 4, v5")
        e("v_lshl_add_u32 v5, v4, 8, v5")
        e(f"v_add_u32 v{vOG}, s{sQoff}, v5")
        for m in range(4): e(f"s_mov_b32 s{sStO+m}, {m*2048}")
        e(f"v_mov_b32 v{vC}, {hex(f32bits(CC))}")
        e(f"v_mov_b32 v{vMT}, 0xff800000")
        e(f"v_mov_b32 v{vThr}, {hex(f32bits(-1.0 if forcefb else float(thr)))}")
        if sel: sel_const(); e(f"s_mov_b64 s[{sMask}:{sMask+1}], -1")

    e.c("---------------- waves 4-7: K / V loads, then their own q tile")
    e.label("L_B")
    rewind(m0)
    if not uni and not k6: k_pattern0(vDK)
    e(f"s_and_b32 s{sT}, s{sW}, 1")
    e(f"s_lshl_b32 s{sT}, s{sT}, 7")
    e(f"v_xor_b32 v{vDK}, s{sT}, v{vDK}")
    e(f"v_xor_b32 v{vDK+1}, 64, v{vDK}")
    e(f"s_and_b32 s{sW2}, s{sW}, 3")
    e(f"s_lshl_b32 s{sBuf}, s{sW2}, 13")
    e(f"s_add_u32 s{sBuf}, s{sBuf}, 0x21000")
    e(f"s_lshl_b32 s{sW2}, s{sW2}, 11")
    if k6: npt[0] += 1; nst[0] += 1 if (stamps and not lite) else 0
    else:
        srd_tail(SK)
        e("s_waitcnt lgkmcnt(0)")
        stamp()
        srd(SK, 6, 14)
    vm = ["x"] + [f"u{j}" for j in range(2, uni)] + (["u1"] if k6 else [])
    vready = [False]
    def v_setup():
        if vready[0]: return
        vready[0] = True
        srd(SV, 8, 14); srd_tail(SV)
        e("v_lshlrev_b32 v5, 2, v2")
        e("v_and_b32 v3, 15, v0")
        e("v_xor_b32 v5, v5, v3")
        e("v_lshlrev_b32 v5, 4, v5")
        e(f"v_lshl_add_u32 v{vDV}, v2, 8, v5")
    def unit(n):
        kind, i = units[n]
        if kind == "V": v_setup()
        if kind == "V" and vrot:
            if i == 0:
                e.c("V tiles in an order rotated by the member index of the KV group")
                e(f"s_lshr_b32 s{sVs}, s15, 3")
                e(f"s_and_b32 s{sVs}, s{sVs}, 0xe000")
                e(f"s_add_u32 s{sVs}, s{sVs}, s{sW2}")
            else:
                e(f"s_add_u32 s{sVs}, s{sVs}, 8192")
                e(f"s_and_b32 s{sVs}, s{sVs}, 0xffff")
            e(f"s_add_u32 m0, s{sVs}, 0x10000")
            e("s_nop 0")
            so = sVs
        else:
            e(f"s_add_u32 m0, s{sW2}, {(0 if kind == 'K' else 0x10000) + i*8192}")
            e(f"s_add_u32 s{sT}, s{sW2}, {i*8192}")
            so = sT
        r = SK if kind == "K" else SV
        va = [vDK, vDK + 1] if kind == "K" else [vDV, vDV]
        for m in range(2): e(f"buffer_load_dwordx4 v{va[m]}, s[{r}:{r+3}], s{so} offen offset:{m*1024} {ldkv} lds")
        vm.extend([f"u{n}"] * 2)
    def vmwait(tags):
        idx = [j for j, x in enumerate(vm) if x in tags]
        if idx: e(f"s_waitcnt vmcnt({len(vm)-1-max(idx)})")
    def q1():
        e(f"s_mov_b32 m0, s{sBuf}")
        e("s_nop 0")
        q_dma(sQoff); vm.extend(["q1"] * 4)
    issued = 3 if k6 else max(1, uni); q1done = False
    for bi, nd in enumerate(needl):
        assert max(capl[bi], issued) >= nd
        while issued < capl[bi]: unit(issued); issued += 1
        if bi == 0:
            stamp()
            v_setup(); srd(SQ, 4, 15); srd_tail(SQ)
            if not uni: q_patterns()
            setup(selB)
        if bi == q1at:
            assert bi > npre + 1 or bi == len(needl) - 1
            q1(); q1done = True
        vmwait({f"u{j}" for j in range(nd)})
        e("s_barrier")
    stamp()
    if t5l: e("s_barrier")
    if t6l:
        assert not q1done
        e(f"s_bitcmp1_b32 s{sW}, 1")
        e("s_cbranch_scc0 L_t6a")
        e("s_barrier")
        e.label("L_t6a")
        q1()
        e(f"s_bitcmp1_b32 s{sW}, 1")
        e("s_cbranch_scc1 L_t6b")
        e("s_barrier")
        e.label("L_t6b")
    elif not q1done: q1()
    def q_read(hf):
        for s in range(4): e(f"ds_read_b128 v[{vQ+16*hf+4*s}:{vQ+16*hf+4*s+3}], v{vQA+s}")
    e(f"s_add_u32 s{sT3}, s{sQoff}, 128")
    jitter("B1")
    e("s_waitcnt vmcnt(0)")
    q_read(0)
    e("s_waitcnt lgkmcnt(0)")
    q_dma(sT3)
    e("s_waitcnt vmcnt(0)")
    q_read(1)
    jitter("B2")
    if prioB or hiB >= 0: e(f"s_setprio {2 if hiB >= 0 else prioB}")
    e.c("---------------- tile body without barriers (waves 4-7, and every redo after L_fb)")
    e.label("L_mainB")

    def body(grp, ns, sel, pat, nf):
        pool = POOL[:-2] if sel else POOL
        preg = lambda i, u: vP + 8 * i + u
        mf = []
        def SEL(i, k):
            if sel: mf.append(dict(ty="L", i=i, k=k))
        def QK(i, s): mf.append(dict(ty="Q", i=i, s=s))
        def PV(i, k, t): mf.append(dict(ty="P", i=i, k=k, t=t))
        for s in range(8): QK(0, s)
        for s in range(8): QK(1, s)
        if ramp and grp == "A":
            assert ns == 0 and not sel
            rl = ints(ramp); nxt = [0, 0]
            def take(limit):
                t_ = 0 if nxt[0] <= nxt[1] else 1
                if nxt[t_] >= limit: return False
                PV(nxt[t_] // 2, nxt[t_] % 2, t_); nxt[t_] += 1; return True
            for p in range(1, 7):
                done = 0
                for s in range(8):
                    QK(p + 1, s)
                    while done < (s + 1) * rl[p] // 8 and take(2 * p + (1 if s >= 4 else 0)): done += 1
            while take(14): pass
            rest = [(ks // 2, ks % 2, 2) for ks in range(16)]
            k = max(0, rl[7])
            for x in rest[:k]: PV(*x)
            while take(15): pass
            for x in rest[k:2*k]: PV(*x)
            while take(16): pass
            for x in rest[2*k:]: PV(*x)
            for ks in range(16): PV(ks // 2, ks % 2, 3)
        else:
            for t in range(ns): PV(0, 0, t)
            SEL(0, 0)
            for p in range(1, 7):
                lst = [(p - 1, 1, t) for t in range(ns)] + [(p, 0, t) for t in range(ns)]
                done = 0
                if pat:
                    sq = sl = 0
                    for ch in pat:
                        if ch == "Q": QK(p + 1, sq); sq += 1
                        elif ch == "P": PV(*lst[done]); done += 1
                        else: SEL(*((p - 1, 1) if sl == 0 else (p, 0))); sl += 1
                    assert sq == 8 and done == len(lst)
                    continue
                for s in range(8):
                    QK(p + 1, s)
                    want = (s + 1) * len(lst) // 8
                    while done < want:
                        PV(*lst[done]); done += 1
                        if lst[done - 1][2] == min(1, ns - 1): SEL(*lst[done - 1][:2])
                    if ns == 0 and s == 1: SEL(p - 1, 1)
                    if ns == 0 and s == 5: SEL(p, 0)
            deferred = [(ks // 2, ks % 2, t) for t in range(ns, 4) for ks in range(16)]
            def defer(n):
                for _ in range(n):
                    if deferred: PV(*deferred.pop(0))
            if ns == 0 and altA and grp == "A":
                assert not sel
                dd = [deferred[16*t:16*t+16] for t in range(4)]
                o = [x for ks in range(16) for x in (dd[0][ks], dd[1][ks])]
                if altA == 1: o += [x for ks in range(16) for x in (dd[2][ks], dd[3][ks])]
                else: o += [x for ks in range(12) for x in (dd[2][ks], dd[3][ks])] + dd[2][12:] + dd[3][12:]
                for x in o: PV(*x)
            elif ns == 0:
                d0, d1 = deferred[:16], deferred[16:32]
                deferred[:32] = d0[:14] + d1[:nf] + d0[14:15] + d1[nf:2*nf] + d0[15:] + d1[2*nf:]
                defer(12); SEL(6, 1); defer(2 + nf); SEL(7, 0); defer(1 + nf); SEL(7, 1); defer(64)
            else:
                for t in range(ns): PV(6, 1, t)
                SEL(6, 1); defer(nf)
                for t in range(ns): PV(7, 0, t)
                SEL(7, 0); defer(nf); SEL(7, 1)
                for t in range(ns): PV(7, 1, t)
                defer(64)
        NM = len(mf)
        assert NM == (144 if sel else 128)
        for m in mf:
            if m["ty"] == "Q":
                m["unit"] = ("K", m["i"]); m["tag"] = ("Q", m["i"], m["s"])
                m["deps"] = [(("f", m["i"] - 2, 15), 0)] if (m["s"] == 0 and m["i"] >= 2) else []
            elif m["ty"] == "L":
                m["tag"] = ("L", m["i"], m["k"]); m["deps"] = [(("c", m["i"], 4 * m["k"] + 3), 2)]
            else:
                m["unit"] = ("V", m["i"]); m["tag"] = ("P", m["i"], m["k"], m["t"])
                m["deps"] = [(("c", m["i"], 4 * m["k"] + 3), 2)]
        def reads(m, r):
            if m["ty"] == "Q": return [f"ds_read_b128 v[{r}:{r+3}], v{vKA+m['s']} offset:{m['i']*8192}"]
            ks = 2 * m["i"] + m["k"]
            return [f"ds_read_b64_tr_b16 v[{r}:{r+1}], v{vVA+m['t']} offset:{ks*4096}",
                    f"ds_read_b64_tr_b16 v[{r+2}:{r+3}], v{vVA+m['t']} offset:{ks*4096+2048}"]
        def mtext(m):
            if m["ty"] == "L":
                b = preg(m["i"], 4 * m["k"])
                return f"v_mfma_f32_16x16x32_bf16 v[{vSelC}:{vSelC+3}], v[{vSelA}:{vSelA+3}], v[{b}:{b+3}], " + ("0" if (m["i"], m["k"]) == (0, 0) else f"v[{vSelC}:{vSelC+3}]")
            r = m["slot"]
            if m["ty"] == "Q": d = vS + 16 * (m["i"] % 2); b = vQ + 4 * m["s"]; first = m["s"] == 0
            else: d = vO[m["t"]]; b = preg(m["i"], 4 * m["k"]); first = (m["i"], m["k"]) == (0, 0)
            return f"v_mfma_f32_32x32x16_bf16 v[{d}:{d+15}], v[{r}:{r+3}], v[{b}:{b+3}], " + ("0" if first else f"v[{d}:{d+15}]")
        q, qm = [], []
        def V(text, cost=4, tag=None, deps=(), kind="valu"): q.append(dict(text=text, cost=cost, tag=tag, deps=list(deps), kind=kind))
        def M(text, tag=None, deps=(), kind="lds"): qm.append(dict(text=text, cost=4, tag=tag, deps=list(deps), kind=kind))
        b = vS
        V(f"v_max3_f32 v{vM0}, v{b}, v{b+1}, v{b+2}", deps=[(("Q", 0, 7), 12)])
        V(f"v_max3_f32 v{vM1}, v{b+3}, v{b+4}, v{b+5}")
        for j in range(6, 16, 2):
            m = vM0 if (j // 2) % 2 == 1 else vM1
            V(f"v_max3_f32 v{m}, v{m}, v{b+j}, v{b+j+1}")
        V(f"v_max3_f32 v{vM0}, v{vM0}, v{vM1}, v{vMT}")
        V(f"v_mov_b32 v{vM1}, v{vM0}", tag="mv")
        V(f"v_permlane32_swap_b32 v{vM0}, v{vM1}", deps=[("mv", 2)])
        V(f"v_max_f32 v{vM0}, v{vM0}, v{vM1}")
        V(f"v_mul_f32 v{vNM}, {hex(f32bits(-CC))}, v{vM0}")
        alias = {}
        def cvt(i):
            p, u = divmod(i, 8); ta = vT + 2 * (u % 4)
            return dict(text=f"v_cvt_pk_bf16_f32 v{preg(p, u)}, v{ta}, v{ta+1}", tag=("c", p, u), deps=[(("e", p, u), 1)])
        for i in range(64):
            p, u = divmod(i, 8)
            sa = vS + 16 * (p % 2) + 2 * u; ta = vT + 2 * (u % 4)
            f = [dict(text=f"v_fma_f32 v{ta}, v{sa}, v{vC}, v{vNM}", tag=("f", p, 2 * u), deps=[(("Q", p, 7), 12)] if u == 0 else []),
                 dict(text=f"v_fma_f32 v{ta+1}, v{sa+1}, v{vC}, v{vNM}", tag=("f", p, 2 * u + 1))]
            ee = [dict(text=f"v_exp_f32 v{ta}, v{ta}", cost=8, tag=("e0", p, u)), dict(text=f"v_exp_f32 v{ta+1}, v{ta+1}", cost=8, tag=("e", p, u))]
            if nofma and grp == "B" and p >= 1:
                ee[0]["text"] = f"v_exp_f32 v{ta}, v{sa}"; ee[1]["text"] = f"v_exp_f32 v{ta+1}, v{sa+1}"
                ee[0]["deps"] = f[0].get("deps", []); ftag = f[1]["tag"]; f = []
                alias[ftag] = ("e", p, u)
            a = [] if sel else [dict(text=f"v_mov_b32 v{vL0}, v{ta}" if i == 0 else f"v_add_f32 v{vL0}, v{vL0}, v{ta}", deps=[(("e0", p, u), 1)]),
                                dict(text=f"v_mov_b32 v{vL1}, v{ta+1}" if i == 0 else f"v_add_f32 v{vL1}, v{vL1}, v{ta+1}", deps=[(("e", p, u), 1)])]
            c = [cvt(i - 1)] if i else []
            lastc = [cvt(i)] if i == 63 else []
            for o in (f[:1] + c + f[1:] if (sel and u > 0) else c + f) + ee + a[:1] + lastc + a[1:]: V(**o)
        if sel:
            V(f"v_cmp_nge_f32 vcc, v{vThr}, v{vSelC}", deps=[(("L", 7, 1), 8)])
            V(f"v_rcp_f32 v{vInv}, v{vSelC}", cost=8, tag="rcp")
        else:
            V(f"v_add_f32 v{vL0}, v{vL0}, v{vL1}")
            V(f"v_mov_b32 v{vL1}, v{vL0}", tag="mv2")
            V(f"v_permlane32_swap_b32 v{vL0}, v{vL1}", deps=[("mv2", 2)])
            V(f"v_add_f32 v{vL0}, v{vL0}, v{vL1}")
            V(f"v_cmp_lt_f32 vcc, v{vThr}, v{vL0}", tag="cmp" if midl else None, deps=[("lastsite", 0)] if (grp == "A" and t6l and midl) else [])
            V(f"v_rcp_f32 v{vInv}, v{vL0}", cost=8, tag="rcp")
        for n in range(1, 4): V(f"v_xor_b32 v{vQA+n}, {32*n}, v{vOW}")
        if sel: V(f"s_and_b64 vcc, vcc, s[{sMask}:{sMask+1}]", kind="salu", deps=[("lastsite", 0)] if (grp == "A" and t6l) else [])
        V("s_cbranch_vccnz L_fb", kind="salu", tag="chk", deps=[("lastsite", 0)] if (grp == "A" and t6l) else [])
        lastP = {t: [m for m in mf if m["ty"] == "P" and m["t"] == t][-1]["tag"] for t in range(4)}
        late = lateA and grp == "A"
        def stores(h):
            base = vS + 16 * h
            for m in range(4):
                M(None, kind="waitl", tag=("or", h, m))
                M(f"buffer_store_dwordx4 v[{base+4*m}:{base+4*m+3}], v{vOG}, s[{SO}:{SO+3}], s{sStO+m} offen offset:{h*128} {stB1 if (grp == 'B' and h == 1 and stB1 is not None) else (stB0 if (grp == 'B' and h == 0 and stB0 is not None) else stflag)}".rstrip(), kind="vm")
        for t in range(4):
            ob = vO[t]
            for n in range(2):
                dd = [(lastP[t], 12), ("rcp", 1), ("chk", 0)] if n == 0 else []
                if pklast and t == 3 and (grp == "B" or pkA):
                    if n == 0: V(f"v_mov_b32 v{vInv-1}, v{vInv}", deps=[("rcp", 1), ("chk", 0)])
                    for j in range(4): V(f"v_pk_mul_f32 v[{ob+8*n+2*j}:{ob+8*n+2*j+1}], v[{vInv-1}:{vInv}], v[{ob+8*n+2*j}:{ob+8*n+2*j+1}]", deps=dd if j == 0 else [])
                else:
                    for j in range(8): V(f"v_mul_f32 v{ob+8*n+j}, v{vInv}, v{ob+8*n+j}", deps=dd if j == 0 else [])
                for j in range(4): V(f"v_cvt_pk_bf16_f32 v{ob+4*n+j}, v{ob+8*n+2*j}, v{ob+8*n+2*j+1}", tag=("pk", t, n, j))
                x = 2 * (t % 2) + n
                if t == 2 and n == 0: M(None, kind="waitl", tag=("or", 0, 3))
                M(f"ds_write_b128 v{vQA+x if x else vOW}, v[{ob+4*n}:{ob+4*n+3}]", tag=("ow", t, n), deps=[(("pk", t, n, 3), 0)])
            if t % 2 == 1:
                hf = t // 2; tb = vS + 16 * hf
                M(None, kind="waitl", tag=("ow", t, 1))
                for m in range(4): M(f"ds_read_b128 v[{tb+4*m}:{tb+4*m+3}], v{vOR} offset:{m*1024}", tag=("or", hf, m))
                if late and hf == 1: stores(0)
                if not (late and hf == 0): stores(hf)
        for m in mf: m["deps"] = [(alias.get(d, d), n_) for d, n_ in m["deps"]]
        pos = {}; ni = [0]; t = [0]; lds = []; covered = [-1]; last_kind = [None]; wbusy = [0]
        def emit(text, cost, tag=None, kind="valu"):
            if kind == "lds" and last_kind[0] == "valu": cost += 8
            if kind in ("lds", "vm") and t[0] < wbusy[0]: t[0] = wbusy[0]
            if text.startswith("ds_write"): wbusy[0] = t[0] + WB
            e(text)
            if tag is not None: pos[tag] = ni[0]
            ni[0] += 1; t[0] += cost; last_kind[0] = kind
        def deps_ok(deps): return all(d in pos and ni[0] - pos[d] - 1 >= n for d, n in deps)
        def deps_emitted(deps): return all(d in pos for d, n in deps)
        def pad(deps):
            k = max(n - (ni[0] - pos[d] - 1) for d, n in deps)
            if k > 0: e(f"s_nop {k-1}"); ni[0] += k; t[0] += 4 * k; last_kind[0] = "salu"
        def lds_last(tag): return max(j for j, x in enumerate(lds) if x[0] == tag)
        def wait_lds(tag, greedy):
            last = lds_last(tag)
            if last <= covered[0]: return
            if greedy:
                while last + 1 < len(lds) and lds[last + 1][1] <= t[0] - LAT: last += 1
            n = len(lds) - 1 - last
            if n > 15: last = len(lds) - 1 - 15; n = 15
            t[0] = max(t[0], lds[last][1] + 100)
            emit(f"s_waitcnt lgkmcnt({n})", 4, kind="salu")
            covered[0] = last
        def site(name, skip):
            assert "chk" not in pos and "cmp" not in pos
            if barst: stamp(False, True)
            emit(f"s_cbranch_{skip} {name}", 10, kind="salu")
            if midl and skip == "scc1": e(f"s_cbranch_vccnz {name}"); t[0] += 10
            e("s_barrier"); t[0] += 4
            e.label(name)
            if barst: stamp(False, True); sys.stderr.write(f"site {name} t={t[0]}\n")
        checked = [needl[0] if grp == "A" else 16]
        rp = [0]; lagdone = [0]; middone = [0]; free = list(pool)
        def dep_far(m):
            for d, _ in m["deps"]:
                if d not in pos:
                    c = 0
                    for o in q:
                        if o["tag"] == d: break
                        c += o["cost"]
                    if c > post: return True
            return False
        def can_read(n_issued):
            while rp[0] < NM and mf[rp[0]]["ty"] == "L": rp[0] += 1
            if rp[0] >= NM or not free or rp[0] > n_issued + D: return False
            if t[0] < wbusy[0] and rp[0] > n_issued + 4: return False
            m = mf[rp[0]]
            if need[m["unit"]] > checked[0] and (rp[0] > n_issued + Dbar or dep_far(m)): return False
            return len(lds) - 1 - covered[0] + (1 if m["ty"] == "Q" else 2) <= 24
        def do_read():
            m = mf[rp[0]]
            if m["ty"] == "L": rp[0] += 1; return
            nd = need[m["unit"]]
            while nd > checked[0]:
                nx = min(x for x in needl if x > checked[0])
                bidx = needl.index(nx)
                assert bidx <= npre or lagdone[0] >= bidx - npre, (nx, "the followers' barrier site must come first")
                assert not midl or bidx <= npre1 or middone[0] >= bidx - npre1, (nx, "wave 1's barrier site must come first")
                wait_lds(("Qf", 7), False)
                site(f"L_nb{nx}", "scc1")
                checked[0] = nx
            m["slot"] = free.pop(0)
            for r in reads(m, m["slot"]):
                emit(r, 4, kind="lds"); lds.append((("A", rp[0]), t[0]))
            rp[0] += 1
        def qm_ready(must=False):
            if not qm or not deps_ok(qm[0]["deps"]): return False
            o = qm[0]
            if o["kind"] == "waitl":
                if not any(x[0] == o["tag"] for x in lds): return False
                return must or lds[lds_last(o["tag"])][1] + 100 <= t[0] + 4 or lds_last(o["tag"]) <= covered[0]
            return must or t[0] >= wbusy[0]
        def emit_q(qq):
            o = qq.pop(0)
            if o["kind"] == "waitl": wait_lds(o["tag"], False)
            else:
                emit(o["text"], o["cost"], o["tag"], o["kind"])
                if o["kind"] == "lds": lds.append((o["tag"], t[0]))
        if grp == "A":
            for s in range(8):
                emit(f"ds_read_b128 v[{vQ+4*s}:{vQ+4*s+3}], v{vQA+(s%4)} offset:{(s//4)*4096}", 4, kind="lds"); lds.append((("Qf", s), t[0]))
                do_read()
        else:
            for s in range(4): lds.append((("Qf", 4 + s), 0))
            for s in range(8): do_read()
        pipe = 0; log = []
        for n, m in enumerate(mf):
            while True:
                if not deps_emitted(m["deps"]):
                    if rp[0] <= n and can_read(n - 1):
                        for _ in range(4):
                            if can_read(n - 1): do_read()
                    if not deps_ok(q[0]["deps"]):
                        assert deps_emitted(q[0]["deps"]), (m["tag"], q[0])
                        pad(q[0]["deps"])
                    emit_q(q); continue
                if q and deps_ok(q[0]["deps"]) and (t[0] + q[0]["cost"] <= pipe or not deps_ok(m["deps"])): emit_q(q); continue
                break
            if not deps_ok(m["deps"]): pad(m["deps"])
            while rp[0] <= n: do_read()
            if m["ty"] != "L": wait_lds(("A", n), True)
            t[0] = max(t[0], pipe)
            log.append((n, m["tag"], t[0]))
            pipe = t[0] + (16 if m["ty"] == "L" else 32)
            emit(mtext(m), 8, m["tag"], "mfma")
            if m["ty"] != "L": free.append(m["slot"])
            k = 0
            while can_read(n) and k < (1 if m["ty"] == "L" else (4 if rp[0] < n + 9 else 2)):
                k += 1 if mf[rp[0]]["ty"] == "Q" else 2
                do_read()
            while qm_ready() and t[0] + 4 <= pipe:
                isw = qm[0]["text"] and qm[0]["text"].startswith("ds_write")
                emit_q(qm)
                if isw: break
            if grp == "B" and n == hiB: emit(f"s_setprio {prioB}", 4, kind="salu")
            if grp == "A" and n == early8 and checked[0] < 8:
                bidx = needl.index(8)
                assert needl[bidx - 1] == checked[0] and lagdone[0] >= bidx - npre
                site("L_nb8", "scc1"); checked[0] = 8
            if grp == "A":
                for j, x in enumerate(lagl + t5l[1:] + t6l[1:]):
                    if n == x: site(f"L_lg{j}", "scc0"); lagdone[0] += 1
                for j, x in enumerate(midl):
                    if n == x: site(f"L_md{j}", "vccz"); middone[0] += 1
                if t5l and n == t5l[0]:
                    assert checked[0] == 16
                    site("L_ld5", "scc1")
                if t6l and n == t6l[0]:
                    assert checked[0] == 16
                    site("L_ld6", "scc1"); pos["lastsite"] = ni[0] - 1
            if pairs and n in ((7, 23, 39, 55, 71, 87, 103, 119, 127) if NM == 128 else (7, 25, 43, 61, 79, 97, 115, 133, 143)):
                stamp(True, True); stamp(False, True); ni[0] += 2; t[0] += 8
            if m["tag"] in (("Q", 0, 7), ("P", 3, 0, 0), ("Q", 7, 7)) and not (barst and grp == "A"):
                if stamp(): ni[0] += 1; t[0] += 4
        stamp()
        while q or qm:
            if qm_ready(): emit_q(qm)
            elif q and deps_ok(q[0]["deps"]): emit_q(q)
            elif qm_ready(True): emit_q(qm)
            else: pad(q[0]["deps"]); emit_q(q)
        if verbose:
            for x in log[::(1 if verbose == 2 else 8)]: sys.stderr.write(f"{grp} {x}\n")
            sys.stderr.write(f"{grp} last mfma {log[-1]} model end t={t[0]}\n")
        stamp()
        if pairs: stamp(True, True); stamp(False, True)

    m1 = mark()
    stamp()
    body("B", nsB, selB, patB, nfB)
    e("s_branch L_fin" if (stamps or spin) else "s_endpgm")
    e.c("---------------- waves 0-3")
    e.label("L_A")
    rewind((m1[0] - (1 if (stamps and not lite) else 0), m1[1] - 1))
    setup(selA)
    if prioA: e(f"s_setprio {prioA}")
    if not gate or gatecnt: e("s_waitcnt vmcnt(8)")
    stamp()
    jitter("A0")
    e("s_barrier                               ; K tile 0")
    e(f"s_bitcmp1_b32 s{sW}, 1")
    if midl:
        e(f"s_cmp_eq_u32 s{sW}, 1")
        e("s_cselect_b64 vcc, -1, 0")
        e(f"s_cmp_eq_u32 s{sW}, 0")
        e("s_cbranch_scc1 L_lead")
        for _ in range(npre1): e("s_barrier")
        e("s_cbranch_vccnz L_lead")
        for _ in range(npre - npre1): e("s_barrier")
        e.label("L_lead")
        e(f"s_bitcmp1_b32 s{sW}, 1")
    else:
        e("s_cbranch_scc0 L_lead")
        for _ in range(npre): e("s_barrier")
        e.label("L_lead")
    e("s_waitcnt vmcnt(0)")
    stamp()
    body("A", nsA, selA, patA, nfA)
    e.label("L_fin")
    if barst: nst[0] = 24
    if stamps:
        e("s_waitcnt vmcnt(0)")
        stamp(False, True); stamp(True, True)
        e("s_waitcnt lgkmcnt(0)")
        n = nst[0]
        e.c(f"nstamps={n}" + (" pairs" if pairs else ""))
        e(f"s_lshl_b32 s{sT}, s2, 3")
        e(f"s_add_u32 s{sT}, s{sT}, s{sW}")
        e(f"s_mul_i32 s{sT}, s{sT}, {n*8}")
        e(f"s_add_u32 s12, s12, s{sT}")
        e("s_addc_u32 s13, s13, 0")
        e("v_mov_b32 v1, 0")
        for j in range(n):
            e(f"v_mov_b32 v2, s{sStamp+2*j}")
            e(f"v_mov_b32 v3, s{sStamp+2*j+1}")
            e(f"global_store_dwordx2 v1, v[2:3], s[12:13] offset:{8*j}")
            e("s_nop 1")
    if spin:
        e("s_waitcnt vmcnt(0)")
        if enc == 99: e("s_memrealtime s[100:101]")
        e("s_waitcnt lgkmcnt(0)")
        if enc >= 0:
            e("s_sub_u32 s100, s100, s90")
            e("s_lshl_b32 s100, s100, 2")
            if encw >= 0:
                e(f"s_lshr_b32 s98, s{sW}, 1")
                e(f"s_cmp_eq_u32 s98, {encw}")
                e("s_cselect_b32 s100, s100, 0")
            e(f"s_add_u32 s100, s100, {spin}")
        else: e(f"s_mov_b32 s100, {spin}")
        e.label("L_spin")
        e("s_sleep 4")
        e("s_memrealtime s[98:99]")
        e("s_waitcnt lgkmcnt(0)")
        e("s_sub_u32 s98, s98, s90")
        e("s_cmp_lt_u32 s98, s100")
        e("s_cbranch_scc1 L_spin")
    e.label("L_end")
    e("s_endpgm")
    e.c("---------------- a row sum left the safe range: exact row maximum over all keys, then redo the tile with it")
    e.label("L_fb")
    e("s_waitcnt lgkmcnt(0)")
    e("s_nop 15")
    e(f"v_mov_b32 v{vThr}, 0x7f800000")
    e(f"s_mov_b64 s[{sMask}:{sMask+1}], 0")
    e("v_and_b32 v2, 31, v0")
    e("v_lshrrev_b32 v3, 5, v0")
    e("v_lshlrev_b32 v4, 8, v2")
    e("v_lshl_add_u32 v4, v3, 4, v4")
    for s in range(8): e(f"buffer_load_dwordx4 v[{vQ+4*s}:{vQ+4*s+3}], v4, s[{SQ}:{SQ+3}], s{sQoff} offen offset:{s*32}")
    e(f"s_mov_b32 s{sT}, 0")
    e("s_waitcnt vmcnt(0)")
    e.label("L_fbloop")
    for s in range(8): e(f"ds_read_b128 v[{208+4*s}:{208+4*s+3}], v{vKA+s}")
    e("s_waitcnt lgkmcnt(0)")
    for s in range(8):
        e(f"v_mfma_f32_32x32x16_bf16 v[{vS}:{vS+15}], v[{208+4*s}:{208+4*s+3}], v[{vQ+4*s}:{vQ+4*s+3}], " + ("0" if s == 0 else f"v[{vS}:{vS+15}]"))
    for s in range(8): e(f"v_add_u32 v{vKA+s}, 0x2000, v{vKA+s}")
    e("s_nop 7")
    for j in range(0, 16, 2): e(f"v_max3_f32 v{vMT}, v{vMT}, v{vS+j}, v{vS+j+1}")
    e(f"s_add_u32 s{sT}, s{sT}, 1")
    e(f"s_cmp_lt_u32 s{sT}, 8")
    e("s_cbranch_scc1 L_fbloop")
    for s in range(8): e(f"v_subrev_u32 v{vKA+s}, 0x10000, v{vKA+s}")
    if selB: sel_const()
    e("s_branch L_mainB")
    if codepf:
        e.c("pad so that the code prefetch (16 KB from the entry) stays inside .text")
        e.label("L_pad")
        e(f".fill (16384 + 256 - (L_pad - {KN})) / 4, 4, 0xbf810000")
    text = e.text()
    for x in hz.check(text.split("\n")): sys.stderr.write(x + "\n")
    return HEADER + text + FOOTER

if __name__ == "__main__":
    kw = {}
    out = sys.argv[1]
    for a in sys.argv[2:]:
        k, v = a.split("=", 1)
        if v in ("True", "False"): v = v == "True"
        elif v.lstrip("-").isdigit(): v = int(v)
        kw[k] = v
    open(out, "w").write(gen(**kw))
```
